```python
import torch

def _softmax(x, axis=-1):
    return torch.softmax(x, dim=axis)
def _gelu(x):
    return torch.nn.functional.gelu(x, approximate="tanh")
def _silu(x):
    return torch.nn.functional.silu(x)
def _sigmoid(x):
    return torch.sigmoid(x)
def _layernorm(x, axis=-1, eps=1e-5):
    m = x.mean(dim=axis, keepdim=True)
    v = x.var(dim=axis, keepdim=True, unbiased=False)
    return (x - m) / torch.sqrt(v + eps)
def _scatter_add(tgt, idx, src, axis=0):
    return tgt.clone().index_add_(axis, idx, src)
def _segment_sum(src, seg, n):
    out = torch.zeros((n,) + src.shape[1:], dtype=src.dtype)
    return out.index_add_(0, seg, src)
def _pad(x, pw):
    flat = tuple(v for pair in reversed(pw) for v in pair)
    return torch.nn.functional.pad(x, flat)

kernel_name = 'concat_heads__gqa_block_cached__sliding_block_cached__decode'

def setup_inputs():

    _w = (lambda a: (lambda t: t.to(torch.bfloat16) if t.is_floating_point() else t)(torch.as_tensor(a)))
    def _A_setup():
        B, Sq, D = 2, 1, 1024
        Hq, Hkv, Sk, Dh = 32, 4, 32768, 128
        assert Hq % Hkv == 0, (Hq, Hkv)
        return {
            "x": _w((lambda *s: torch.randn(*s, dtype=torch.bfloat16) * 0.8)(B, Sq, D)),
            "k_cache": _w((lambda *s: torch.randn(*s, dtype=torch.bfloat16) * 1.6)(B, Hkv, Sk, Dh)),
            "v_cache": _w((lambda *s: torch.randn(*s, dtype=torch.bfloat16) * 0.2)(B, Hkv, Sk, Dh)),
            "wq": _w((lambda *s: torch.randn(*s, dtype=torch.bfloat16) * 1.6)(D, Hq * Dh) * (D ** -0.5)),
            "wo": _w((lambda *s: torch.randn(*s, dtype=torch.bfloat16) * 0.2)(Hq * Dh, D) * ((Hq * Dh) ** -0.5)),
        }
    _A_in = _A_setup()

    def _B_setup():
        B, Sq, D = 2, 1, 1024
        Hq, Hkv, Sk, Dh = 32, 4, 32768, 128
        assert Hq % Hkv == 0, (Hq, Hkv)
        return {
            "x": _w((lambda *s: torch.randn(*s, dtype=torch.bfloat16) * 0.8)(B, Sq, D)),
            "k_cache": _w((lambda *s: torch.randn(*s, dtype=torch.bfloat16) * 1.6)(B, Hkv, Sk, Dh)),
            "v_cache": _w((lambda *s: torch.randn(*s, dtype=torch.bfloat16) * 0.2)(B, Hkv, Sk, Dh)),
            "wq": _w((lambda *s: torch.randn(*s, dtype=torch.bfloat16) * 1.6)(D, Hq * Dh) * (D ** -0.5)),
            "wo": _w((lambda *s: torch.randn(*s, dtype=torch.bfloat16) * 0.2)(Hq * Dh, D) * ((Hq * Dh) ** -0.5)),
        }
    _B_in = _B_setup()

    return {
        "A_x": _A_in["x"],
        "A_k_cache": _A_in["k_cache"],
        "A_v_cache": _A_in["v_cache"],
        "A_wq": _A_in["wq"],
        "A_wo": _A_in["wo"],
        "B_x": _B_in["x"],
        "B_k_cache": _B_in["k_cache"],
        "B_v_cache": _B_in["v_cache"],
        "B_wq": _B_in["wq"],
        "B_wo": _B_in["wo"],
    }

def reference(A_x, A_k_cache, A_v_cache, A_wq, A_wo, B_x, B_k_cache, B_v_cache, B_wq, B_wo):
    def _A_ref(x, k_cache, v_cache, wq, wo):
        B, Sq, D = x.shape
        Hq, Dh = 32, 128
        Hkv = k_cache.shape[1]
        rep = Hq // Hkv
        q = (lambda x, *d: x.permute(*d))((x @ wq).reshape(B, Sq, Hq, Dh), 0, 2, 1, 3)
        k = (lambda x, n, axis: torch.repeat_interleave(x, n, dim=axis))(k_cache, rep, axis=1)
        v = (lambda x, n, axis: torch.repeat_interleave(x, n, dim=axis))(v_cache, rep, axis=1)
        scores = torch.einsum("bhqd,bhkd->bhqk", q, k) * (Dh ** -0.5)
        p = _softmax(scores, axis=-1)
        o = torch.einsum("bhqk,bhkd->bhqd", p, v)
        return (lambda x, *d: x.permute(*d))(o, 0, 2, 1, 3).reshape(B, Sq, Hq * Dh) @ wo

    def _B_ref(x, k_cache, v_cache, wq, wo):
        B, Sq, D = x.shape
        Hq, Dh = 32, 128
        Hkv, Sk = k_cache.shape[1], k_cache.shape[2]
        W = min(4096, max(256, Sk // 4))
        rep = Hq // Hkv
        q = (lambda x, *d: x.permute(*d))((x @ wq).reshape(B, Sq, Hq, Dh), 0, 2, 1, 3)
        k = (lambda x, n, axis: torch.repeat_interleave(x, n, dim=axis))(k_cache[:, :, Sk - W:, :], rep, axis=1)
        v = (lambda x, n, axis: torch.repeat_interleave(x, n, dim=axis))(v_cache[:, :, Sk - W:, :], rep, axis=1)
        scores = torch.einsum("bhqd,bhkd->bhqk", q, k) * (Dh ** -0.5)
        p = _softmax(scores, axis=-1)
        o = torch.einsum("bhqk,bhkd->bhqd", p, v)
        return (lambda x, *d: x.permute(*d))(o, 0, 2, 1, 3).reshape(B, Sq, Hq * Dh) @ wo

    a = _A_ref(A_x, A_k_cache, A_v_cache, A_wq, A_wo)
    b = _B_ref(B_x, B_k_cache, B_v_cache, B_wq, B_wo)
    return torch.concatenate([a, b], axis=-1)
```

```python
import re

class Asm:
    def __init__(self):
        self.lines = []
    def __call__(self, s):
        for ln in s.split("\n"):
            ln = ln.strip()
            if ln:
                self.lines.append(ln)
    def text(self):
        out = []
        for ln in self.lines:
            if ln.endswith(":") or ln.startswith(".") or ln.startswith(";"):
                out.append(ln)
            else:
                out.append("    " + ln)
        return "\n".join(out) + "\n"

_REG = re.compile(r"^-?(?:abs\()?([vsa])(?:(\d+)|\[(\d+):(\d+)\])\)?$")

def regs(op):
    op = op.strip()
    if op in ("vcc",): return [("s", "vcc_lo"), ("s", "vcc_hi")]
    if op in ("vcc_lo", "vcc_hi", "exec_lo", "exec_hi", "m0"): return [("s", op)]
    if op == "exec": return [("s", "exec_lo"), ("s", "exec_hi")]
    m = _REG.match(op)
    if not m: return []
    k = m.group(1)
    if m.group(2) is not None:
        return [(k, int(m.group(2)))]
    return [(k, i) for i in range(int(m.group(3)), int(m.group(4)) + 1)]

TRANS = ("v_exp_f32", "v_log_f32", "v_rcp_f32", "v_rsq_f32", "v_sqrt_f32", "v_sin_f32", "v_cos_f32")

def parse(ln):
    ln = ln.split(";")[0].strip()
    if not ln or ln.endswith(":") or ln.startswith("."):
        return None
    parts = ln.split(None, 1)
    op = parts[0]
    rest = parts[1] if len(parts) > 1 else ""
    ops, depth, cur = [], 0, ""
    for ch in rest:
        if ch == "[": depth += 1
        if ch == "]": depth -= 1
        if ch == "," and depth == 0:
            ops.append(cur.strip()); cur = ""
        else:
            cur += ch
    if cur.strip(): ops.append(cur.strip())
    mods = ""
    if ops:
        last = ops[-1].split(None, 1)
        ops[-1] = last[0]
        mods = last[1] if len(last) > 1 else ""
    d = dict(op=op, ops=ops, mods=mods, w=[], r=[], cls="other", text=ln)
    R = [regs(o) for o in ops]
    flat = lambda xs: [x for y in xs for x in y]
    if op.startswith("v_mfma"):
        d["cls"] = "mfma"; d["w"] = R[0]; d["r"] = flat(R[1:]); d["ab"] = flat(R[1:3]); d["c"] = R[3]
        d["passes"] = 8 if "32x32" in op else 4
        if op.endswith("_f32") and "x4_f32" in op: d["passes"] = 8
    elif op.startswith("v_cmp"):
        d["cls"] = "valu"; d["w"] = R[0]; d["r"] = flat(R[1:])
    elif op.startswith("v_permlane"):
        d["cls"] = "valu"; d["w"] = flat(R); d["r"] = flat(R); d["permlane"] = True
    elif op.startswith("v_readfirstlane") or op.startswith("v_readlane"):
        d["cls"] = "valu"; d["w"] = R[0]; d["r"] = flat(R[1:]); d["readlane"] = True
    elif op.startswith("v_"):
        d["cls"] = "valu"; d["w"] = R[0]; d["r"] = flat(R[1:])
        if op.startswith("v_fmac") or "dpp" in op: d["r"] = d["r"] + (R[0] if op.startswith("v_fmac") else [])
        if op.startswith(TRANS): d["trans"] = True
        if "dpp" in op or "row_" in mods or "quad_perm" in mods: d["dpp"] = True
    elif op.startswith("buffer_load") or op.startswith("global_load"):
        d["cls"] = "vmem"
        if "lds" in mods.split():
            d["r"] = flat(R)
        else:
            d["w"] = R[0]; d["r"] = flat(R[1:])
    elif op.startswith("buffer_store") or op.startswith("global_store") or op.startswith("buffer_atomic") or op.startswith("global_atomic"):
        d["cls"] = "vmem"; d["r"] = flat(R)
        if "x4" in op or "x3" in op:
            d["wide_data"] = R[0] if op.startswith("buffer") else R[1]
    elif op.startswith("ds_read"):
        d["cls"] = "ds"; d["w"] = R[0]; d["r"] = flat(R[1:])
    elif op.startswith("ds_"):
        d["cls"] = "ds"; d["r"] = flat(R)
        if "rtn" in op or "permute" in op or "swizzle" in op:
            d["w"] = R[0]; d["r"] = flat(R[1:])
    elif op.startswith("s_"):
        d["cls"] = "salu"
        if op.startswith(("s_cmp", "s_waitcnt", "s_nop", "s_barrier", "s_branch", "s_cbranch", "s_sleep", "s_setprio", "s_endpgm", "s_bitcmp")):
            d["r"] = flat(R)
        else:
            d["w"] = R[0] if R else []; d["r"] = flat(R[1:])
    return d

def check_hazards(lines):
    ins = [p for p in (parse(l) for l in lines) if p]
    states = []
    for p in ins:
        if p["op"] == "s_nop": states.append(int(p["ops"][0], 0) + 1)
        else: states.append(1)
    msgs = []
    for i, c in enumerate(ins):
        dist = 0
        j = i - 1
        while j >= 0 and dist < 20:
            p = ins[j]
            need = 0
            pw = set(p["w"]); cr = set(c["r"]); cw = set(c["w"])
            vw = {x for x in pw if x[0] in "va"}
            sw = {x for x in pw if x[0] == "s"}
            if p["cls"] == "valu":
                if c["cls"] == "mfma" and vw & cr: need = max(need, 2)
                if c.get("dpp") and vw & cr: need = max(need, 2)
                if c.get("permlane") and vw & cr: need = max(need, 2)
                if c.get("readlane") and vw & cr: need = max(need, 1)
                if p.get("trans") and c["cls"] == "valu" and not c.get("trans") and vw & cr: need = max(need, 1)
                if p.get("trans") and c["cls"] in ("ds", "vmem") and vw & cr: need = max(need, 1)
                if sw & cr and c["cls"] == "vmem": need = max(need, 5)
                if sw & cr and c["cls"] == "valu": need = max(need, 2)
            if p["cls"] == "mfma":
                n = p["passes"]
                if c["cls"] == "mfma":
                    if vw & set(c["ab"]): need = max(need, {4: 8, 8: 12}[n])
                    if vw & set(c["c"]) and not (c["c"] == p["w"] and c["op"] == p["op"]): need = max(need, {4: 6, 8: 10}[n])
                elif c["cls"] in ("valu", "vmem", "ds"):
                    if vw & (cr | cw): need = max(need, {4: 8, 8: 12}[n])
                    if c["cls"] == "valu" and set(p["c"]) & cw: need = max(need, {4: 3, 8: 7}[n])
            if p.get("wide_data") and set(p["wide_data"]) & cw:
                need = max(need, 2)
            if p["cls"] == "salu" and ("s", "m0") in pw and c["cls"] == "vmem" and "lds" in c["mods"].split():
                need = max(need, 1)
            if need > dist:
                msgs.append(f"hazard: need {need} have {dist}: [{p['text']}] -> [{c['text']}]")
            dist += states[j]
            j -= 1
    return msgs
```

```python
import sys, struct, math
from asmlib import Asm, check_hazards

NAME = "concat_heads__gqa_block_cached__sliding_block_cached__decode_kernel"
REF = "concat_heads__gqa_block_cached__sliding_block_cached__decode.s.ref"

WS_Q   = 0x10000
WS_ML  = 0x20000
WS_H1  = 0x100000
WS_H2  = 0x300000
WS_ST  = 0x500000
WS_USED = 0x600000
L_QP = 0
L_QS = L_QP + 2048
L_ML = L_QS + 4096
L_OA = L_ML + 1024
L_FP = L_OA + 128
L_OP = 8192
assert L_FP + 512 <= L_OP
L_END = L_OP + 65536

def f32bits(x):
    return struct.unpack("<I", struct.pack("<f", x))[0]

def gen(stamps=False, opt=None):
    o = dict(bar1=True, spin=400000, ld="nt", hs="sc1", hl="sc1", prio0=True, sleep=1)
    if opt: o.update(opt)
    LD, HS, HL = o["ld"], o["hs"], o["hl"]
    A = Asm()
    hdr = [l.rstrip("\n") for l in open(REF) if l.startswith(";") and "@launch" not in l and "Override" not in l and "grid=ceil" not in l]
    for l in hdr: A(l)
    A(f"; @launch grid=(256,1,1) block=(512,1,1) lds={L_END}")
    A('.amdgcn_target "amdgcn-amd-amdhsa--gfx950"')
    A(".text")
    A(f".globl {NAME}")
    A(".p2align 8")
    A(f".type {NAME},@function")
    A(f"{NAME}:")

    SX, SWQ, SKA, SVA, SKB, SVB, SWO, SWS, SOUT = 4, 8, 12, 16, 20, 24, 28, 32, 36
    sW, sB, sKVH, sSP, sO, sKA0, sT, sCNT = "s40", "s41", "s42", "s43", "s44", "s45", "s46", "s47"
    sLO, sHI, sXA, sXB, sC = "s48", "s49", "s50", "s51", "s52"
    sTI = ["s53", "s54", "s55", "s56"]
    sO2, sT1, sT2 = "s57", "s58", "s59"
    srd = lambda b: f"s[{b}:{b+3}]"
    nst = [0]
    def stamp():
        if stamps:
            k = nst[0]; nst[0] += 1
            assert k < 16
            A(f"s_memrealtime s[{62+2*k}:{63+2*k}]") if k > 0 else A("s_memrealtime s[60:61]")
    def v(b, n=1):
        return f"v{b}" if n == 1 else f"v[{b}:{b+n-1}]"
    def setexec(lo, hi):
        if lo == hi == 0xffffffff:
            A("s_mov_b64 exec, -1")
        else:
            A(f"s_mov_b32 exec_lo, {lo:#x}"); A(f"s_mov_b32 exec_hi, {hi:#x}")
    DPP = "row_mask:0xf bank_mask:0xf"

    stamp()
    A("s_cmp_ge_u32 s2, 256")
    A("s_cbranch_scc1 L_end")
    A("s_load_dwordx16 s[64:79], s[0:1], 0")
    A("s_load_dwordx8 s[80:87], s[0:1], 64")
    A("s_load_dwordx2 s[88:89], s[0:1], 96")
    A("v_lshrrev_b32 v1, 6, v0")
    A("v_and_b32 v0, 63, v0")
    A(f"v_readfirstlane_b32 {sW}, v1")
    A(f"s_and_b32 {sB}, s2, 1")
    A(f"s_bfe_u32 {sKVH}, s2, 0x20001")
    A(f"s_lshr_b32 {sSP}, s2, 3")
    A("v_lshrrev_b32 v9, 2, v0")
    A("v_and_b32 v10, 3, v0")
    A("v_lshlrev_b32 v10, 4, v10")
    A("v_lshl_or_b32 v3, v9, 16, v10")
    A("v_and_b32 v9, 1, v9")
    A("v_lshl_or_b32 v11, v9, 11, v10")
    A("v_lshrrev_b32 v12, 4, v0")
    A("v_lshl_or_b32 v11, v12, 6, v11")
    A(f"s_lshl_b32 {sO}, {sW}, 20")
    A(f"s_lshl_b32 {sT1}, {sKVH}, 11")
    A(f"s_lshl_b32 {sT2}, {sSP}, 6")
    A(f"s_add_u32 {sO}, {sO}, {sT1}")
    A(f"s_add_u32 {sO}, {sO}, {sT2}")
    A(f"s_lshl_b32 {sO2}, {sW}, 8")
    A(f"s_mov_b32 s{SX+2}, 4096")
    A(f"s_mov_b32 s{SX+3}, 0x20000")
    A(f"s_mov_b32 s{SWQ+2}, 0x800000")
    A(f"s_mov_b32 s{SWQ+3}, 0x20000")
    A(f"s_cmp_eq_u32 {sB}, 0")
    A("s_waitcnt lgkmcnt(0)")
    A(f"s_cselect_b64 s[{SX}:{SX+1}], s[64:65], s[74:75]")
    A(f"s_cselect_b64 s[{SWQ}:{SWQ+1}], s[70:71], s[80:81]")
    A(f"s_cselect_b64 s[{SWO}:{SWO+1}], s[72:73], s[82:83]")
    A(f"buffer_load_dwordx4 v[4:7], v11, {srd(SX)}, {sO2} offen")
    for i in range(8):
        A(f"buffer_load_dwordx4 {v(64+4*i,4)}, v3, {srd(SWQ)}, {sO} offen {LD}")
        if i < 7: A(f"s_add_u32 {sO}, {sO}, 8192")
    A(f"s_load_dword {sT}, s[88:89], 0")
    for b, p, n in ((SKA, 66, 0x4000000), (SVA, 68, 0x4000000), (SKB, 76, 0x4000000), (SVB, 78, 0x4000000),
                    (SWS, 88, WS_USED), (SOUT, 84, 8192)):
        A(f"s_mov_b64 s[{b}:{b+1}], s[{p}:{p+1}]")
        A(f"s_mov_b32 s{b+2}, {n:#x}")
        A(f"s_mov_b32 s{b+3}, 0x20000")
    A(f"s_mov_b32 s{SWO+2}, 0x800000")
    A(f"s_mov_b32 s{SWO+3}, 0x20000")
    A("v_lshlrev_b32 v2, 4, v0")
    A("v_bfe_u32 v9, v0, 1, 1")
    A("v_lshlrev_b32 v1, 4, v12")
    A("v_lshl_or_b32 v1, v9, 10, v1")
    A("v_bfe_u32 v9, v0, 2, 2")
    A("v_lshl_or_b32 v1, v9, 8, v1")
    A("v_and_b32 v9, 1, v0")
    A("v_lshl_or_b32 v1, v9, 6, v1")
    A(f"s_lshl_b32 {sT1}, {sB}, 2")
    A(f"s_add_u32 {sT1}, {sT1}, {sKVH}")
    A(f"s_lshl_b32 {sT1}, {sT1}, 23")
    A(f"s_lshl_b32 {sT2}, {sSP}, 3")
    A(f"s_add_u32 {sT2}, {sT2}, {sW}")
    A(f"s_lshl_b32 {sKA0}, {sT2}, 15")
    A(f"s_add_u32 {sKA0}, {sKA0}, {sT1}")
    A(f"s_lshl_b32 {sO}, {sT2}, 12")
    A(f"s_add_u32 {sO}, {sO}, {sT1}")
    A(f"s_add_u32 {sO}, {sO}, {28672*256}")
    if o["bar1"]: A("s_barrier")
    KOFF = [0, 128, 2048, 2176]
    for i in range(4):
        A(f"buffer_load_dwordx4 {v(96+4*i,4)}, v1, {srd(SKB)}, {sO} offen offset:{KOFF[i]} {LD}")
    for i in range(4):
        A(f"buffer_load_dwordx4 {v(112+4*i,4)}, v2, {srd(SVB)}, {sO} offen offset:{1024*i} {LD}")
    A(f"s_mov_b32 {sLO}, 0x05040100")
    A(f"s_mov_b32 {sHI}, 0x07060302")
    A(f"s_mov_b32 {sXA}, 0x0c0c0400")
    A(f"s_mov_b32 {sXB}, 0x04000c0c")
    A(f"s_mov_b32 {sC}, {f32bits(128**-0.5 * math.log2(math.e)):#x}")
    for k in range(4): A(f"s_mov_b32 {sTI[k]}, {0x07060500+k:#x}")
    A("s_waitcnt lgkmcnt(0)")
    A(f"s_mul_i32 {sT}, {sT}, 0x9e3779b1")
    A(f"s_add_u32 {sT}, {sT}, 0x7f4a7c15")
    A(f"v_mov_b32 v8, {sT}")
    stamp()

    def transpose_mfma(src, acc, other, first, tmp, a_is_tile, nrows=8):
        nt = nrows // 2
        op = "v_mfma_f32_16x16x32_bf16" if nrows == 8 else "v_mfma_f32_16x16x16_bf16"
        def perms(e):
            t = tmp + 4 * (e % 4)
            for k in range(nt):
                A(f"v_perm_b32 {v(t+k)}, {v(src+4*(2*k+1)+(e>>1))}, {v(src+4*(2*k)+(e>>1))}, {sHI if e & 1 else sLO}")
        def mfma(e):
            t = v(tmp + 4 * (e % 4), nt)
            c = "0" if first else v(acc+4*e, 4)
            a, b = (t, other) if a_is_tile else (other, t)
            A(f"{op} {v(acc+4*e,4)}, {a}, {b}, {c}")
        perms(0)
        for e in range(8):
            if e < 7: perms(e+1)
            else: A("s_nop 1")
            mfma(e)

    A("s_waitcnt vmcnt(8)")
    stamp()
    transpose_mfma(64, 32, "v[4:7]", True, 128, False)
    A("v_and_b32 v9, 15, v0")
    A("v_lshlrev_b32 v9, 5, v9")
    A("v_lshl_or_b32 v9, v12, 7, v9")
    A(f"s_lshl_b32 {sT1}, {sW}, 8")
    A(f"v_add_u32 v9, {sT1}, v9")
    A("s_nop 2")
    for e in range(8): A(f"v_add_f32_dpp {v(64+e)}, {v(33+4*e)}, {v(32+4*e)} row_shl:4 {DPP}")
    for e in range(8): A(f"v_add_f32_dpp {v(64+e)}, {v(34+4*e)}, {v(64+e)} row_shl:8 {DPP}")
    for e in range(8): A(f"v_add_f32_dpp {v(64+e)}, {v(35+4*e)}, {v(64+e)} row_shl:12 {DPP}")
    setexec(0x000f000f, 0)
    A(f"ds_write_b128 v9, v[64:67] offset:{L_QP}")
    A(f"ds_write_b128 v9, v[68:71] offset:{L_QP+16}")
    setexec(0xffffffff, 0xffffffff)
    A("s_waitcnt lgkmcnt(0)")
    A("s_barrier")
    stamp()

    def issue_KA():
        A(f"s_mov_b32 {sO}, {sKA0}")
        for i in range(32):
            if i and i % 4 == 0: A(f"s_add_u32 {sO}, {sO}, 4096")
            A(f"buffer_load_dwordx4 {v(128+4*i,4)}, v1, {srd(SKA)}, {sO} offen offset:{KOFF[i%4]} {LD}")

    def tagcheck(d, t0, t1, dst):
        A(f"v_perm_b32 {v(t0)}, {v(d+1)}, {v(d)}, {sXA}")
        A(f"v_perm_b32 {v(t1)}, {v(d+3)}, {v(d+2)}, {sXB}")
        A(f"v_or_b32 {v(t0)}, {v(t0)}, {v(t1)}")
        A(f"v_cmp_ne_u32 {dst}, {sT}, {v(t0)}")
    def spin_tail(label, done):
        A(f"s_cbranch_scc1 {done}")
        A(f"s_sub_u32 {sCNT}, {sCNT}, 1")
        A(f"s_cbranch_scc1 {done}")
        if o["sleep"]: A(f"s_sleep {o['sleep']}")
        A(f"s_branch {label}")
        A(f"{done}:")

    A(f"s_cmp_eq_u32 {sW}, 0")
    A("s_cbranch_scc1 L_w0")
    issue_KA()
    A("s_branch L_qbar")
    A("L_w0:")
    if o["prio0"]: A("s_setprio 3")
    for w in range(8): A(f"ds_read_b128 {v(128+4*w,4)}, v2 offset:{L_QP+256*w}")
    A("v_lshrrev_b32 v9, 3, v0")
    A("v_and_b32 v10, 7, v0")
    A("v_lshlrev_b32 v10, 4, v10")
    A("v_lshl_or_b32 v9, v9, 12, v10")
    A(f"s_lshl_b32 {sT1}, {sB}, 2")
    A(f"s_add_u32 {sT1}, {sT1}, {sKVH}")
    A(f"s_lshl_b32 {sT1}, {sT1}, 13")
    A(f"s_lshl_b32 {sT2}, {sSP}, 7")
    A(f"s_add_u32 {sT1}, {sT1}, {sT2}")
    A(f"s_add_u32 {sO}, {sT1}, {WS_Q}")
    A("s_waitcnt lgkmcnt(0)")
    for w in range(1, 8):
        for k in range(4): A(f"v_add_f32 {v(128+k)}, {v(128+k)}, {v(128+4*w+k)}")
    A("v_cvt_pk_bf16_f32 v132, v128, v129")
    A("v_cvt_pk_bf16_f32 v133, v130, v131")
    A("v_lshlrev_b32 v128, 16, v132")
    A("v_lshlrev_b32 v130, 16, v133")
    A("v_and_b32 v129, 0xffff0000, v132")
    A("v_and_b32 v131, 0xffff0000, v133")
    for k in range(4): A(f"v_perm_b32 {v(128+k)}, {v(128+k)}, v8, {sTI[k]}")
    setexec(0xffff, 0)
    A(f"buffer_store_dwordx4 v[128:131], v9, {srd(SWS)}, {sO} offen {HS}")
    setexec(0xffffffff, 0xffffffff)
    stamp()
    A(f"s_lshl_b32 {sT1}, {sKVH}, 1")
    A(f"s_add_u32 {sT1}, {sT1}, {sB}")
    A(f"s_lshl_b32 {sT1}, {sT1}, 12")
    A(f"s_add_u32 {sO}, {sT1}, {WS_Q}")
    A(f"s_add_u32 {sO2}, {sO}, {8*4096}")
    A(f"s_mov_b32 {sCNT}, {o['spin']}")
    A("L_qpoll:")
    for i in range(8):
        A(f"buffer_load_dwordx4 {v(136+4*i,4)}, v2, {srd(SWS)}, {sO if i < 4 else sO2} offen offset:{1024*(i%4)} {HL}")
    A("s_waitcnt vmcnt(0)")
    tagcheck(136, 9, 10, "vcc")
    for i in range(1, 8):
        tagcheck(136+4*i, 9, 10, "s[90:91]")
        A("s_or_b64 vcc, vcc, s[90:91]")
    A("s_cmp_eq_u64 vcc, 0")
    spin_tail("L_qpoll", "L_qdone")
    if stamps: A(f"s_mov_b32 s94, {sCNT}")
    A("v_lshlrev_b32 v9, 3, v0")
    for i in range(8):
        d = 136+4*i
        A(f"v_perm_b32 {v(d)}, {v(d+1)}, {v(d)}, {sHI}")
        A(f"v_perm_b32 {v(d+1)}, {v(d+3)}, {v(d+2)}, {sHI}")
        A(f"ds_write_b64 v9, {v(d,2)} offset:{L_QS+512*i}")
    A("s_waitcnt lgkmcnt(0)")
    if o["prio0"]: A("s_setprio 0")
    A("L_qbar:")
    if stamps and True:
        pass
    A("s_barrier")
    A(f"s_cmp_lg_u32 {sW}, 0")
    A("s_cbranch_scc1 L_kissued")
    issue_KA()
    A("L_kissued:")
    nst[0] = 5
    stamp()
    A("v_and_b32 v9, 7, v0")
    A("v_lshlrev_b32 v9, 8, v9")
    A("v_lshl_or_b32 v9, v12, 4, v9")
    A("v_bfe_u32 v10, v0, 3, 1")
    A("v_lshl_or_b32 v9, v10, 6, v9")
    A(f"ds_read_b128 v[48:51], v9 offset:{L_QS}")
    A(f"ds_read_b128 v[52:55], v9 offset:{L_QS+128}")
    A(f"ds_read_b128 v[56:59], v9 offset:{L_QS+2048}")
    A(f"ds_read_b128 v[60:63], v9 offset:{L_QS+2048+128}")
    A("s_waitcnt vmcnt(32) lgkmcnt(0)")
    M32 = "v_mfma_f32_16x16x32_bf16"
    for g in range(2): A(f"{M32} {v(32+4*g,4)}, {v(96+8*g,4)}, v[56:59], 0")
    for g in range(2): A(f"{M32} {v(32+4*g,4)}, {v(100+8*g,4)}, v[60:63], {v(32+4*g,4)}")
    A("s_nop 7")
    for g in range(2):
        for a in range(2):
            A(f"v_add_f32_dpp {v(16+2*g+a)}, {v(32+4*g+2*a+1)}, {v(32+4*g+2*a)} row_ror:8 {DPP}")
    A(f"s_mov_b32 {sO}, {sKA0}")
    for t in range(4):
        kb = 128 + 32*t
        A("s_waitcnt vmcnt(24)")
        for g in range(4): A(f"{M32} {v(32+4*g,4)}, {v(kb+8*g,4)}, v[48:51], 0")
        for g in range(4): A(f"{M32} {v(32+4*g,4)}, {v(kb+8*g+4,4)}, v[52:55], {v(32+4*g,4)}")
        for i in range(8):
            A(f"buffer_load_dwordx4 {v(kb+4*i,4)}, v2, {srd(SVA)}, {sO} offen offset:{1024*(i%4)} {LD}")
            if i % 4 == 3: A(f"s_add_u32 {sO}, {sO}, 4096")
        for g in range(4):
            for a in range(2):
                A(f"v_add_f32_dpp {v(64+8*t+2*g+a)}, {v(32+4*g+2*a+1)}, {v(32+4*g+2*a)} row_ror:8 {DPP}")
    stamp()
    A("v_max3_f32 v22, v64, v65, v66")
    A("v_max3_f32 v23, v16, v17, v18")
    A("v_max3_f32 v26, v67, v68, v69")
    A("v_max_f32 v23, v23, v19")
    regs_left = list(range(70, 96))
    k = 0
    while regs_left:
        dst = 22 if k % 2 == 0 else 26
        a, b = regs_left.pop(0), regs_left.pop(0)
        A(f"v_max3_f32 {v(dst)}, {v(dst)}, {v(a)}, {v(b)}")
        k += 1
    A("v_max_f32 v22, v22, v26")
    def butterfly(op, x, y, tx, ty):
        for sw in ("v_permlane16_swap_b32", "v_permlane32_swap_b32"):
            A(f"v_mov_b32 {v(ty)}, {v(y)}")
            A(f"v_mov_b32 {v(tx)}, {v(x)}")
            A("s_nop 1")
            A(f"{sw} {v(y)}, {v(ty)}")
            A(f"{sw} {v(x)}, {v(tx)}")
            A(f"{op} {v(y)}, {v(y)}, {v(ty)}")
            A(f"{op} {v(x)}, {v(x)}, {v(tx)}")
    butterfly("v_max_f32", 22, 23, 26, 27)
    A(f"v_mul_f32 v22, {sC}, v22")
    A(f"v_mul_f32 v23, {sC}, v23")
    for i in range(4): A(f"v_fma_f32 {v(16+i)}, {v(16+i)}, {sC}, -v23")
    for i in range(32): A(f"v_fma_f32 {v(64+i)}, {v(64+i)}, {sC}, -v22")
    for i in range(4): A(f"v_exp_f32 {v(16+i)}, {v(16+i)}")
    for i in range(32): A(f"v_exp_f32 {v(64+i)}, {v(64+i)}")
    A("v_add_f32 v25, v16, v17")
    A("v_add_f32 v27, v18, v19")
    A("v_add_f32 v24, v64, v65")
    A("v_add_f32 v26, v66, v67")
    A("v_add_f32 v25, v25, v27")
    for i in range(68, 96, 2):
        A(f"v_add_f32 v24, v24, {v(i)}")
        A(f"v_add_f32 v26, v26, {v(i+1)}")
    A("v_add_f32 v24, v24, v26")
    A("v_cvt_pk_bf16_f32 v20, v16, v17")
    A("v_cvt_pk_bf16_f32 v21, v18, v19")
    for k in range(16): A(f"v_cvt_pk_bf16_f32 {v(64+k)}, {v(64+2*k)}, {v(65+2*k)}")
    butterfly("v_add_f32", 24, 25, 26, 27)
    A(f"s_lshl_b32 {sT1}, {sW}, 2")
    A("v_lshlrev_b32 v9, 5, v0")
    A(f"v_add_u32 v9, {sT1}, v9")
    setexec(0xff, 0)
    A(f"ds_write_b32 v9, v22 offset:{L_ML}")
    A(f"ds_write_b32 v9, v24 offset:{L_ML+256}")
    A(f"ds_write_b32 v9, v23 offset:{L_ML+512}")
    A(f"ds_write_b32 v9, v25 offset:{L_ML+768}")
    setexec(0xffffffff, 0xffffffff)
    A("v_and_b32 v9, 7, v0")
    A("v_lshlrev_b32 v28, 4, v9")
    A("v_lshl_or_b32 v28, v9, 9, v28")
    A("v_lshl_or_b32 v28, v12, 7, v28")
    A(f"s_lshl_b32 {sT1}, {sW}, 12")
    A(f"v_add_u32 v28, {sT1}, v28")
    def write_O(br):
        setexec(0x00ff00ff, 0x00ff00ff)
        for e in range(8):
            if e == 0:
                A(f"ds_write_b128 v28, v[32:35] offset:{L_OP+32768*br}")
            else:
                A(f"v_xor_b32 {v(29+(e&1))}, {16*e}, v28")
                A(f"ds_write_b128 {v(29+(e&1))}, {v(32+4*e,4)} offset:{L_OP+32768*br}")
        setexec(0xffffffff, 0xffffffff)
    transpose_mfma(112, 32, "v[20:21]", True, 80, True, nrows=4)
    A("v_and_b32 v9, 15, v0")
    A("v_lshlrev_b32 v9, 4, v9")
    A("v_lshl_or_b32 v9, v12, 14, v9")
    A(f"s_lshl_b32 {sT1}, {sKVH}, 5")
    A(f"s_add_u32 {sT1}, {sT1}, {sSP}")
    A(f"s_lshl_b32 {sO}, {sT1}, 16")
    A(f"s_lshl_b32 {sT2}, {sW}, 8")
    A(f"s_add_u32 {sO}, {sO}, {sT2}")
    for i in range(8):
        A(f"buffer_load_dwordx4 {v(96+4*i,4)}, v9, {srd(SWO)}, {sO} offen offset:{2048*(i&1)} {LD}")
        if i & 1 and i < 7: A(f"s_add_u32 {sO}, {sO}, 4096")
    write_O(1)
    stamp()
    for t in range(4):
        A(f"s_waitcnt vmcnt({32-8*t})")
        if t == 3: stamp()
        transpose_mfma(128+32*t, 32, v(64+4*t, 4), t == 0, 80, True)
    A(f"s_and_b32 {sT1}, {sW}, 3")
    A(f"s_lshl_b32 {sT1}, {sT1}, 6")
    A(f"v_add_u32 v9, {sT1}, v0")
    A("v_lshrrev_b32 v10, 5, v9")
    A("v_lshrrev_b32 v11, 3, v9")
    A("v_and_b32 v13, 7, v0")
    A("v_xor_b32 v14, v13, v10")
    A("v_lshlrev_b32 v14, 4, v14")
    write_O(0)
    A("v_lshl_or_b32 v14, v11, 7, v14")
    A(f"s_lshr_b32 {sT2}, {sW}, 2")
    A(f"s_lshl_b32 {sT1}, {sT2}, 15")
    A(f"v_add_u32 v14, {sT1}, v14")
    A(f"s_lshl_b32 {sT1}, {sT2}, 9")
    A("v_lshlrev_b32 v15, 5, v10")
    A(f"v_add_u32 v15, {sT1}, v15")
    A("v_lshlrev_b32 v13, 4, v13")
    A("v_lshl_or_b32 v11, v11, 13, v13")
    A("v_lshlrev_b32 v10, 10, v10")
    A(f"s_lshl_b32 {sT2}, {sT2}, 2")
    A(f"s_add_u32 {sT2}, {sT2}, {sKVH}")
    A(f"s_lshl_b32 {sT1}, {sB}, 5")
    A(f"s_add_u32 {sT1}, {sT1}, {sSP}")
    A(f"s_lshl_b32 {sO}, {sT2}, 18")
    A(f"s_lshl_b32 {sO2}, {sT1}, 7")
    A(f"s_add_u32 {sO}, {sO}, {sO2}")
    A(f"s_add_u32 {sO}, {sO}, {WS_H1}")
    A(f"s_lshl_b32 {sO2}, {sT2}, 13")
    A(f"s_lshl_b32 {sT1}, {sT1}, 4")
    A(f"s_add_u32 {sO2}, {sO2}, {sT1}")
    A(f"s_add_u32 {sO2}, {sO2}, {WS_ML}")
    A("s_waitcnt lgkmcnt(0)")
    A("s_barrier")
    stamp()
    A(f"ds_read_b128 v[128:131], v15 offset:{L_ML}")
    A(f"ds_read_b128 v[132:135], v15 offset:{L_ML+16}")
    for w in range(8): A(f"ds_read_b128 {v(160+4*w,4)}, v14 offset:{L_OP+4096*w}")
    A(f"ds_read_b128 v[136:139], v15 offset:{L_ML+256}")
    A(f"ds_read_b128 v[140:143], v15 offset:{L_ML+256+16}")
    A("s_waitcnt lgkmcnt(10)")
    A("v_max3_f32 v144, v128, v129, v130")
    A("v_max3_f32 v145, v131, v132, v133")
    A("v_max3_f32 v144, v144, v134, v135")
    A("v_max_f32 v144, v144, v145")
    for w in range(8): A(f"v_sub_f32 {v(128+w)}, {v(128+w)}, v144")
    for w in range(8): A(f"v_exp_f32 {v(128+w)}, {v(128+w)}")
    A("s_waitcnt lgkmcnt(9)")
    for k in range(4): A(f"v_mul_f32 {v(148+k)}, v128, {v(160+k)}")
    for w in range(1, 8):
        A(f"s_waitcnt lgkmcnt({9-w})")
        for k in range(4): A(f"v_fmac_f32 {v(148+k)}, {v(128+w)}, {v(160+4*w+k)}")
    for k in range(4): A(f"v_perm_b32 {v(148+k)}, {v(148+k)}, v8, {sTI[k]}")
    A(f"buffer_store_dwordx4 v[148:151], v11, {srd(SWS)}, {sO} offen {HS}")
    A("s_waitcnt lgkmcnt(0)")
    A("v_mul_f32 v145, v128, v136")
    for w in range(1, 8): A(f"v_fmac_f32 v145, {v(128+w)}, {v(136+w)}")
    A("v_mov_b32 v146, v8")
    A("v_mov_b32 v147, v8")
    setexec(1, 1)
    A(f"buffer_store_dwordx4 v[144:147], v10, {srd(SWS)}, {sO2} offen {HS}")
    setexec(0xffffffff, 0xffffffff)
    stamp()
    A("v_lshrrev_b32 v9, 1, v0")
    A("v_and_b32 v10, 1, v0")
    A("v_lshlrev_b32 v10, 4, v10")
    A("v_lshl_or_b32 v10, v9, 7, v10")
    A("v_lshlrev_b32 v9, 4, v9")
    A(f"s_lshl_b32 {sT2}, {sB}, 2")
    A(f"s_add_u32 {sT2}, {sT2}, {sKVH}")
    A(f"s_lshl_b32 {sO}, {sT2}, 5")
    A(f"s_add_u32 {sO}, {sO}, {sSP}")
    A(f"s_lshl_b32 {sO}, {sO}, 13")
    A(f"s_lshr_b32 {sT1}, {sW}, 2")
    A(f"s_lshl_b32 {sO2}, {sT1}, 12")
    A(f"s_add_u32 {sO}, {sO}, {sO2}")
    A(f"s_and_b32 {sO2}, {sW}, 3")
    A(f"s_lshl_b32 {sO2}, {sO2}, 5")
    A(f"s_add_u32 {sO}, {sO}, {sO2}")
    A(f"s_add_u32 {sO}, {sO}, {WS_H1}")
    A(f"s_lshl_b32 {sT2}, {sT2}, 3")
    A(f"s_lshr_b32 {sO2}, {sSP}, 2")
    A(f"s_add_u32 {sT2}, {sT2}, {sO2}")
    A(f"s_lshl_b32 {sT2}, {sT2}, 10")
    A(f"s_lshl_b32 {sO2}, {sT1}, 9")
    A(f"s_add_u32 {sO2}, {sO2}, {sT2}")
    A(f"s_add_u32 {sO2}, {sO2}, {WS_ML}")
    A(f"buffer_load_dwordx4 v[16:19], v9, {srd(SWS)}, {sO2} offen {HL}")
    A(f"buffer_load_dwordx4 v[20:23], v10, {srd(SWS)}, {sO} offen {HL}")
    A("s_waitcnt vmcnt(4)")
    stamp()
    for e in range(8):
        for k in range(4):
            A(f"v_perm_b32 {v(192+4*e+k)}, {v(96+4*(2*k+1)+(e>>1))}, {v(96+4*(2*k)+(e>>1))}, {sHI if e & 1 else sLO}")
    A(f"s_lshl_b32 {sT1}, {sT1}, 6")
    A(f"s_and_b32 {sT2}, {sW}, 3")
    A(f"s_lshl_b32 {sT2}, {sT2}, 2")
    A(f"s_add_u32 {sT1}, {sT1}, {sT2}")
    A("v_and_b32 v13, 1, v0")
    A("v_lshlrev_b32 v13, 1, v13")
    A("v_lshl_or_b32 v13, v12, 4, v13")
    A(f"v_add_u32 v13, {sT1}, v13")
    A("v_bfe_u32 v14, v0, 2, 1")
    A("v_lshlrev_b32 v14, 6, v14")
    A("v_lshl_or_b32 v14, v12, 4, v14")
    A(f"s_mov_b32 {sCNT}, {o['spin']}")
    A("s_waitcnt vmcnt(1)")
    A("L_mlpoll:")
    A(f"v_cmp_ne_u32 vcc, {sT}, v18")
    A("s_cmp_eq_u64 vcc, 0")
    A("s_cbranch_scc1 L_mldone")
    A(f"s_sub_u32 {sCNT}, {sCNT}, 1")
    A("s_cbranch_scc1 L_mldone")
    if o["sleep"]: A(f"s_sleep {o['sleep']}")
    A(f"buffer_load_dwordx4 v[16:19], v9, {srd(SWS)}, {sO2} offen {HL}")
    A("s_waitcnt vmcnt(0)")
    A("s_branch L_mlpoll")
    A("L_mldone:")
    def allreduce32(op, x, t):
        A("s_nop 1")
        A(f"{op}_dpp {v(x)}, {v(x)}, {v(x)} quad_perm:[2,3,0,1] {DPP}")
        A("s_nop 1")
        A(f"{op}_dpp {v(x)}, {v(x)}, {v(x)} row_ror:4 {DPP}")
        A("s_nop 1")
        A(f"{op}_dpp {v(x)}, {v(x)}, {v(x)} row_ror:8 {DPP}")
        for sw in ("v_permlane16_swap_b32", "v_permlane32_swap_b32"):
            A(f"v_mov_b32 {v(t)}, {v(x)}")
            A("s_nop 1")
            A(f"{sw} {v(x)}, {v(t)}")
            A(f"{op} {v(x)}, {v(x)}, {v(t)}")
    A("v_mov_b32 v24, v16")
    allreduce32("v_max_f32", 24, 25)
    A("v_sub_f32 v24, v16, v24")
    A("v_exp_f32 v24, v24")
    A("s_nop 0")
    A("v_mul_f32 v26, v24, v17")
    allreduce32("v_add_f32", 26, 25)
    A("v_rcp_f32 v26, v26")
    A("s_nop 0")
    A("v_mul_f32 v24, v24, v26")
    if stamps: A(f"s_mov_b32 s95, {sCNT}")
    A(f"s_mov_b32 {sCNT}, {o['spin']}")
    A("s_waitcnt vmcnt(0)")
    A("L_opoll:")
    tagcheck(20, 25, 26, "vcc")
    A("s_cmp_eq_u64 vcc, 0")
    A("s_cbranch_scc1 L_odone")
    A(f"s_sub_u32 {sCNT}, {sCNT}, 1")
    A("s_cbranch_scc1 L_odone")
    if o["sleep"]: A(f"s_sleep {o['sleep']}")
    A(f"buffer_load_dwordx4 v[20:23], v10, {srd(SWS)}, {sO} offen {HL}")
    A("s_waitcnt vmcnt(0)")
    A("s_branch L_opoll")
    A("L_odone:")
    stamp()
    if stamps: A(f"s_mov_b32 s96, {sCNT}")
    for k in range(4): A(f"v_mul_f32 {v(20+k)}, v24, {v(20+k)}")
    def fold4(d):
        A("s_nop 0")
        A(f"v_permlane16_swap_b32 {v(d)}, {v(d+1)}")
        A(f"v_permlane16_swap_b32 {v(d+2)}, {v(d+3)}")
        A(f"v_add_f32 {v(d)}, {v(d)}, {v(d+1)}")
        A(f"v_add_f32 {v(d+2)}, {v(d+2)}, {v(d+3)}")
        A("s_nop 1")
        A(f"v_permlane32_swap_b32 {v(d)}, {v(d+2)}")
        A(f"v_add_f32 {v(d)}, {v(d)}, {v(d+2)}")
        A("s_nop 1")
        A(f"v_add_f32_dpp {v(d)}, {v(d)}, {v(d)} row_ror:8 {DPP}")
        A("s_nop 1")
        A(f"v_add_f32_dpp {v(d)}, {v(d)}, {v(d)} row_ror:4 {DPP}")
    A("s_nop 0")
    fold4(20)
    A("s_nop 1")
    A(f"v_add_f32_dpp v20, v20, v20 quad_perm:[2,3,0,1] {DPP}")
    A("v_cvt_pk_bf16_f32 v20, v20, v20")
    setexec(0x00030003, 0x00030003)
    A(f"ds_write_b16 v13, v20 offset:{L_OA}")
    setexec(0xffffffff, 0xffffffff)
    A("v_bfe_u32 v9, v0, 4, 1")
    A("v_lshlrev_b32 v9, 19, v9")
    A("v_bfe_u32 v10, v0, 1, 3")
    A("v_lshl_or_b32 v9, v10, 13, v9")
    A("v_and_b32 v10, 1, v0")
    A("v_lshl_or_b32 v9, v10, 5, v9")
    A("v_lshrrev_b32 v10, 5, v0")
    A("v_lshl_or_b32 v9, v10, 4, v9")
    A(f"s_lshl_b32 {sO}, {sB}, 20")
    A(f"s_lshl_b32 {sT1}, {sW}, 16")
    A(f"s_add_u32 {sO}, {sO}, {sT1}")
    A(f"s_lshl_b32 {sT1}, {sKVH}, 5")
    A(f"s_add_u32 {sT1}, {sT1}, {sSP}")
    A(f"s_lshl_b32 {sT1}, {sT1}, 6")
    A(f"s_add_u32 {sO}, {sO}, {sT1}")
    A(f"s_add_u32 {sO}, {sO}, {WS_H2}")
    A("s_mov_b32 s90, 0")
    A("s_mov_b32 s91, -1")
    A("s_waitcnt lgkmcnt(0)")
    A("s_barrier")
    A(f"ds_read_b128 v[4:7], v14 offset:{L_OA}")
    A("s_and_b32 s92, s2, 1")
    A("s_bfe_u32 s93, s2, 0x10001")
    A(f"s_lshl_b32 {sT1}, s92, 1")
    A(f"s_add_u32 {sT1}, {sT1}, s93")
    A(f"s_lshl_b32 {sT1}, {sT1}, 6")
    A(f"s_lshr_b32 {sT2}, s2, 2")
    A(f"s_add_u32 {sT1}, {sT1}, {sT2}")
    A(f"s_lshl_b32 {sO2}, {sT1}, 13")
    A(f"s_lshl_b32 {sT1}, {sW}, 10")
    A(f"s_add_u32 {sO2}, {sO2}, {sT1}")
    A(f"s_add_u32 {sO2}, {sO2}, {WS_H2}")
    A("s_waitcnt lgkmcnt(0)")
    for e in range(8): A(f"{M32} {v(32+4*e,4)}, v[4:7], {v(192+4*e,4)}, 0")
    A("s_nop 4")
    for k in range(4):
        if k == 3: A("s_nop 0")
        A(f"v_cndmask_b32 {v(16+k)}, {v(32+4*k)}, {v(48+4*k)}, s[90:91]")
    for k in range(4): A(f"v_perm_b32 {v(16+k)}, {v(16+k)}, v8, {sTI[k]}")
    A(f"buffer_store_dwordx4 v[16:19], v9, {srd(SWS)}, {sO} offen {HS}")
    stamp()
    A(f"s_mov_b32 {sCNT}, {o['spin']}")
    A("v_and_b32 v13, 3, v0")
    A("v_lshlrev_b32 v13, 7, v13")
    A("v_lshl_or_b32 v13, v12, 5, v13")
    A(f"s_lshl_b32 {sT1}, {sW}, 2")
    A(f"v_add_u32 v13, {sT1}, v13")
    A("L_fpoll:")
    A(f"buffer_load_dwordx4 v[20:23], v2, {srd(SWS)}, {sO2} offen {HL}")
    A("s_waitcnt vmcnt(0)")
    tagcheck(20, 25, 26, "vcc")
    A("s_cmp_eq_u64 vcc, 0")
    spin_tail("L_fpoll", "L_fdone")
    stamp()
    if stamps: A(f"s_mov_b32 s97, {sCNT}")
    fold4(20)
    setexec(0x000f000f, 0x000f000f)
    A(f"ds_write_b32 v13, v20 offset:{L_FP}")
    setexec(0xffffffff, 0xffffffff)
    A("s_waitcnt lgkmcnt(0)")
    A("s_barrier")
    A(f"s_cmp_lg_u32 {sW}, 0")
    A("s_cbranch_scc1 L_fin")
    A("v_lshlrev_b32 v9, 5, v0")
    setexec(0xffff, 0)
    A(f"ds_read_b128 v[16:19], v9 offset:{L_FP}")
    A(f"ds_read_b128 v[20:23], v9 offset:{L_FP+16}")
    A(f"s_lshl_b32 {sO}, s93, 12")
    A(f"s_lshl_b32 {sT1}, s92, 11")
    A(f"s_add_u32 {sO}, {sO}, {sT1}")
    A(f"s_lshl_b32 {sT1}, {sT2}, 5")
    A(f"s_add_u32 {sO}, {sO}, {sT1}")
    A("v_lshlrev_b32 v9, 1, v0")
    A("s_waitcnt lgkmcnt(0)")
    for k in range(4): A(f"v_add_f32 {v(16+k)}, {v(16+k)}, {v(20+k)}")
    A("v_add_f32 v16, v16, v17")
    A("v_add_f32 v18, v18, v19")
    A("v_add_f32 v16, v16, v18")
    A("v_cvt_pk_bf16_f32 v16, v16, v16")
    A(f"buffer_store_short v16, v9, {srd(SOUT)}, {sO} offen")
    A("s_cmp_lg_u32 s2, 0")
    A("s_cbranch_scc1 L_fin")
    setexec(1, 0)
    A("v_mov_b32 v9, 0")
    A(f"buffer_store_dword v8, v9, {srd(SWS)}, 0 offen")
    A("L_fin:")
    if stamps:
        setexec(0xffffffff, 0xffffffff)
        stamp()
        A("s_waitcnt lgkmcnt(0)")
        A("s_getreg_b32 s98, hwreg(HW_REG_XCC_ID)")
        A("s_getreg_b32 s99, hwreg(HW_REG_HW_ID)")
        vals = ["s60"] + [f"s{62+2*k}" for k in range(1, 16)] + ["s94", "s95", "s96", "s97", "s98", "s99", "s98", "s98"]
        for k, s in enumerate(vals): A(f"v_mov_b32 {v(128+k)}, {s}")
        A(f"s_lshl_b32 {sT1}, s2, 3")
        A(f"s_add_u32 {sT1}, {sT1}, {sW}")
        A(f"s_lshl_b32 {sT1}, {sT1}, 7")
        A(f"s_add_u32 {sT1}, {sT1}, {WS_ST}")
        A("v_mov_b32 v9, 0")
        setexec(1, 0)
        for k in range(6): A(f"buffer_store_dwordx4 {v(128+4*k,4)}, v9, {srd(SWS)}, {sT1} offen offset:{16*k}")
    A("L_end:")
    A("s_endpgm")
    A('.section .rodata,"a"')
    A(".p2align 6")
    A(f".amdhsa_kernel {NAME}")
    A(".amdhsa_next_free_vgpr 256")
    A(".amdhsa_next_free_sgpr 102")
    A(".amdhsa_accum_offset 256")
    A(".amdhsa_group_segment_fixed_size 0")
    A(".amdhsa_kernarg_size 104")
    A(".amdhsa_user_sgpr_count 2")
    A(".amdhsa_user_sgpr_kernarg_segment_ptr 1")
    A(".amdhsa_system_sgpr_workgroup_id_x 1")
    A(".amdhsa_float_denorm_mode_32 3")
    A(".end_amdhsa_kernel")
    msgs = check_hazards(A.lines)
    for m in msgs: print(m, file=sys.stderr)
    return A.text()

if __name__ == "__main__":
    out = sys.argv[1] if len(sys.argv) > 1 else "concat_heads__gqa_block_cached__sliding_block_cached__decode.s"
    open(out, "w").write(gen(stamps=False))
```

```python
import sys, json
import gen_attn
name = sys.argv[1]; opt = json.loads(sys.argv[2]) if len(sys.argv) > 2 else {}
open(f"k_{name}.s", "w").write(gen_attn.gen(False, opt))
open(f"k_{name}_st.s", "w").write(gen_attn.gen(True, opt))
```

```python
import sys, struct, math
from asmlib import Asm, check_hazards

NAME = "concat_heads__gqa_block_cached__sliding_block_cached__decode_kernel"
REF = "concat_heads__gqa_block_cached__sliding_block_cached__decode.s.ref"

WS_Q   = 0x10000
WS_ML  = 0x20000
WS_H1  = 0x100000
WS_H2  = 0x300000
WS_ST  = 0x500000
WS_USED = 0x600000
L_QP = 0
L_QS = L_QP + 2048
L_ML = L_QS + 4096
L_OA = L_ML + 1024
L_FP = L_OA + 128
L_OP = 8192
assert L_FP + 512 <= L_OP
L_END = L_OP + 65536

def f32bits(x):
    return struct.unpack("<I", struct.pack("<f", x))[0]

def gen(stamps=False, opt=None):
    o = dict(bar1=True, spin=400000, ld="nt", hs="sc1", hl="sc1", prio0=True, sleep=1)
    if opt: o.update(opt)
    LD, HS, HL = o["ld"], o["hs"], o["hl"]
    A = Asm()
    hdr = [l.rstrip("\n") for l in open(REF) if l.startswith(";") and "@launch" not in l and "Override" not in l and "grid=ceil" not in l]
    for l in hdr: A(l)
    A(f"; @launch grid=(256,1,1) block=(512,1,1) lds={L_END}")
    if stamps: A("; stamps: " + " ".join(o.get("stn", ["start", "wq_land", "qp_lds", "q_pub", "q_got", "q_lds", "S_done", "B_done", "lastV", "bar_O", "pub1", "wo_land", "hop1", "pub2", "hop2", "end"])))
    A('.amdgcn_target "amdgcn-amd-amdhsa--gfx950"')
    A(".text")
    A(f".globl {NAME}")
    A(".p2align 8")
    A(f".type {NAME},@function")
    A(f"{NAME}:")

    SX, SWQ, SKA, SVA, SKB, SVB, SWO, SWS, SOUT = 4, 8, 12, 16, 20, 24, 28, 32, 36
    sW, sB, sKVH, sSP, sO, sKA0, sT, sCNT = "s40", "s41", "s42", "s43", "s44", "s45", "s46", "s47"
    sLO, sHI, sXA, sXB, sC = "s48", "s49", "s50", "s51", "s52"
    sTI = ["s53", "s54", "s55", "s56"]
    sO2, sT1, sT2 = "s57", "s58", "s59"
    srd = lambda b: f"s[{b}:{b+3}]"
    STN = o.get("stn", ["start", "wq_land", "qp_lds", "q_pub", "q_got", "q_lds", "S_done", "B_done", "lastV", "bar_O", "pub1", "wo_land", "hop1", "pub2", "hop2", "end"])
    def stamp(name):
        if stamps and name in STN:
            k = STN.index(name)
            A(f"s_memrealtime s[{62+2*k}:{63+2*k}]") if k > 0 else A("s_memrealtime s[60:61]")
        if stamps and o.get("cut") == name: A("s_waitcnt vmcnt(0)"); A("s_branch L_fin")
    def v(b, n=1):
        return f"v{b}" if n == 1 else f"v[{b}:{b+n-1}]"
    def setexec(lo, hi):
        if lo == hi == 0xffffffff:
            A("s_mov_b64 exec, -1")
        else:
            A(f"s_mov_b32 exec_lo, {lo:#x}"); A(f"s_mov_b32 exec_hi, {hi:#x}")
    DPP = "row_mask:0xf bank_mask:0xf"

    stamp("start")
    A("s_cmp_ge_u32 s2, 256")
    A("s_cbranch_scc1 L_end")
    A("s_load_dwordx16 s[64:79], s[0:1], 0")
    A("s_load_dwordx8 s[80:87], s[0:1], 64")
    A("s_load_dwordx2 s[88:89], s[0:1], 96")
    A("v_lshrrev_b32 v1, 6, v0")
    A("v_and_b32 v0, 63, v0")
    A(f"v_readfirstlane_b32 {sW}, v1")
    A(f"s_and_b32 {sB}, s2, 1")
    A(f"s_bfe_u32 {sKVH}, s2, 0x20001")
    A(f"s_lshr_b32 {sSP}, s2, 3")
    A("v_lshrrev_b32 v9, 2, v0")
    A("v_and_b32 v10, 3, v0")
    A("v_lshlrev_b32 v10, 4, v10")
    A("v_lshl_or_b32 v3, v9, 16, v10")
    A("v_and_b32 v9, 1, v9")
    A("v_lshl_or_b32 v11, v9, 11, v10")
    A("v_lshrrev_b32 v12, 4, v0")
    A("v_lshl_or_b32 v11, v12, 6, v11")
    A(f"s_lshl_b32 {sO}, {sW}, 20")
    A(f"s_lshl_b32 {sT1}, {sKVH}, 11")
    A(f"s_lshl_b32 {sT2}, {sSP}, 6")
    A(f"s_add_u32 {sO}, {sO}, {sT1}")
    A(f"s_add_u32 {sO}, {sO}, {sT2}")
    A(f"s_lshl_b32 {sO2}, {sW}, 8")
    A(f"s_mov_b32 s{SX+2}, 4096")
    A(f"s_mov_b32 s{SX+3}, 0x20000")
    A(f"s_mov_b32 s{SWQ+2}, 0x800000")
    A(f"s_mov_b32 s{SWQ+3}, 0x20000")
    A(f"s_cmp_eq_u32 {sB}, 0")
    A("s_waitcnt lgkmcnt(0)")
    A(f"s_cselect_b64 s[{SX}:{SX+1}], s[64:65], s[74:75]")
    A(f"s_cselect_b64 s[{SWQ}:{SWQ+1}], s[70:71], s[80:81]")
    A(f"s_cselect_b64 s[{SWO}:{SWO+1}], s[72:73], s[82:83]")
    A(f"buffer_load_dwordx4 v[4:7], v11, {srd(SX)}, {sO2} offen")
    for i in range(8):
        A(f"buffer_load_dwordx4 {v(64+4*i,4)}, v3, {srd(SWQ)}, {sO} offen {LD}")
        if i < 7: A(f"s_add_u32 {sO}, {sO}, 8192")
    if o.get("wsoff"):
        A(f"s_add_u32 s88, s88, {o['wsoff']:#x}")
        A("s_addc_u32 s89, s89, 0")
    A(f"s_load_dword {sT}, s[88:89], 0")
    for b, p, n in ((SKA, 66, 0x4000000), (SVA, 68, 0x4000000), (SKB, 76, 0x4000000), (SVB, 78, 0x4000000),
                    (SWS, 88, WS_USED), (SOUT, 84, 8192)):
        A(f"s_mov_b64 s[{b}:{b+1}], s[{p}:{p+1}]")
        A(f"s_mov_b32 s{b+2}, {n:#x}")
        A(f"s_mov_b32 s{b+3}, 0x20000")
    A(f"s_mov_b32 s{SWO+2}, 0x800000")
    A(f"s_mov_b32 s{SWO+3}, 0x20000")
    A("v_lshlrev_b32 v2, 4, v0")
    A("v_bfe_u32 v9, v0, 1, 1")
    A("v_lshlrev_b32 v1, 4, v12")
    A("v_lshl_or_b32 v1, v9, 10, v1")
    A("v_bfe_u32 v9, v0, 2, 2")
    A("v_lshl_or_b32 v1, v9, 8, v1")
    A("v_and_b32 v9, 1, v0")
    A("v_lshl_or_b32 v1, v9, 6, v1")
    A(f"s_lshl_b32 {sT1}, {sB}, 2")
    A(f"s_add_u32 {sT1}, {sT1}, {sKVH}")
    A(f"s_lshl_b32 {sT1}, {sT1}, 23")
    A(f"s_lshl_b32 {sT2}, {sSP}, 3")
    A(f"s_add_u32 {sT2}, {sT2}, {sW}")
    A(f"s_lshl_b32 {sKA0}, {sT2}, 15")
    A(f"s_add_u32 {sKA0}, {sKA0}, {sT1}")
    A(f"s_lshl_b32 {sO}, {sT2}, 12")
    A(f"s_add_u32 {sO}, {sO}, {sT1}")
    A(f"s_add_u32 {sO}, {sO}, {28672*256}")
    if o["bar1"]: A("s_barrier")
    KOFF = [0, 128, 2048, 2176]
    for i in range(4):
        A(f"buffer_load_dwordx4 {v(96+4*i,4)}, v1, {srd(SKB)}, {sO} offen offset:{KOFF[i]} {LD}")
    for i in range(4):
        A(f"buffer_load_dwordx4 {v(112+4*i,4)}, v2, {srd(SVB)}, {sO} offen offset:{1024*i} {LD}")
    A(f"s_mov_b32 {sLO}, 0x05040100")
    A(f"s_mov_b32 {sHI}, 0x07060302")
    A(f"s_mov_b32 {sXA}, 0x0c0c0400")
    A(f"s_mov_b32 {sXB}, 0x04000c0c")
    A(f"s_mov_b32 {sC}, {f32bits(128**-0.5 * math.log2(math.e)):#x}")
    for k in range(4): A(f"s_mov_b32 {sTI[k]}, {0x07060500+k:#x}")
    A("s_waitcnt lgkmcnt(0)")
    A(f"s_mul_i32 {sT}, {sT}, 0x9e3779b1")
    A(f"s_add_u32 {sT}, {sT}, 0x7f4a7c15")
    A(f"v_mov_b32 v8, {sT}")
    stamp("prolog")

    def transpose_mfma(src, acc, other, first, tmp, a_is_tile, nrows=8):
        nt = nrows // 2
        op = "v_mfma_f32_16x16x32_bf16" if nrows == 8 else "v_mfma_f32_16x16x16_bf16"
        def perms(e):
            t = tmp + 4 * (e % 4)
            for k in range(nt):
                A(f"v_perm_b32 {v(t+k)}, {v(src+4*(2*k+1)+(e>>1))}, {v(src+4*(2*k)+(e>>1))}, {sHI if e & 1 else sLO}")
        def mfma(e):
            t = v(tmp + 4 * (e % 4), nt)
            c = "0" if first else v(acc+4*e, 4)
            a, b = (t, other) if a_is_tile else (other, t)
            A(f"{op} {v(acc+4*e,4)}, {a}, {b}, {c}")
        perms(0)
        for e in range(8):
            if e < 7: perms(e+1)
            else: A("s_nop 1")
            mfma(e)

    A("s_waitcnt vmcnt(8)")
    stamp("wq_land")
    transpose_mfma(64, 32, "v[4:7]", True, 128, False)
    A("v_and_b32 v9, 15, v0")
    A("v_lshlrev_b32 v9, 5, v9")
    A("v_lshl_or_b32 v9, v12, 7, v9")
    A(f"s_lshl_b32 {sT1}, {sW}, 8")
    A(f"v_add_u32 v9, {sT1}, v9")
    A("s_nop 2")
    for e in range(8): A(f"v_add_f32_dpp {v(64+e)}, {v(33+4*e)}, {v(32+4*e)} row_shl:4 {DPP}")
    for e in range(8): A(f"v_add_f32_dpp {v(64+e)}, {v(34+4*e)}, {v(64+e)} row_shl:8 {DPP}")
    for e in range(8): A(f"v_add_f32_dpp {v(64+e)}, {v(35+4*e)}, {v(64+e)} row_shl:12 {DPP}")
    setexec(0x000f000f, 0)
    A(f"ds_write_b128 v9, v[64:67] offset:{L_QP}")
    A(f"ds_write_b128 v9, v[68:71] offset:{L_QP+16}")
    setexec(0xffffffff, 0xffffffff)
    A("s_waitcnt lgkmcnt(0)")
    A("s_barrier")
    stamp("qp_lds")

    def issue_KA():
        A(f"s_mov_b32 {sO}, {sKA0}")
        for i in range(32):
            if i and i % 4 == 0: A(f"s_add_u32 {sO}, {sO}, 4096")
            A(f"buffer_load_dwordx4 {v(128+4*i,4)}, v1, {srd(SKA)}, {sO} offen offset:{KOFF[i%4]} {LD}")

    def tagcheck(d, t0, t1, dst):
        A(f"v_perm_b32 {v(t0)}, {v(d+1)}, {v(d)}, {sXA}")
        A(f"v_perm_b32 {v(t1)}, {v(d+3)}, {v(d+2)}, {sXB}")
        A(f"v_or_b32 {v(t0)}, {v(t0)}, {v(t1)}")
        A(f"v_cmp_ne_u32 {dst}, {sT}, {v(t0)}")
    def spin_tail(label, done):
        A(f"s_cbranch_scc1 {done}")
        A(f"s_sub_u32 {sCNT}, {sCNT}, 1")
        A(f"s_cbranch_scc1 {done}")
        if o["sleep"]: A(f"s_sleep {o['sleep']}")
        A(f"s_branch {label}")
        A(f"{done}:")

    A(f"s_cmp_eq_u32 {sW}, 0")
    A("s_cbranch_scc1 L_w0")
    issue_KA()
    A("s_branch L_qbar")
    A("L_w0:")
    if o["prio0"]: A("s_setprio 3")
    for w in range(8): A(f"ds_read_b128 {v(128+4*w,4)}, v2 offset:{L_QP+256*w}")
    A("v_lshrrev_b32 v9, 3, v0")
    A("v_and_b32 v10, 7, v0")
    A("v_lshlrev_b32 v10, 4, v10")
    A("v_lshl_or_b32 v9, v9, 12, v10")
    A(f"s_lshl_b32 {sT1}, {sB}, 2")
    A(f"s_add_u32 {sT1}, {sT1}, {sKVH}")
    A(f"s_lshl_b32 {sT1}, {sT1}, 13")
    A(f"s_lshl_b32 {sT2}, {sSP}, 7")
    A(f"s_add_u32 {sT1}, {sT1}, {sT2}")
    A(f"s_add_u32 {sO}, {sT1}, {WS_Q}")
    A("s_waitcnt lgkmcnt(0)")
    for w in range(1, 8):
        for k in range(4): A(f"v_add_f32 {v(128+k)}, {v(128+k)}, {v(128+4*w+k)}")
    A("v_cvt_pk_bf16_f32 v132, v128, v129")
    A("v_cvt_pk_bf16_f32 v133, v130, v131")
    A("v_lshlrev_b32 v128, 16, v132")
    A("v_lshlrev_b32 v130, 16, v133")
    A("v_and_b32 v129, 0xffff0000, v132")
    A("v_and_b32 v131, 0xffff0000, v133")
    for k in range(4): A(f"v_perm_b32 {v(128+k)}, {v(128+k)}, v8, {sTI[k]}")
    setexec(0xffff, 0)
    A(f"buffer_store_dwordx4 v[128:131], v9, {srd(SWS)}, {sO} offen {HS}")
    setexec(0xffffffff, 0xffffffff)
    stamp("q_pub")
    A(f"s_lshl_b32 {sT1}, {sKVH}, 1")
    A(f"s_add_u32 {sT1}, {sT1}, {sB}")
    A(f"s_lshl_b32 {sT1}, {sT1}, 12")
    A(f"s_add_u32 {sO}, {sT1}, {WS_Q}")
    A(f"s_add_u32 {sO2}, {sO}, {8*4096}")
    A(f"s_mov_b32 {sCNT}, {o['spin']}")
    A("L_qpoll:")
    for i in range(8):
        A(f"buffer_load_dwordx4 {v(136+4*i,4)}, v2, {srd(SWS)}, {sO if i < 4 else sO2} offen offset:{1024*(i%4)} {HL}")
    A("s_waitcnt vmcnt(0)")
    tagcheck(136, 9, 10, "vcc")
    for i in range(1, 8):
        tagcheck(136+4*i, 9, 10, "s[90:91]")
        A("s_or_b64 vcc, vcc, s[90:91]")
    A("s_cmp_eq_u64 vcc, 0")
    spin_tail("L_qpoll", "L_qdone")
    if stamps: A(f"s_mov_b32 s94, {sCNT}")
    stamp("q_got")
    A("v_lshlrev_b32 v9, 3, v0")
    for i in range(8):
        d = 136+4*i
        A(f"v_perm_b32 {v(d)}, {v(d+1)}, {v(d)}, {sHI}")
        A(f"v_perm_b32 {v(d+1)}, {v(d+3)}, {v(d+2)}, {sHI}")
        A(f"ds_write_b64 v9, {v(d,2)} offset:{L_QS+512*i}")
    A("s_waitcnt lgkmcnt(0)")
    if o["prio0"]: A("s_setprio 0")
    A("L_qbar:")
    if stamps and True:
        pass
    A("s_barrier")
    A(f"s_cmp_lg_u32 {sW}, 0")
    A("s_cbranch_scc1 L_kissued")
    issue_KA()
    A("L_kissued:")
    stamp("q_lds")
    A("v_and_b32 v9, 7, v0")
    A("v_lshlrev_b32 v9, 8, v9")
    A("v_lshl_or_b32 v9, v12, 4, v9")
    A("v_bfe_u32 v10, v0, 3, 1")
    A("v_lshl_or_b32 v9, v10, 6, v9")
    A(f"ds_read_b128 v[48:51], v9 offset:{L_QS}")
    A(f"ds_read_b128 v[52:55], v9 offset:{L_QS+128}")
    A(f"ds_read_b128 v[56:59], v9 offset:{L_QS+2048}")
    A(f"ds_read_b128 v[60:63], v9 offset:{L_QS+2048+128}")
    A("s_waitcnt vmcnt(32) lgkmcnt(0)")
    M32 = "v_mfma_f32_16x16x32_bf16"
    for g in range(2): A(f"{M32} {v(32+4*g,4)}, {v(96+8*g,4)}, v[56:59], 0")
    for g in range(2): A(f"{M32} {v(32+4*g,4)}, {v(100+8*g,4)}, v[60:63], {v(32+4*g,4)}")
    A("s_nop 7")
    for g in range(2):
        for a in range(2):
            A(f"v_add_f32_dpp {v(16+2*g+a)}, {v(32+4*g+2*a+1)}, {v(32+4*g+2*a)} row_ror:8 {DPP}")
    A(f"s_mov_b32 {sO}, {sKA0}")
    for t in range(4):
        kb = 128 + 32*t
        A("s_waitcnt vmcnt(24)")
        for g in range(4): A(f"{M32} {v(32+4*g,4)}, {v(kb+8*g,4)}, v[48:51], 0")
        for g in range(4): A(f"{M32} {v(32+4*g,4)}, {v(kb+8*g+4,4)}, v[52:55], {v(32+4*g,4)}")
        for i in range(8):
            A(f"buffer_load_dwordx4 {v(kb+4*i,4)}, v2, {srd(SVA)}, {sO} offen offset:{1024*(i%4)} {LD}")
            if i % 4 == 3: A(f"s_add_u32 {sO}, {sO}, 4096")
        for g in range(4):
            for a in range(2):
                A(f"v_add_f32_dpp {v(64+8*t+2*g+a)}, {v(32+4*g+2*a+1)}, {v(32+4*g+2*a)} row_ror:8 {DPP}")
    stamp("S_done")
    A("v_max3_f32 v22, v64, v65, v66")
    A("v_max3_f32 v23, v16, v17, v18")
    A("v_max3_f32 v26, v67, v68, v69")
    A("v_max_f32 v23, v23, v19")
    regs_left = list(range(70, 96))
    k = 0
    while regs_left:
        dst = 22 if k % 2 == 0 else 26
        a, b = regs_left.pop(0), regs_left.pop(0)
        A(f"v_max3_f32 {v(dst)}, {v(dst)}, {v(a)}, {v(b)}")
        k += 1
    A("v_max_f32 v22, v22, v26")
    def butterfly(op, x, y, tx, ty):
        for sw in ("v_permlane16_swap_b32", "v_permlane32_swap_b32"):
            A(f"v_mov_b32 {v(ty)}, {v(y)}")
            A(f"v_mov_b32 {v(tx)}, {v(x)}")
            A("s_nop 1")
            A(f"{sw} {v(y)}, {v(ty)}")
            A(f"{sw} {v(x)}, {v(tx)}")
            A(f"{op} {v(y)}, {v(y)}, {v(ty)}")
            A(f"{op} {v(x)}, {v(x)}, {v(tx)}")
    butterfly("v_max_f32", 22, 23, 26, 27)
    A(f"v_mul_f32 v22, {sC}, v22")
    A(f"v_mul_f32 v23, {sC}, v23")
    for i in range(4): A(f"v_fma_f32 {v(16+i)}, {v(16+i)}, {sC}, -v23")
    for i in range(32): A(f"v_fma_f32 {v(64+i)}, {v(64+i)}, {sC}, -v22")
    for i in range(4): A(f"v_exp_f32 {v(16+i)}, {v(16+i)}")
    for i in range(32): A(f"v_exp_f32 {v(64+i)}, {v(64+i)}")
    A("v_add_f32 v25, v16, v17")
    A("v_add_f32 v27, v18, v19")
    A("v_add_f32 v24, v64, v65")
    A("v_add_f32 v26, v66, v67")
    A("v_add_f32 v25, v25, v27")
    for i in range(68, 96, 2):
        A(f"v_add_f32 v24, v24, {v(i)}")
        A(f"v_add_f32 v26, v26, {v(i+1)}")
    A("v_add_f32 v24, v24, v26")
    A("v_cvt_pk_bf16_f32 v20, v16, v17")
    A("v_cvt_pk_bf16_f32 v21, v18, v19")
    for k in range(16): A(f"v_cvt_pk_bf16_f32 {v(64+k)}, {v(64+2*k)}, {v(65+2*k)}")
    butterfly("v_add_f32", 24, 25, 26, 27)
    A(f"s_lshl_b32 {sT1}, {sW}, 2")
    A("v_lshlrev_b32 v9, 5, v0")
    A(f"v_add_u32 v9, {sT1}, v9")
    setexec(0xff, 0)
    A(f"ds_write_b32 v9, v22 offset:{L_ML}")
    A(f"ds_write_b32 v9, v24 offset:{L_ML+256}")
    A(f"ds_write_b32 v9, v23 offset:{L_ML+512}")
    A(f"ds_write_b32 v9, v25 offset:{L_ML+768}")
    setexec(0xffffffff, 0xffffffff)
    A("v_and_b32 v9, 7, v0")
    A("v_lshlrev_b32 v28, 4, v9")
    A("v_lshl_or_b32 v28, v9, 9, v28")
    A("v_lshl_or_b32 v28, v12, 7, v28")
    A(f"s_lshl_b32 {sT1}, {sW}, 12")
    A(f"v_add_u32 v28, {sT1}, v28")
    def write_O(br):
        setexec(0x00ff00ff, 0x00ff00ff)
        for e in range(8):
            if e == 0:
                A(f"ds_write_b128 v28, v[32:35] offset:{L_OP+32768*br}")
            else:
                A(f"v_xor_b32 {v(29+(e&1))}, {16*e}, v28")
                A(f"ds_write_b128 {v(29+(e&1))}, {v(32+4*e,4)} offset:{L_OP+32768*br}")
        setexec(0xffffffff, 0xffffffff)
    transpose_mfma(112, 32, "v[20:21]", True, 80, True, nrows=4)
    A("v_and_b32 v9, 15, v0")
    A("v_lshlrev_b32 v9, 4, v9")
    A("v_lshl_or_b32 v9, v12, 14, v9")
    A(f"s_lshl_b32 {sT1}, {sKVH}, 5")
    A(f"s_add_u32 {sT1}, {sT1}, {sSP}")
    A(f"s_lshl_b32 {sO}, {sT1}, 16")
    A(f"s_lshl_b32 {sT2}, {sW}, 8")
    A(f"s_add_u32 {sO}, {sO}, {sT2}")
    for i in range(8):
        A(f"buffer_load_dwordx4 {v(96+4*i,4)}, v9, {srd(SWO)}, {sO} offen offset:{2048*(i&1)} {LD}")
        if i & 1 and i < 7: A(f"s_add_u32 {sO}, {sO}, 4096")
    write_O(1)
    stamp("B_done")
    for t in range(4):
        A(f"s_waitcnt vmcnt({32-8*t})")
        if t == 3: stamp("lastV")
        transpose_mfma(128+32*t, 32, v(64+4*t, 4), t == 0, 80, True)
    A(f"s_and_b32 {sT1}, {sW}, 3")
    A(f"s_lshl_b32 {sT1}, {sT1}, 6")
    A(f"v_add_u32 v9, {sT1}, v0")
    A("v_lshrrev_b32 v10, 5, v9")
    A("v_lshrrev_b32 v11, 3, v9")
    A("v_and_b32 v13, 7, v0")
    A("v_xor_b32 v14, v13, v10")
    A("v_lshlrev_b32 v14, 4, v14")
    write_O(0)
    A("v_lshl_or_b32 v14, v11, 7, v14")
    A(f"s_lshr_b32 {sT2}, {sW}, 2")
    A(f"s_lshl_b32 {sT1}, {sT2}, 15")
    A(f"v_add_u32 v14, {sT1}, v14")
    A(f"s_lshl_b32 {sT1}, {sT2}, 9")
    A("v_lshlrev_b32 v15, 5, v10")
    A(f"v_add_u32 v15, {sT1}, v15")
    A("v_lshlrev_b32 v13, 4, v13")
    A("v_lshl_or_b32 v11, v11, 13, v13")
    A("v_lshlrev_b32 v10, 10, v10")
    A(f"s_lshl_b32 {sT2}, {sT2}, 2")
    A(f"s_add_u32 {sT2}, {sT2}, {sKVH}")
    A(f"s_lshl_b32 {sT1}, {sB}, 5")
    A(f"s_add_u32 {sT1}, {sT1}, {sSP}")
    A(f"s_lshl_b32 {sO}, {sT2}, 18")
    A(f"s_lshl_b32 {sO2}, {sT1}, 7")
    A(f"s_add_u32 {sO}, {sO}, {sO2}")
    A(f"s_add_u32 {sO}, {sO}, {WS_H1}")
    A(f"s_lshl_b32 {sO2}, {sT2}, 13")
    A(f"s_lshl_b32 {sT1}, {sT1}, 4")
    A(f"s_add_u32 {sO2}, {sO2}, {sT1}")
    A(f"s_add_u32 {sO2}, {sO2}, {WS_ML}")
    A("s_waitcnt lgkmcnt(0)")
    A("s_barrier")
    stamp("bar_O")
    A(f"ds_read_b128 v[128:131], v15 offset:{L_ML}")
    A(f"ds_read_b128 v[132:135], v15 offset:{L_ML+16}")
    for w in range(8): A(f"ds_read_b128 {v(160+4*w,4)}, v14 offset:{L_OP+4096*w}")
    A(f"ds_read_b128 v[136:139], v15 offset:{L_ML+256}")
    A(f"ds_read_b128 v[140:143], v15 offset:{L_ML+256+16}")
    A("s_waitcnt lgkmcnt(10)")
    A("v_max3_f32 v144, v128, v129, v130")
    A("v_max3_f32 v145, v131, v132, v133")
    A("v_max3_f32 v144, v144, v134, v135")
    A("v_max_f32 v144, v144, v145")
    for w in range(8): A(f"v_sub_f32 {v(128+w)}, {v(128+w)}, v144")
    for w in range(8): A(f"v_exp_f32 {v(128+w)}, {v(128+w)}")
    A("s_waitcnt lgkmcnt(9)")
    for k in range(4): A(f"v_mul_f32 {v(148+k)}, v128, {v(160+k)}")
    for w in range(1, 8):
        A(f"s_waitcnt lgkmcnt({9-w})")
        for k in range(4): A(f"v_fmac_f32 {v(148+k)}, {v(128+w)}, {v(160+4*w+k)}")
    for k in range(4): A(f"v_perm_b32 {v(148+k)}, {v(148+k)}, v8, {sTI[k]}")
    A(f"buffer_store_dwordx4 v[148:151], v11, {srd(SWS)}, {sO} offen {HS}")
    A("s_waitcnt lgkmcnt(0)")
    A("v_mul_f32 v145, v128, v136")
    for w in range(1, 8): A(f"v_fmac_f32 v145, {v(128+w)}, {v(136+w)}")
    A("v_mov_b32 v146, v8")
    A("v_mov_b32 v147, v8")
    setexec(1, 1)
    A(f"buffer_store_dwordx4 v[144:147], v10, {srd(SWS)}, {sO2} offen {HS}")
    setexec(0xffffffff, 0xffffffff)
    stamp("pub1")
    A("v_lshrrev_b32 v9, 1, v0")
    A("v_and_b32 v10, 1, v0")
    A("v_lshlrev_b32 v10, 4, v10")
    A("v_lshl_or_b32 v10, v9, 7, v10")
    A("v_lshlrev_b32 v9, 4, v9")
    A(f"s_lshl_b32 {sT2}, {sB}, 2")
    A(f"s_add_u32 {sT2}, {sT2}, {sKVH}")
    A(f"s_lshl_b32 {sO}, {sT2}, 5")
    A(f"s_add_u32 {sO}, {sO}, {sSP}")
    A(f"s_lshl_b32 {sO}, {sO}, 13")
    A(f"s_lshr_b32 {sT1}, {sW}, 2")
    A(f"s_lshl_b32 {sO2}, {sT1}, 12")
    A(f"s_add_u32 {sO}, {sO}, {sO2}")
    A(f"s_and_b32 {sO2}, {sW}, 3")
    A(f"s_lshl_b32 {sO2}, {sO2}, 5")
    A(f"s_add_u32 {sO}, {sO}, {sO2}")
    A(f"s_add_u32 {sO}, {sO}, {WS_H1}")
    A(f"s_lshl_b32 {sT2}, {sT2}, 3")
    A(f"s_lshr_b32 {sO2}, {sSP}, 2")
    A(f"s_add_u32 {sT2}, {sT2}, {sO2}")
    A(f"s_lshl_b32 {sT2}, {sT2}, 10")
    A(f"s_lshl_b32 {sO2}, {sT1}, 9")
    A(f"s_add_u32 {sO2}, {sO2}, {sT2}")
    A(f"s_add_u32 {sO2}, {sO2}, {WS_ML}")
    if o.get("ml1"):
        A("s_waitcnt vmcnt(2)")
    elif o.get("late_o"):
        A(f"buffer_load_dwordx4 v[16:19], v9, {srd(SWS)}, {sO2} offen {HL}")
        A("s_waitcnt vmcnt(3)")
    else:
        A(f"buffer_load_dwordx4 v[16:19], v9, {srd(SWS)}, {sO2} offen {HL}")
        A(f"buffer_load_dwordx4 v[20:23], v10, {srd(SWS)}, {sO} offen {HL}")
        A("s_waitcnt vmcnt(4)")
    stamp("wo_land")
    for e in range(8):
        for k in range(4):
            A(f"v_perm_b32 {v(192+4*e+k)}, {v(96+4*(2*k+1)+(e>>1))}, {v(96+4*(2*k)+(e>>1))}, {sHI if e & 1 else sLO}")
    A(f"s_lshl_b32 {sT1}, {sT1}, 6")
    A(f"s_and_b32 {sT2}, {sW}, 3")
    A(f"s_lshl_b32 {sT2}, {sT2}, 2")
    A(f"s_add_u32 {sT1}, {sT1}, {sT2}")
    A("v_and_b32 v13, 1, v0")
    A("v_lshlrev_b32 v13, 1, v13")
    A("v_lshl_or_b32 v13, v12, 4, v13")
    A(f"v_add_u32 v13, {sT1}, v13")
    A("v_bfe_u32 v14, v0, 2, 1")
    A("v_lshlrev_b32 v14, 6, v14")
    A("v_lshl_or_b32 v14, v12, 4, v14")
    A(f"s_mov_b32 {sCNT}, {o['spin']}")
    if o.get("ml1"):
        A(f"s_and_b32 {sT2}, {sW}, 3")
        A(f"s_cmp_lg_u32 {sT2}, 0")
        A("s_cbranch_scc1 L_mlskip")
        A("L_mlpoll0:")
        A(f"buffer_load_dwordx4 v[16:19], v9, {srd(SWS)}, {sO2} offen {HL}")
        A("s_waitcnt vmcnt(0)")
        A(f"v_cmp_ne_u32 vcc, {sT}, v18")
        A("s_cmp_eq_u64 vcc, 0")
        spin_tail("L_mlpoll0", "L_mlskip")
        A("s_barrier")
        A(f"buffer_load_dwordx4 v[16:19], v9, {srd(SWS)}, {sO2} offen {HL}")
        A(f"buffer_load_dwordx4 v[20:23], v10, {srd(SWS)}, {sO} offen {HL}")
    A("s_waitcnt vmcnt(0)" if o.get("late_o") and not o.get("ml1") else "s_waitcnt vmcnt(1)")
    A("L_mlpoll:")
    A(f"v_cmp_ne_u32 vcc, {sT}, v18")
    A("s_cmp_eq_u64 vcc, 0")
    A("s_cbranch_scc1 L_mldone")
    A(f"s_sub_u32 {sCNT}, {sCNT}, 1")
    A("s_cbranch_scc1 L_mldone")
    if o["sleep"]: A(f"s_sleep {o['sleep']}")
    A(f"buffer_load_dwordx4 v[16:19], v9, {srd(SWS)}, {sO2} offen {HL}")
    A("s_waitcnt vmcnt(0)")
    A("s_branch L_mlpoll")
    A("L_mldone:")
    if o.get("late_o") and not o.get("ml1"): A(f"buffer_load_dwordx4 v[20:23], v10, {srd(SWS)}, {sO} offen {HL}")
    def allreduce32(op, x, t):
        A("s_nop 1")
        A(f"{op}_dpp {v(x)}, {v(x)}, {v(x)} quad_perm:[2,3,0,1] {DPP}")
        A("s_nop 1")
        A(f"{op}_dpp {v(x)}, {v(x)}, {v(x)} row_ror:4 {DPP}")
        A("s_nop 1")
        A(f"{op}_dpp {v(x)}, {v(x)}, {v(x)} row_ror:8 {DPP}")
        for sw in ("v_permlane16_swap_b32", "v_permlane32_swap_b32"):
            A(f"v_mov_b32 {v(t)}, {v(x)}")
            A("s_nop 1")
            A(f"{sw} {v(x)}, {v(t)}")
            A(f"{op} {v(x)}, {v(x)}, {v(t)}")
    A("v_mov_b32 v24, v16")
    allreduce32("v_max_f32", 24, 25)
    A("v_sub_f32 v24, v16, v24")
    A("v_exp_f32 v24, v24")
    A("s_nop 0")
    A("v_mul_f32 v26, v24, v17")
    allreduce32("v_add_f32", 26, 25)
    A("v_rcp_f32 v26, v26")
    A("s_nop 0")
    A("v_mul_f32 v24, v24, v26")
    if stamps: A(f"s_mov_b32 s95, {sCNT}")
    A(f"s_mov_b32 {sCNT}, {o['spin']}")
    A("s_waitcnt vmcnt(0)")
    A("L_opoll:")
    tagcheck(20, 25, 26, "vcc")
    A("s_cmp_eq_u64 vcc, 0")
    A("s_cbranch_scc1 L_odone")
    A(f"s_sub_u32 {sCNT}, {sCNT}, 1")
    A("s_cbranch_scc1 L_odone")
    if o["sleep"]: A(f"s_sleep {o['sleep']}")
    A(f"buffer_load_dwordx4 v[20:23], v10, {srd(SWS)}, {sO} offen {HL}")
    A("s_waitcnt vmcnt(0)")
    A("s_branch L_opoll")
    A("L_odone:")
    stamp("hop1")
    if stamps: A(f"s_mov_b32 s96, {sCNT}")
    for k in range(4): A(f"v_mul_f32 {v(20+k)}, v24, {v(20+k)}")
    def fold4(d):
        A("s_nop 0")
        A(f"v_permlane16_swap_b32 {v(d)}, {v(d+1)}")
        A(f"v_permlane16_swap_b32 {v(d+2)}, {v(d+3)}")
        A(f"v_add_f32 {v(d)}, {v(d)}, {v(d+1)}")
        A(f"v_add_f32 {v(d+2)}, {v(d+2)}, {v(d+3)}")
        A("s_nop 1")
        A(f"v_permlane32_swap_b32 {v(d)}, {v(d+2)}")
        A(f"v_add_f32 {v(d)}, {v(d)}, {v(d+2)}")
        A("s_nop 1")
        A(f"v_add_f32_dpp {v(d)}, {v(d)}, {v(d)} row_ror:8 {DPP}")
        A("s_nop 1")
        A(f"v_add_f32_dpp {v(d)}, {v(d)}, {v(d)} row_ror:4 {DPP}")
    A("s_nop 0")
    fold4(20)
    A("s_nop 1")
    A(f"v_add_f32_dpp v20, v20, v20 quad_perm:[2,3,0,1] {DPP}")
    A("v_cvt_pk_bf16_f32 v20, v20, v20")
    setexec(0x00030003, 0x00030003)
    A(f"ds_write_b16 v13, v20 offset:{L_OA}")
    setexec(0xffffffff, 0xffffffff)
    A("v_bfe_u32 v9, v0, 4, 1")
    A("v_lshlrev_b32 v9, 19, v9")
    A("v_bfe_u32 v10, v0, 1, 3")
    A("v_lshl_or_b32 v9, v10, 13, v9")
    A("v_and_b32 v10, 1, v0")
    A("v_lshl_or_b32 v9, v10, 5, v9")
    A("v_lshrrev_b32 v10, 5, v0")
    A("v_lshl_or_b32 v9, v10, 4, v9")
    A(f"s_lshl_b32 {sO}, {sB}, 20")
    A(f"s_lshl_b32 {sT1}, {sW}, 16")
    A(f"s_add_u32 {sO}, {sO}, {sT1}")
    A(f"s_lshl_b32 {sT1}, {sKVH}, 5")
    A(f"s_add_u32 {sT1}, {sT1}, {sSP}")
    A(f"s_lshl_b32 {sT1}, {sT1}, 6")
    A(f"s_add_u32 {sO}, {sO}, {sT1}")
    A(f"s_add_u32 {sO}, {sO}, {WS_H2}")
    A("s_mov_b32 s90, 0")
    A("s_mov_b32 s91, -1")
    A("s_waitcnt lgkmcnt(0)")
    A("s_barrier")
    A(f"ds_read_b128 v[4:7], v14 offset:{L_OA}")
    A("s_and_b32 s92, s2, 1")
    A("s_bfe_u32 s93, s2, 0x10001")
    A(f"s_lshl_b32 {sT1}, s92, 1")
    A(f"s_add_u32 {sT1}, {sT1}, s93")
    A(f"s_lshl_b32 {sT1}, {sT1}, 6")
    A(f"s_lshr_b32 {sT2}, s2, 2")
    A(f"s_add_u32 {sT1}, {sT1}, {sT2}")
    A(f"s_lshl_b32 {sO2}, {sT1}, 13")
    A(f"s_lshl_b32 {sT1}, {sW}, 10")
    A(f"s_add_u32 {sO2}, {sO2}, {sT1}")
    A(f"s_add_u32 {sO2}, {sO2}, {WS_H2}")
    A("s_waitcnt lgkmcnt(0)")
    for e in range(8): A(f"{M32} {v(32+4*e,4)}, v[4:7], {v(192+4*e,4)}, 0")
    A("s_nop 4")
    for k in range(4):
        if k == 3: A("s_nop 0")
        A(f"v_cndmask_b32 {v(16+k)}, {v(32+4*k)}, {v(48+4*k)}, s[90:91]")
    for k in range(4): A(f"v_perm_b32 {v(16+k)}, {v(16+k)}, v8, {sTI[k]}")
    A(f"buffer_store_dwordx4 v[16:19], v9, {srd(SWS)}, {sO} offen {HS}")
    stamp("pub2")
    A(f"s_mov_b32 {sCNT}, {o['spin']}")
    A("v_and_b32 v13, 3, v0")
    A("v_lshlrev_b32 v13, 7, v13")
    A("v_lshl_or_b32 v13, v12, 5, v13")
    A(f"s_lshl_b32 {sT1}, {sW}, 2")
    A(f"v_add_u32 v13, {sT1}, v13")
    if o.get("fdelay"): A(f"s_sleep {o['fdelay']}")
    A("L_fpoll:")
    A(f"buffer_load_dwordx4 v[20:23], v2, {srd(SWS)}, {sO2} offen {HL}")
    A("s_waitcnt vmcnt(0)")
    tagcheck(20, 25, 26, "vcc")
    A("s_cmp_eq_u64 vcc, 0")
    spin_tail("L_fpoll", "L_fdone")
    stamp("hop2")
    if stamps: A(f"s_mov_b32 s97, {sCNT}")
    fold4(20)
    setexec(0x000f000f, 0x000f000f)
    A(f"ds_write_b32 v13, v20 offset:{L_FP}")
    setexec(0xffffffff, 0xffffffff)
    A("s_waitcnt lgkmcnt(0)")
    A("s_barrier")
    A(f"s_cmp_lg_u32 {sW}, 0")
    A("s_cbranch_scc1 L_fin")
    A("v_lshlrev_b32 v9, 5, v0")
    setexec(0xffff, 0)
    A(f"ds_read_b128 v[16:19], v9 offset:{L_FP}")
    A(f"ds_read_b128 v[20:23], v9 offset:{L_FP+16}")
    A(f"s_lshl_b32 {sO}, s93, 12")
    A(f"s_lshl_b32 {sT1}, s92, 11")
    A(f"s_add_u32 {sO}, {sO}, {sT1}")
    A(f"s_lshl_b32 {sT1}, {sT2}, 5")
    A(f"s_add_u32 {sO}, {sO}, {sT1}")
    A("v_lshlrev_b32 v9, 1, v0")
    A("s_waitcnt lgkmcnt(0)")
    for k in range(4): A(f"v_add_f32 {v(16+k)}, {v(16+k)}, {v(20+k)}")
    A("v_add_f32 v16, v16, v17")
    A("v_add_f32 v18, v18, v19")
    A("v_add_f32 v16, v16, v18")
    A("v_cvt_pk_bf16_f32 v16, v16, v16")
    A(f"buffer_store_short v16, v9, {srd(SOUT)}, {sO} offen")
    A("s_cmp_lg_u32 s2, 0")
    A("s_cbranch_scc1 L_fin")
    setexec(1, 0)
    A("v_mov_b32 v9, 0")
    A(f"buffer_store_dword v8, v9, {srd(SWS)}, 0 offen")
    A("L_fin:")
    if stamps:
        setexec(0xffffffff, 0xffffffff)
        stamp("end")
        A("s_waitcnt lgkmcnt(0)")
        A("s_getreg_b32 s98, hwreg(HW_REG_XCC_ID)")
        A("s_getreg_b32 s99, hwreg(HW_REG_HW_ID)")
        vals = ["s60"] + [f"s{62+2*k}" for k in range(1, 16)] + ["s94", "s95", "s96", "s97", "s98", "s99", "s98", "s98"]
        for k, s in enumerate(vals): A(f"v_mov_b32 {v(128+k)}, {s}")
        A(f"s_lshl_b32 {sT1}, s2, 3")
        A(f"s_add_u32 {sT1}, {sT1}, {sW}")
        A(f"s_lshl_b32 {sT1}, {sT1}, 7")
        A(f"s_add_u32 {sT1}, {sT1}, {WS_ST}")
        A("v_mov_b32 v9, 0")
        setexec(1, 0)
        for k in range(6): A(f"buffer_store_dwordx4 {v(128+4*k,4)}, v9, {srd(SWS)}, {sT1} offen offset:{16*k}")
    A("L_end:")
    A("s_endpgm")
    A('.section .rodata,"a"')
    A(".p2align 6")
    A(f".amdhsa_kernel {NAME}")
    A(".amdhsa_next_free_vgpr 256")
    A(".amdhsa_next_free_sgpr 102")
    A(".amdhsa_accum_offset 256")
    A(".amdhsa_group_segment_fixed_size 0")
    A(".amdhsa_kernarg_size 104")
    A(".amdhsa_user_sgpr_count 2")
    A(".amdhsa_user_sgpr_kernarg_segment_ptr 1")
    A(".amdhsa_system_sgpr_workgroup_id_x 1")
    A(".amdhsa_float_denorm_mode_32 3")
    A(".end_amdhsa_kernel")
    msgs = check_hazards(A.lines)
    for m in msgs: print(m, file=sys.stderr)
    return A.text()

if __name__ == "__main__":
    out = sys.argv[1] if len(sys.argv) > 1 else "concat_heads__gqa_block_cached__sliding_block_cached__decode.s"
    open(out, "w").write(gen(stamps=False))
```

```python
import sys, struct, math
from asmlib import Asm, check_hazards

NAME = "concat_heads__gqa_block_cached__sliding_block_cached__decode_kernel"
REF = "concat_heads__gqa_block_cached__sliding_block_cached__decode.s.ref"

WS_Q   = 0x10000
WS_ML  = 0x30000
WS_F2  = 0x40000
WS_H1  = 0x100000
WS_H2  = 0x300000
WS_ST  = 0x500000
WS_USED = 0x600000
L_QP = 0
L_QS = L_QP + 4096
L_ML = L_QS + 4096
L_F  = L_ML + 1024
L_W  = L_F + 256
L_OA = L_W + 512
L_FP = L_OA + 128
L_CNT = L_FP + 512
L_OP = 12288
assert L_CNT + 256 <= L_OP
L_END = L_OP + 65536

DEF_STN = ["start", "wq_land", "q_pub", "q_got", "q_lds", "S_done", "lastV", "bar_O", "pub1", "wo_land", "ml_got", "hop1", "pub2", "f2_got", "hop2", "end"]

def f32bits(x):
    return struct.unpack("<I", struct.pack("<f", x))[0]

def gen(stamps=False, opt=None):
    o = dict(spin=400000, ld="nt", hs="sc1", hl="sc1", sleep=1, d=3, d0=8, d2=6, n2=16, gq=12, wo_before=0,
             mlpos="lastV", odelay=0, f2pos="oabar", fdelay=0, skew=1)
    if opt: o.update(opt)
    LD, HS, HL = o["ld"], o["hs"], o["hl"]
    A = Asm()
    hdr = [l.rstrip("\n") for l in open(REF) if l.startswith(";") and "@launch" not in l and "Override" not in l and "grid=ceil" not in l]
    for l in hdr: A(l)
    A(f"; @launch grid=(256,1,1) block=(512,1,1) lds={L_END}")
    STN = o.get("stn", DEF_STN)
    if stamps: A("; stamps: " + " ".join(STN))
    A('.amdgcn_target "amdgcn-amd-amdhsa--gfx950"')
    A(".text")
    A(f".globl {NAME}")
    A(".p2align 8")
    A(f".type {NAME},@function")
    A(f"{NAME}:")

    SX, SWQ, SKA, SVA, SKB, SVB, SWO, SWS, SOUT = 4, 8, 12, 16, 20, 24, 28, 32, 36
    sW, sB, sKVH, sSP, sO, sKA0, sT, sCNT = "s40", "s41", "s42", "s43", "s44", "s45", "s46", "s47"
    sLO, sHI, sXA, sXB, sC = "s48", "s49", "s50", "s51", "s52"
    sTI = ["s53", "s54", "s55", "s56"]
    sO2, sT1, sT2 = "s57", "s58", "s59"
    sR, sKB0, sG = "s3", "s100", "s101"
    srd = lambda b: f"s[{b}:{b+3}]"
    def stamp(name):
        if stamps and name in STN:
            k = STN.index(name)
            A(f"s_memrealtime s[{62+2*k}:{63+2*k}]") if k > 0 else A("s_memrealtime s[60:61]")
        if stamps and o.get("cut") == name: A("s_waitcnt vmcnt(0)"); A("s_branch L_fin")
    def v(b, n=1):
        return f"v{b}" if n == 1 else f"v[{b}:{b+n-1}]"
    def setexec(lo, hi):
        if lo == hi == 0xffffffff: A("s_mov_b64 exec, -1")
        else: A(f"s_mov_b32 exec_lo, {lo:#x}"); A(f"s_mov_b32 exec_hi, {hi:#x}")
    FULL = (0xffffffff, 0xffffffff)
    DPP = "row_mask:0xf bank_mask:0xf"
    M32 = "v_mfma_f32_16x16x32_bf16"

    NTOT = 1 + 8 + 8 + 32 + 2 + 32 + 8
    vm = dict(n=0, done=0, tag={})
    lab = [0]
    sTHR = "s99"
    def vwait(k):
        if k >= vm["done"]:
            A(f"s_waitcnt vmcnt({vm['n'] - 1 - k})")
            vm["done"] = k + 1
    def dwin(i):
        return o["d0"] if i < 9 else (o["d2"] if i >= NTOT - o["n2"] else o["d"])
    FB = o.get("fb", 0)
    def pacewait(i):
        d = dwin(i)
        if FB and 9 <= i < NTOT - o["n2"]:
            if i % FB == 0 and i >= o.get("fb0", 12):
                A("v_mov_b32 v9, 0")
                A("v_mov_b32 v10, 1")
                setexec(1, 0)
                A(f"ds_add_rtn_u32 v10, v9, v10 offset:{L_CNT+16+4*(i//FB)}")
                A("s_waitcnt lgkmcnt(0)")
                A(f"v_cmp_le_u32 vcc, {sTHR if i < o.get('slow_until', 0) else o.get('thr', 4)}, v10")
                setexec(*FULL)
            dhi = o.get("dhi", d + 1)
            vwait(min(i - dhi, vm["n"] - 1))
            k = min(i - d, vm["n"] - 1)
            if k >= vm["done"]:
                lab[0] += 1
                A(f"s_cbranch_vccnz L_sk{lab[0]}")
                A(f"s_waitcnt vmcnt({vm['n'] - 1 - k})")
                A(f"L_sk{lab[0]}:")
        elif i - d >= 0:
            vwait(min(i - d, vm["n"] - 1))
    def load(txt, tag=None, pace=True):
        i = vm["n"]
        if pace: pacewait(i)
        A(txt)
        if tag: vm["tag"][tag] = i
        vm["n"] += 1
    def need(tag): vwait(vm["tag"][tag])
    def run(seq, code, boost):
        base = vm["n"]; issued = 0
        for i in range(len(seq)):
            extra = vm["n"] - base - issued
            if i < issued:
                pacewait(base + extra + i)
            else:
                seq[i](True); issued = i + 1
            while issued < min(len(seq), i + 1 + boost.get(i, 0)):
                seq[issued](False); issued += 1
            for f in code.get(i, []): f()

    def spin_tail(label, done, sl=None):
        sl = o["sleep"] if sl is None else sl
        A(f"s_cbranch_scc1 {done}")
        A(f"s_sub_u32 {sCNT}, {sCNT}, 1")
        A(f"s_cbranch_scc1 {done}")
        if sl: A(f"s_sleep {sl}")
        A(f"s_branch {label}")
        A(f"{done}:")
    def arrive(k):
        A("v_mov_b32 v9, 0")
        A("v_mov_b32 v10, 1")
        setexec(1, 0)
        A(f"ds_add_u32 v9, v10 offset:{L_CNT+4*k}")
        setexec(*FULL)
    def wait_cnt(k):
        lab[0] += 1
        l = f"L_cnt{lab[0]}"
        A("v_mov_b32 v9, 0")
        A(f"s_mov_b32 {sCNT}, {o['spin']}")
        A(f"{l}:")
        A(f"ds_read_b32 v10, v9 offset:{L_CNT+4*k}")
        A("s_waitcnt lgkmcnt(0)")
        A(f"v_readfirstlane_b32 {sT1}, v10")
        A(f"s_cmp_eq_u32 {sT1}, 8")
        spin_tail(l, l + "d", 1)
    def tagcheck(d, t0, t1, dst):
        A(f"v_perm_b32 {v(t0)}, {v(d+1)}, {v(d)}, {sXA}")
        A(f"v_perm_b32 {v(t1)}, {v(d+3)}, {v(d+2)}, {sXB}")
        A(f"v_or_b32 {v(t0)}, {v(t0)}, {v(t1)}")
        A(f"v_cmp_ne_u32 {dst}, {sT}, {v(t0)}")
    def transpose_mfma(src, acc, other, first, tmp, a_is_tile, nrows=8):
        nt = nrows // 2
        op = M32 if nrows == 8 else "v_mfma_f32_16x16x16_bf16"
        def perms(e):
            t = tmp + 4 * (e % 4)
            for k in range(nt):
                A(f"v_perm_b32 {v(t+k)}, {v(src+4*(2*k+1)+(e>>1))}, {v(src+4*(2*k)+(e>>1))}, {sHI if e & 1 else sLO}")
        def mfma(e):
            t = v(tmp + 4 * (e % 4), nt)
            c = "0" if first else v(acc+4*e, 4)
            a, b = (t, other) if a_is_tile else (other, t)
            A(f"{op} {v(acc+4*e,4)}, {a}, {b}, {c}")
        perms(0)
        for e in range(8):
            if e < 7: perms(e+1)
            else: A("s_nop 1")
            mfma(e)
    def butterfly(op, x, t):
        for sw in ("v_permlane16_swap_b32", "v_permlane32_swap_b32"):
            A(f"v_mov_b32 {v(t)}, {v(x)}")
            A("s_nop 1")
            A(f"{sw} {v(x)}, {v(t)}")
            A(f"{op} {v(x)}, {v(x)}, {v(t)}")
    def write_O(br, acc):
        setexec(0x00ff00ff, 0x00ff00ff)
        for e in range(8):
            if e == 0:
                A(f"ds_write_b128 v28, {v(acc,4)} offset:{L_OP+32768*br}")
            else:
                A(f"v_xor_b32 {v(29+(e&1))}, {16*e}, v28")
                A(f"ds_write_b128 {v(29+(e&1))}, {v(acc+4*e,4)} offset:{L_OP+32768*br}")
        setexec(*FULL)

    stamp("start")
    A("s_cmp_ge_u32 s2, 256")
    A("s_cbranch_scc1 L_end")
    A("s_load_dwordx16 s[64:79], s[0:1], 0")
    A("s_load_dwordx8 s[80:87], s[0:1], 64")
    A("s_load_dwordx2 s[88:89], s[0:1], 96")
    A("v_lshrrev_b32 v1, 6, v0")
    A("v_and_b32 v0, 63, v0")
    A(f"v_readfirstlane_b32 {sW}, v1")
    A(f"s_and_b32 {sB}, s2, 1")
    A(f"s_bfe_u32 {sKVH}, s2, 0x20001")
    A(f"s_lshr_b32 {sSP}, s2, 3")
    A("v_lshrrev_b32 v9, 3, v0")
    A("v_and_b32 v10, 7, v0")
    A("v_lshlrev_b32 v10, 4, v10")
    A("v_lshl_or_b32 v3, v9, 16, v10")
    A("v_lshrrev_b32 v12, 4, v0")
    A("v_bfe_u32 v9, v0, 2, 1")
    A("v_and_b32 v10, 1, v0")
    A("v_lshl_or_b32 v10, v12, 1, v10")
    A("v_lshlrev_b32 v10, 4, v10")
    A("v_lshl_or_b32 v11, v9, 11, v10")
    A(f"s_and_b32 {sT1}, {sSP}, 1")
    A(f"s_lshl_b32 {sT1}, {sT1}, 3")
    A(f"s_add_u32 {sT1}, {sT1}, {sW}")
    A(f"s_lshl_b32 {sO}, {sT1}, 19")
    A(f"s_lshl_b32 {sO2}, {sT1}, 7")
    A(f"s_lshl_b32 {sT1}, {sKVH}, 11")
    A(f"s_lshr_b32 {sT2}, {sSP}, 1")
    A(f"s_lshl_b32 {sT2}, {sT2}, 7")
    A(f"s_add_u32 {sO}, {sO}, {sT1}")
    A(f"s_add_u32 {sO}, {sO}, {sT2}")
    A(f"s_mov_b32 s{SX+2}, 4096")
    A(f"s_mov_b32 s{SX+3}, 0x20000")
    A(f"s_mov_b32 s{SWQ+2}, 0x800000")
    A(f"s_mov_b32 s{SWQ+3}, 0x20000")
    A("v_mov_b32 v16, 0")
    A("v_lshlrev_b32 v17, 2, v0")
    A("s_mov_b64 vcc, 0")
    A(f"s_cmp_eq_u32 {sB}, 0")
    A("s_waitcnt lgkmcnt(0)")
    A(f"s_cselect_b64 s[{SX}:{SX+1}], s[64:65], s[74:75]")
    A(f"s_cselect_b64 s[{SWQ}:{SWQ+1}], s[70:71], s[80:81]")
    A(f"s_cselect_b64 s[{SWO}:{SWO+1}], s[72:73], s[82:83]")
    il = o.get("il", False)
    def ldWQ(i, pace=True):
        load(f"buffer_load_dwordx4 {v(64+4*i,4)}, v3, {srd(SWQ)}, {sO} offen {LD}", tag=f"WQ{i}", pace=pace)
        A(f"s_add_u32 {sO}, {sO}, 8192")
    nfirst = 2 if il else min(8, o["d0"])
    for i in range(nfirst): ldWQ(i)
    if o.get("wsoff"):
        A(f"s_add_u32 s88, s88, {o['wsoff']:#x}")
        A("s_addc_u32 s89, s89, 0")
    A(f"s_load_dword {sT}, s[88:89], 0")
    A(f"ds_write_b32 v17, v16 offset:{L_CNT}")
    if o.get("slow_until"):
        A(f"s_lshr_b32 {sT1}, s{SWQ}, 7")
        A(f"s_lshr_b32 {sT2}, {sSP}, 1")
        A(f"s_add_u32 {sT1}, {sT1}, {sT2}")
        A(f"s_and_b32 {sT1}, {sT1}, 7")
        A(f"s_cmp_eq_u32 {sT1}, 3")
        A(f"s_cselect_b32 {sTHR}, 0, {o.get('thr', 4)}")
    for b, p, n in ((SKA, 66, 0x4000000), (SVA, 68, 0x4000000), (SKB, 76, 0x4000000), (SVB, 78, 0x4000000),
                    (SWS, 88, WS_USED), (SOUT, 84, 8192)):
        A(f"s_mov_b64 s[{b}:{b+1}], s[{p}:{p+1}]")
        A(f"s_mov_b32 s{b+2}, {n:#x}")
        A(f"s_mov_b32 s{b+3}, 0x20000")
    A(f"s_mov_b32 s{SWO+2}, 0x800000")
    A(f"s_mov_b32 s{SWO+3}, 0x20000")
    A("v_lshlrev_b32 v2, 4, v0")
    A("v_bfe_u32 v9, v0, 1, 1")
    A("v_lshlrev_b32 v1, 4, v12")
    A("v_lshl_or_b32 v1, v9, 10, v1")
    A("v_bfe_u32 v9, v0, 2, 2")
    A("v_lshl_or_b32 v1, v9, 8, v1")
    A("v_and_b32 v9, 1, v0")
    A("v_lshl_or_b32 v1, v9, 6, v1")
    A(f"s_lshl_b32 {sG}, {sB}, 2")
    A(f"s_add_u32 {sG}, {sG}, {sKVH}")
    A(f"s_lshl_b32 {sT1}, {sG}, 23")
    A(f"s_lshl_b32 {sT2}, {sSP}, 3")
    A(f"s_add_u32 {sT2}, {sT2}, {sW}")
    A(f"s_lshl_b32 {sT2}, {sT2}, 12")
    A(f"s_add_u32 {sKA0}, {sT1}, {sT2}")
    A(f"s_add_u32 {sKB0}, {sKA0}, {28672*256}")
    A(f"s_mov_b32 {sLO}, 0x05040100")
    A(f"s_mov_b32 {sHI}, 0x07060302")
    A(f"s_mov_b32 {sXA}, 0x0c0c0400")
    A(f"s_mov_b32 {sXB}, 0x04000c0c")
    A(f"s_mov_b32 {sC}, {f32bits(128**-0.5 * math.log2(math.e)):#x}")
    for k in range(4): A(f"s_mov_b32 {sTI[k]}, {0x07060500+k:#x}")
    A("s_waitcnt lgkmcnt(0)")
    A("s_barrier")
    KOFF = [0, 128, 2048, 2176]
    def ldB(i, pace=True):
        if i < 4: load(f"buffer_load_dwordx4 {v(96+4*i,4)}, v1, {srd(SKB)}, {sKB0} offen offset:{KOFF[i]} {LD}", tag=f"B{i}", pace=pace)
        else: load(f"buffer_load_dwordx4 {v(96+4*i,4)}, v2, {srd(SVB)}, {sKB0} offen offset:{1024*(i-4)} {LD}", tag=f"B{i}", pace=pace)
    nB = 0
    for i in range(nfirst, 8):
        if il and nB < 5: ldB(nB); nB += 1
        ldWQ(i)
    load(f"buffer_load_dwordx4 v[4:7], v11, {srd(SX)}, {sO2} offen", tag="wq", pace=False)
    A(f"s_mul_i32 {sT}, {sT}, 0x9e3779b1")
    A(f"s_add_u32 {sT}, {sT}, 0x7f4a7c15")
    A(f"v_mov_b32 v8, {sT}")

    def blk_start():
        if o["skew"]: A(f"s_lshl_b32 {sR}, {sG}, 20")
        else: A(f"s_mov_b32 {sR}, 0")
        A(f"s_add_u32 {sO}, {sKA0}, {sR}")
    def blk_step():
        A(f"s_add_u32 {sR}, {sR}, 0x100000")
        A(f"s_and_b32 {sR}, {sR}, 0x7fffff")
        A(f"s_add_u32 {sO}, {sKA0}, {sR}")
    def ldK(i, pace=True):
        if i == 0: blk_start()
        elif i % 4 == 0: blk_step()
        load(f"buffer_load_dwordx4 {v(128+4*i,4)}, v1, {srd(SKA)}, {sO} offen offset:{KOFF[i%4]} {LD}", tag=f"K{i}", pace=pace)
    def ldV(i, pace=True):
        if i == 0: blk_start()
        elif i % 4 == 0: blk_step()
        load(f"buffer_load_dwordx4 {v(128+4*i,4)}, v2, {srd(SVA)}, {sO} offen offset:{1024*(i%4)} {LD}", tag=f"V{i}", pace=pace)
    sWO = "s100"
    def ldWO(i, pace=True):
        load(f"buffer_load_dwordx4 {v(96+4*i,4)}, v3, {srd(SWO)}, {sWO} offen {LD}", tag=f"WO{i}", pace=pace)
        if i < 7: A(f"s_add_u32 {sWO}, {sWO}, 8192")

    for i in range(3):
        vwait(vm["tag"]["wq"] - 3 + i)
        ldB(nB, pace=False); nB += 1
    need("wq")
    stamp("wq_land")
    transpose_mfma(64, 32, "v[4:7]", True, 32 if False else 224, False)
    kpre = 0
    def more():
        nonlocal nB, kpre
        if nB < 8: ldB(nB); nB += 1
        else: ldK(kpre); kpre += 1
    more()
    A("v_and_b32 v9, 15, v0")
    A("v_lshlrev_b32 v9, 5, v9")
    A("v_lshl_or_b32 v9, v12, 8, v9")
    A(f"s_lshl_b32 {sT1}, {sW}, 9")
    A(f"v_add_u32 v13, {sT1}, v9")
    for e in range(8):
        if e == 7: A("s_nop 0")
        A(f"v_add_f32_dpp {v(64+e)}, {v(33+4*e)}, {v(32+4*e)} row_ror:8 {DPP}")
    setexec(0x00ff00ff, 0)
    A(f"ds_write_b128 v13, v[64:67] offset:{L_QP}")
    A(f"ds_write_b128 v13, v[68:71] offset:{L_QP+16}")
    setexec(*FULL)
    arrive(0)
    more()
    A(f"s_cmp_lg_u32 {sW}, 0")
    A("s_cbranch_scc1 L_noqpub")
    A("v_and_b32 v13, 15, v0")
    A("v_lshlrev_b32 v13, 4, v13")
    A("v_lshl_or_b32 v13, v12, 13, v13")
    A(f"s_lshl_b32 {sO2}, {sG}, 14")
    A(f"s_and_b32 {sT2}, {sSP}, 1")
    A(f"s_lshl_b32 {sT2}, {sT2}, 12")
    A(f"s_add_u32 {sO2}, {sO2}, {sT2}")
    A(f"s_lshr_b32 {sT2}, {sSP}, 1")
    A(f"s_lshl_b32 {sT2}, {sT2}, 8")
    A(f"s_add_u32 {sO2}, {sO2}, {sT2}")
    A(f"s_add_u32 {sO2}, {sO2}, {WS_Q}")
    wait_cnt(0)
    for w in range(8): A(f"ds_read_b128 {v(32+4*w,4)}, v2 offset:{L_QP+512*w}")
    for w in range(1, 8):
        A(f"s_waitcnt lgkmcnt({7-w})")
        for k in range(4): A(f"v_add_f32 {v(32+k)}, {v(32+k)}, {v(32+4*w+k)}")
    for k in range(4): A(f"v_perm_b32 {v(32+k)}, {v(32+k)}, v8, {sTI[k]}")
    setexec(0xffffffff, 0)
    A(f"buffer_store_dwordx4 v[32:35], v13, {srd(SWS)}, {sO2} offen {HS}")
    setexec(*FULL)
    stamp("q_pub")
    A("L_noqpub:")
    while nB < 8: more()

    gq = o["gq"]
    def q_issue():
        A(f"s_lshl_b32 {sT1}, {sKVH}, 1")
        A(f"s_add_u32 {sT1}, {sT1}, {sB}")
        A(f"s_lshl_b32 {sT1}, {sT1}, 13")
        A(f"s_lshr_b32 {sT2}, {sW}, 2")
        A(f"s_lshl_b32 {sT2}, {sT2}, 16")
        A(f"s_add_u32 {sT1}, {sT1}, {sT2}")
        A(f"s_and_b32 {sT2}, {sW}, 3")
        A(f"s_lshl_b32 {sT2}, {sT2}, 10")
        A(f"s_add_u32 {sT1}, {sT1}, {sT2}")
        A(f"s_add_u32 s4, {sT1}, {WS_Q}")
        A(f"s_add_u32 s5, s4, 4096")
        load(f"buffer_load_dwordx4 v[16:19], v2, {srd(SWS)}, s4 offen {HL}", pace=False)
        load(f"buffer_load_dwordx4 v[20:23], v2, {srd(SWS)}, s5 offen {HL}", tag="Q", pace=False)
    def q_check():
        need("Q")
        A(f"s_mov_b32 {sCNT}, {o['spin']}")
        A("L_qpoll:")
        tagcheck(16, 9, 10, "s[6:7]")
        tagcheck(20, 9, 10, "s[58:59]")
        A("s_or_b64 s[6:7], s[6:7], s[58:59]")
        A("s_cmp_eq_u64 s[6:7], 0")
        A("s_cbranch_scc1 L_qdone")
        A(f"s_sub_u32 {sCNT}, {sCNT}, 1")
        A("s_cbranch_scc1 L_qdone")
        A("s_sleep 8")
        A(f"buffer_load_dwordx4 v[16:19], v2, {srd(SWS)}, s4 offen {HL}")
        A(f"buffer_load_dwordx4 v[20:23], v2, {srd(SWS)}, s5 offen {HL}")
        A("s_waitcnt vmcnt(0)")
        A("s_branch L_qpoll")
        A("L_qdone:")
        if stamps: A(f"s_mov_b32 s61, {sCNT}")
        stamp("q_got")
        for k in range(4): A(f"v_add_f32 {v(16+k)}, {v(16+k)}, {v(20+k)}")
        A(f"s_lshl_b32 {sT1}, {sW}, 9")
        A("v_lshlrev_b32 v13, 3, v0")
        A(f"v_add_u32 v13, {sT1}, v13")
        A("v_cvt_pk_bf16_f32 v16, v16, v17")
        A("v_cvt_pk_bf16_f32 v17, v18, v19")
        A(f"ds_write_b64 v13, v[16:17] offset:{L_QS}")
        arrive(1)
    def q_read():
        A("v_and_b32 v13, 7, v0")
        A("v_lshlrev_b32 v28, 4, v13")
        A("v_lshl_or_b32 v28, v13, 9, v28")
        A("v_lshl_or_b32 v28, v12, 7, v28")
        A(f"s_lshl_b32 {sT1}, {sW}, 12")
        A(f"v_add_u32 v28, {sT1}, v28")
        A("v_lshlrev_b32 v13, 8, v13")
        A("v_lshl_or_b32 v13, v12, 4, v13")
        A("v_bfe_u32 v14, v0, 3, 1")
        A("v_lshl_or_b32 v13, v14, 6, v13")
        wait_cnt(1)
        stamp("q_lds")
        A(f"ds_read_b128 v[56:59], v13 offset:{L_QS+2048}")
        A(f"ds_read_b128 v[60:63], v13 offset:{L_QS+2048+128}")
        A(f"ds_read_b128 v[48:51], v13 offset:{L_QS}")
        A(f"ds_read_b128 v[52:55], v13 offset:{L_QS+128}")
    def qk_B():
        need("B7")
        A("s_waitcnt lgkmcnt(2)")
        for g in range(2): A(f"{M32} {v(32+4*g,4)}, {v(96+8*g,4)}, v[56:59], 0")
        for g in range(2): A(f"{M32} {v(32+4*g,4)}, {v(100+8*g,4)}, v[60:63], {v(32+4*g,4)}")
        A(f"s_lshl_b32 {sT1}, {sW}, 2")
        A("v_lshlrev_b32 v31, 5, v0")
        A(f"v_add_u32 v31, {sT1}, v31")
        A("s_nop 4")
        for g in range(2):
            for a in range(2):
                A(f"v_add_f32_dpp {v(16+2*g+a)}, {v(32+4*g+2*a+1)}, {v(32+4*g+2*a)} row_ror:8 {DPP}")
    def sm_B():
        A("s_waitcnt lgkmcnt(0)")
        A("v_max3_f32 v23, v16, v17, v18")
        A("v_max_f32 v23, v23, v19")
        butterfly("v_max_f32", 23, 27)
        A(f"v_mul_f32 v23, {sC}, v23")
        for i in range(4): A(f"v_fma_f32 {v(16+i)}, {v(16+i)}, {sC}, -v23")
        for i in range(4): A(f"v_exp_f32 {v(16+i)}, {v(16+i)}")
        A("v_add_f32 v25, v16, v17")
        A("v_add_f32 v27, v18, v19")
        A("v_cvt_pk_bf16_f32 v20, v16, v17")
        A("v_cvt_pk_bf16_f32 v21, v18, v19")
        A("v_add_f32 v25, v25, v27")
        butterfly("v_add_f32", 25, 27)
        setexec(0xff, 0)
        A(f"ds_write_b32 v31, v23 offset:{L_ML+512}")
        A(f"ds_write_b32 v31, v25 offset:{L_ML+768}")
        setexec(*FULL)
    def pv_B():
        transpose_mfma(112, 64, "v[20:21]", True, 32, True, nrows=4)
    def wr_B():
        A("s_nop 3")
        write_O(1, 64)
    def qk(t):
        kb = 128 + 32*t
        need(f"K{8*t+7}")
        for g in range(4): A(f"{M32} {v(32+4*g,4)}, {v(kb+8*g,4)}, v[48:51], 0")
        for g in range(4): A(f"{M32} {v(32+4*g,4)}, {v(kb+8*g+4,4)}, v[52:55], {v(32+4*g,4)}")
        A("s_nop 4")
        for g in range(4):
            for a in range(2):
                if g == 3 and a == 0: A("s_nop 0")
                A(f"v_add_f32_dpp {v(64+8*t+2*g+a)}, {v(32+4*g+2*a+1)}, {v(32+4*g+2*a)} row_ror:8 {DPP}")
    kcode = {gq: [q_issue], gq+3: [q_check], gq+6: [q_read], gq+7: [qk_B], gq+8: [sm_B], gq+9: [pv_B], gq+10: [wr_B],
             gq+11: [lambda: qk(0)], gq+12: [lambda: qk(1)]}
    kcode.setdefault(max(gq+13, 27), []).append(lambda: qk(2))
    assert max(kcode) <= 31
    bk = o.get("bk", 0)
    kboost = {i: bk for i in range(gq+6, gq+14)}
    run([(lambda pace, i=i: ldK(i, pace)) for i in range(kpre, 32)], {i - kpre: f for i, f in kcode.items()}, {i - kpre: f for i, f in kboost.items()})

    def sm_max():
        A("v_max3_f32 v22, v64, v65, v66")
        A("v_max3_f32 v26, v67, v68, v69")
        left = list(range(70, 96)); k = 0
        while left:
            dst = 22 if k % 2 == 0 else 26
            a, b = left.pop(0), left.pop(0)
            A(f"v_max3_f32 {v(dst)}, {v(dst)}, {v(a)}, {v(b)}")
            k += 1
        A("v_max_f32 v22, v22, v26")
        butterfly("v_max_f32", 22, 26)
        A(f"v_mul_f32 v22, {sC}, v22")
        stamp("S_done")
    def sm_exp(t):
        b = 64 + 8*t
        for i in range(8): A(f"v_fma_f32 {v(b+i)}, {v(b+i)}, {sC}, -v22")
        for i in range(8): A(f"v_exp_f32 {v(b+i)}, {v(b+i)}")
        if t == 0:
            A(f"v_add_f32 v24, {v(b)}, {v(b+1)}")
            A(f"v_add_f32 v26, {v(b+2)}, {v(b+3)}")
            r = range(4, 8, 2)
        else:
            r = range(0, 8, 2)
        for i in r:
            A(f"v_add_f32 v24, v24, {v(b+i)}")
            A(f"v_add_f32 v26, v26, {v(b+i+1)}")
        for k in range(4): A(f"v_cvt_pk_bf16_f32 {v(64+4*t+k)}, {v(b+2*k)}, {v(b+2*k+1)}")
    def sm_sum():
        A("v_add_f32 v24, v24, v26")
        butterfly("v_add_f32", 24, 26)
        setexec(0xff, 0)
        A(f"ds_write_b32 v31, v22 offset:{L_ML}")
        A(f"ds_write_b32 v31, v24 offset:{L_ML+256}")
        setexec(*FULL)
        arrive(2)
    sH1W, sMLW, sH1R, sMLR, sH2W, sH2R, sF2W, sF2R = "s20", "s21", "s22", "s23", "s24", "s25", "s26", "s27"
    def addr2():
        A(f"s_and_b32 {sT1}, {sW}, 3")
        A(f"s_lshl_b32 {sT1}, {sT1}, 6")
        A(f"v_add_u32 v9, {sT1}, v0")
        A("v_lshrrev_b32 v10, 5, v9")
        A("v_lshrrev_b32 v11, 3, v9")
        A("v_and_b32 v13, 7, v0")
        A("v_xor_b32 v14, v13, v10")
        A("v_lshlrev_b32 v14, 4, v14")
        A("v_lshl_or_b32 v14, v11, 7, v14")
        A("v_lshlrev_b32 v15, 5, v10")
        A("v_lshlrev_b32 v13, 4, v13")
        A("v_lshl_or_b32 v11, v11, 13, v13")
        A(f"s_lshr_b32 {sT2}, {sW}, 2")
        A(f"s_lshl_b32 {sT2}, {sT2}, 2")
        A(f"s_add_u32 {sT2}, {sT2}, {sKVH}")
        A(f"s_lshl_b32 {sT1}, {sB}, 5")
        A(f"s_add_u32 {sT1}, {sT1}, {sSP}")
        A(f"s_lshl_b32 {sT1}, {sT1}, 7")
        A(f"s_lshl_b32 {sH1W}, {sT2}, 18")
        A(f"s_add_u32 {sH1W}, {sH1W}, {sT1}")
        A(f"s_add_u32 {sH1W}, {sH1W}, {WS_H1}")
        A(f"s_lshl_b32 {sMLW}, {sT2}, 13")
        A(f"s_add_u32 {sMLW}, {sMLW}, {sT1}")
        A(f"s_add_u32 {sMLW}, {sMLW}, {WS_ML}")
        A("v_and_b32 v3, 15, v0")
        A("v_lshlrev_b32 v3, 4, v3")
        A("v_lshl_or_b32 v3, v12, 11, v3")
        A(f"s_lshl_b32 {sT1}, {sKVH}, 5")
        A(f"s_add_u32 {sT1}, {sT1}, {sSP}")
        A(f"s_lshl_b32 {sWO}, {sT1}, 16")
        A(f"s_lshl_b32 {sT2}, {sW}, 8")
        A(f"s_add_u32 {sWO}, {sWO}, {sT2}")
    def duties():
        A(f"s_cmp_lt_u32 {sW}, 4")
        A("s_cbranch_scc1 L_notB")
        wait_cnt(2)
        A(f"ds_read_b128 v[32:35], v15 offset:{L_ML+512}")
        A(f"ds_read_b128 v[36:39], v15 offset:{L_ML+512+16}")
        A("v_add_u32 v13, 32768, v14")
        for w in range(8): A(f"ds_read_b128 {v(96+4*w,4)}, v13 offset:{L_OP+4096*w}")
        A(f"ds_read_b128 v[40:43], v15 offset:{L_ML+768}")
        A(f"ds_read_b128 v[44:47], v15 offset:{L_ML+768+16}")
        A("s_waitcnt lgkmcnt(10)")
        A("v_max3_f32 v48, v32, v33, v34")
        A("v_max3_f32 v49, v35, v36, v37")
        A("v_max3_f32 v48, v48, v38, v39")
        A("v_max_f32 v48, v48, v49")
        for w in range(8): A(f"v_sub_f32 {v(32+w)}, {v(32+w)}, v48")
        for w in range(8): A(f"v_exp_f32 {v(32+w)}, {v(32+w)}")
        A("s_waitcnt lgkmcnt(0)")
        for k in range(4): A(f"v_mul_f32 {v(52+k)}, v32, {v(96+k)}")
        for w in range(1, 8):
            for k in range(4): A(f"v_fmac_f32 {v(52+k)}, {v(32+w)}, {v(96+4*w+k)}")
        for k in range(4): A(f"v_perm_b32 {v(52+k)}, {v(52+k)}, v8, {sTI[k]}")
        A(f"buffer_store_dwordx4 v[52:55], v11, {srd(SWS)}, {sH1W} offen {HS}")
        A("v_mul_f32 v49, v32, v40")
        for w in range(1, 8): A(f"v_fmac_f32 v49, {v(32+w)}, {v(40+w)}")
        A("v_mov_b32 v50, v8")
        A("v_mov_b32 v51, v8")
        A("v_lshrrev_b32 v10, 1, v15")
        setexec(1, 1)
        A(f"buffer_store_dwordx4 v[48:51], v10, {srd(SWS)}, {sMLW} offen {HS}")
        setexec(*FULL)
        A("s_branch L_dutydone")
        A("L_notB:")
        A(f"s_cmp_lg_u32 {sW}, 1")
        A("s_cbranch_scc1 L_dutydone")
        wait_cnt(2)
        A("v_lshlrev_b32 v10, 5, v0")
        setexec(0xff, 0)
        A(f"ds_read_b128 v[32:35], v10 offset:{L_ML}")
        A(f"ds_read_b128 v[36:39], v10 offset:{L_ML+16}")
        A(f"ds_read_b128 v[40:43], v10 offset:{L_ML+256}")
        A(f"ds_read_b128 v[44:47], v10 offset:{L_ML+256+16}")
        A("s_waitcnt lgkmcnt(2)")
        A("v_max3_f32 v4, v32, v33, v34")
        A("v_max3_f32 v5, v35, v36, v37")
        A("v_max3_f32 v4, v4, v38, v39")
        A("v_max_f32 v4, v4, v5")
        for w in range(8): A(f"v_sub_f32 {v(32+w)}, {v(32+w)}, v4")
        for w in range(8): A(f"v_exp_f32 {v(32+w)}, {v(32+w)}")
        A("v_mov_b32 v6, v8")
        A("v_mov_b32 v7, v8")
        A(f"ds_write_b128 v10, v[32:35] offset:{L_F}")
        A(f"ds_write_b128 v10, v[36:39] offset:{L_F+16}")
        A("s_waitcnt lgkmcnt(2)")
        A("v_mul_f32 v5, v32, v40")
        for w in range(1, 8): A(f"v_fmac_f32 v5, {v(32+w)}, {v(40+w)}")
        setexec(*FULL)
        A("L_dutydone:")
    def pv(t):
        need(f"V{8*t+7}")
        transpose_mfma(128+32*t, 32, v(64+4*t, 4), t == 0, 80, True)
    def addr3():
        A(f"s_lshl_b32 {sH1R}, {sG}, 5")
        A(f"s_add_u32 {sH1R}, {sH1R}, {sSP}")
        A(f"s_lshl_b32 {sH1R}, {sH1R}, 13")
        A(f"s_lshr_b32 {sT1}, {sW}, 2")
        A(f"s_lshl_b32 {sT1}, {sT1}, 12")
        A(f"s_add_u32 {sH1R}, {sH1R}, {sT1}")
        A(f"s_and_b32 {sO2}, {sW}, 3")
        A(f"s_lshl_b32 {sO2}, {sO2}, 5")
        A(f"s_add_u32 {sH1R}, {sH1R}, {sO2}")
        A(f"s_add_u32 {sH1R}, {sH1R}, {WS_H1}")
        A(f"s_lshl_b32 {sMLR}, {sG}, 13")
        A(f"s_lshr_b32 {sO2}, {sSP}, 2")
        A(f"s_lshl_b32 {sO2}, {sO2}, 4")
        A(f"s_add_u32 {sMLR}, {sMLR}, {sO2}")
        A(f"s_add_u32 {sMLR}, {sMLR}, {WS_ML}")
        A(f"s_lshl_b32 {sT1}, {sKVH}, 5")
        A(f"s_add_u32 {sT1}, {sT1}, {sSP}")
        A(f"s_lshl_b32 {sH2W}, {sB}, 20")
        A(f"s_lshl_b32 {sT2}, {sW}, 16")
        A(f"s_add_u32 {sH2W}, {sH2W}, {sT2}")
        A(f"s_lshl_b32 {sT2}, {sT1}, 6")
        A(f"s_add_u32 {sH2W}, {sH2W}, {sT2}")
        A(f"s_add_u32 {sH2W}, {sH2W}, {WS_H2}")
        A(f"s_lshl_b32 {sF2W}, {sW}, 15")
        A(f"s_lshl_b32 {sT2}, {sKVH}, 7")
        A(f"s_add_u32 {sF2W}, {sF2W}, {sT2}")
        A(f"s_add_u32 {sF2W}, {sF2W}, {WS_F2}")
        A(f"s_lshl_b32 {sF2R}, s2, 9")
        A(f"s_lshr_b32 {sT2}, {sW}, 1")
        A(f"s_lshl_b32 {sT2}, {sT2}, 7")
        A(f"s_add_u32 {sF2R}, {sF2R}, {sT2}")
        A(f"s_add_u32 {sF2R}, {sF2R}, {WS_F2}")
        A("s_bfe_u32 s7, s2, 0x10001")
        A("s_lshr_b32 s6, s2, 2")
        A(f"s_xor_b32 s8, {sB}, {1 if o.get('swap') else 0}")
        A(f"s_lshl_b32 {sT1}, s8, 1")
        A(f"s_add_u32 {sT1}, {sT1}, s7")
        A(f"s_lshl_b32 {sT1}, {sT1}, 6")
        A(f"s_add_u32 {sT1}, {sT1}, s6")
        A(f"s_lshl_b32 {sH2R}, {sT1}, 13")
        A(f"s_lshl_b32 {sT1}, {sW}, 10")
        A(f"s_add_u32 {sH2R}, {sH2R}, {sT1}")
        A(f"s_add_u32 {sH2R}, {sH2R}, {WS_H2}")
        A("s_mov_b32 s10, 0")
        A("s_mov_b32 s11, -1")
        if o["f2pos"] == "brep":
            A(f"s_xor_b32 s9, {sB}, 1")
            A(f"s_or_b32 s9, s9, {sSP}")
            A(f"s_lshl_b32 s5, {sKVH}, 13")
            A(f"s_add_u32 s5, s5, {WS_ML}")
        else:
            A(f"s_or_b32 s9, {sB}, {sSP}")
        A(f"s_lshr_b32 {sT1}, {sW}, 2")
        A(f"s_or_b32 s9, s9, {sT1}")
    vMLG, vH1G, vOAW, vOAR, vH2S, vFPW, vZ, vFL, vWR = 64, 65, 66, 67, 68, 69, 70, 71, 72
    def addr4():
        A("v_lshrrev_b32 v9, 1, v0")
        A("v_and_b32 v10, 1, v0")
        A("v_lshlrev_b32 v10, 4, v10")
        A(f"v_lshlrev_b32 {v(vMLG)}, 7, v0")
        A(f"v_lshl_or_b32 {v(vH1G)}, v9, 7, v10")
        A(f"s_lshr_b32 {sT1}, {sW}, 2")
        A(f"s_lshl_b32 {sT2}, {sT1}, 8")
        A(f"v_lshl_add_u32 {v(vWR)}, v9, 3, {sT2}")
        A(f"s_lshl_b32 {sT1}, {sT1}, 6")
        A(f"s_and_b32 {sT2}, {sW}, 1")
        A(f"s_lshl_b32 {sT2}, {sT2}, 5")
        A(f"s_add_u32 {sT1}, {sT1}, {sT2}")
        A(f"s_and_b32 {sT2}, {sW}, 2")
        A(f"s_add_u32 {sT1}, {sT1}, {sT2}")
        A(f"v_lshl_or_b32 {v(vOAW)}, v12, 2, v10")
        A(f"v_add_u32 {v(vOAW)}, {sT1}, {v(vOAW)}")
        A(f"v_bfe_u32 {v(vOAR)}, v0, 2, 1")
        A(f"v_lshlrev_b32 {v(vOAR)}, 6, {v(vOAR)}")
        A(f"v_lshl_or_b32 {v(vOAR)}, v12, 4, {v(vOAR)}")
        A("v_bfe_u32 v9, v0, 4, 1")
        A("v_lshlrev_b32 v9, 19, v9")
        A("v_bfe_u32 v10, v0, 1, 3")
        A("v_lshl_or_b32 v9, v10, 13, v9")
        A("v_and_b32 v10, 1, v0")
        A("v_lshl_or_b32 v9, v10, 5, v9")
        A("v_lshrrev_b32 v10, 5, v0")
        A(f"v_lshl_or_b32 {v(vH2S)}, v10, 4, v9")
        A("v_and_b32 v9, 3, v0")
        A("v_lshlrev_b32 v9, 7, v9")
        A("v_lshl_or_b32 v9, v12, 5, v9")
        A(f"s_lshl_b32 {sT1}, {sW}, 2")
        A(f"v_add_u32 {v(vFPW)}, {sT1}, v9")
        A(f"v_mov_b32 {v(vZ)}, 0")
        A(f"v_lshlrev_b32 {v(vFL)}, 9, v0")
    vcode = {2: [lambda: qk(3)], 3: [sm_max], 4: [lambda: sm_exp(0)], 5: [lambda: sm_exp(1)], 6: [lambda: sm_exp(2)],
             7: [lambda: sm_exp(3)], 8: [sm_sum], 9: [addr2], 11: [duties], 13: [lambda: pv(0)], 15: [addr3], 18: [lambda: pv(1)],
             }
    p2 = o.get("pv2", min(30, 23 + (o["d2"] if o["n2"] >= 16 else o["d"]) - o["wo_before"]))
    p2 = max(p2, 24)
    vcode[p2] = [lambda: pv(2)]
    vcode.setdefault(p2 + 1, []).append(addr4)
    nb = o["wo_before"]
    bv, bd = o.get("bv", 0), o.get("bd", 0)
    vboost = {i: bv for i in range(2, 19)}
    vboost[11] = bd; vboost[12] = max(bv, bd - 1)
    seq = [(lambda pace, i=i: ldV(i, pace)) for i in range(24)] + [(lambda pace, k=k: ldWO(k, pace)) for k in range(nb)] + [(lambda pace, i=i: ldV(i, pace)) for i in range(24, 32)]
    vcode = {(i if i < 24 else i + nb): f for i, f in vcode.items()}
    run(seq, vcode, vboost)
    def ml_pub():
        A(f"s_cmp_lg_u32 {sW}, 1")
        A("s_cbranch_scc1 L_noml")
        setexec(0xff, 0)
        A(f"buffer_store_dwordx4 v[4:7], v2, {srd(SWS)}, {sMLW} offen {HS}")
        setexec(*FULL)
        A("L_noml:")
    for k in range(nb, 8):
        i = vm["n"]
        ldWO(k, pace=(i - o["d2"] <= vm["tag"]["V31"]))
    assert vm["n"] == NTOT
    need("V31")
    stamp("lastV")
    if o["mlpos"] == "lastV": ml_pub()
    pv(3)
    if o["mlpos"] == "pv": ml_pub()
    A("s_nop 5")
    write_O(0, 32)
    if o["mlpos"] == "wr": ml_pub()
    A("s_waitcnt lgkmcnt(0)")
    A("s_barrier")
    stamp("bar_O")
    if o["mlpos"] == "bar": ml_pub()
    A(f"s_cmp_ge_u32 {sW}, 4")
    A("s_cbranch_scc1 L_nocomb")
    A(f"ds_read_b128 v[128:131], v15 offset:{L_F}")
    for w in range(4): A(f"ds_read_b128 {v(160+4*w,4)}, v14 offset:{L_OP+4096*w}")
    A(f"ds_read_b128 v[132:135], v15 offset:{L_F+16}")
    for w in range(4, 8): A(f"ds_read_b128 {v(160+4*w,4)}, v14 offset:{L_OP+4096*w}")
    A("s_waitcnt lgkmcnt(8)")
    for k in range(4): A(f"v_mul_f32 {v(148+k)}, v128, {v(160+k)}")
    for w in range(1, 8):
        A(f"s_waitcnt lgkmcnt({8-w if w < 4 else 7-w})")
        for k in range(4): A(f"v_fmac_f32 {v(148+k)}, {v(128+w)}, {v(160+4*w+k)}")
    for k in range(4): A(f"v_perm_b32 {v(148+k)}, {v(148+k)}, v8, {sTI[k]}")
    A(f"buffer_store_dwordx4 v[148:151], v11, {srd(SWS)}, {sH1W} offen {HS}")
    stamp("pub1")
    A("s_waitcnt vmcnt(1)")
    A("s_branch L_wot")
    A("L_nocomb:")
    stamp("pub1")
    A("s_waitcnt vmcnt(0)")
    A("L_wot:")
    stamp("wo_land")
    for e in range(8):
        for k in range(4):
            A(f"v_perm_b32 {v(192+4*e+k)}, {v(96+4*(2*k+1)+(e>>1))}, {v(96+4*(2*k)+(e>>1))}, {sHI if e & 1 else sLO}")
    A(f"s_mov_b32 {sCNT}, {o['spin']}")
    A(f"s_cmp_lg_u32 {sW}, 4")
    A("s_cbranch_scc1 L_mldone")
    if o.get("mlsleep0"): A(f"s_sleep {o['mlsleep0']}")
    A("L_mlpoll:")
    A(f"buffer_load_dwordx4 v[16:19], {v(vMLG)}, {srd(SWS)}, {sMLR} offen {HL}")
    A("s_waitcnt vmcnt(0)")
    A(f"v_cmp_ne_u32 vcc, {sT}, v18")
    A(f"v_cmp_ne_u32 s[58:59], {sT}, v19")
    A("s_or_b64 vcc, vcc, s[58:59]")
    A("s_and_b64 exec, exec, vcc")
    A("s_cbranch_scc0 L_mlall")
    A(f"s_sub_u32 {sCNT}, {sCNT}, 1")
    A("s_cbranch_scc1 L_mlall")
    if o.get("mlsleep", 2): A(f"s_sleep {o.get('mlsleep', 2)}")
    A("s_branch L_mlpoll")
    A("L_mlall:")
    setexec(*FULL)
    A("v_lshlrev_b32 v9, 3, v0")
    A(f"ds_write_b64 v9, v[16:17] offset:{L_W}")
    A("s_waitcnt lgkmcnt(0)")
    A("L_mldone:")
    A("s_barrier")
    stamp("ml_got")
    if o["odelay"]: A(f"s_sleep {o['odelay']}")
    A(f"buffer_load_dwordx4 v[20:23], {v(vH1G)}, {srd(SWS)}, {sH1R} offen {HL}")
    A(f"ds_read_b64 v[16:17], {v(vWR)} offset:{L_W}")
    def flag2():
        A("s_cmp_lg_u32 s9, 0")
        A("s_cbranch_scc1 L_nof2")
        A(f"buffer_store_dword v8, {v(vFL)}, {srd(SWS)}, {sF2W} offen {HS}")
        A("L_nof2:")
    def allreduce32(op, x, t):
        A("s_nop 1")
        A(f"{op}_dpp {v(x)}, {v(x)}, {v(x)} quad_perm:[2,3,0,1] {DPP}")
        A("s_nop 1")
        A(f"{op}_dpp {v(x)}, {v(x)}, {v(x)} row_ror:4 {DPP}")
        A("s_nop 1")
        A(f"{op}_dpp {v(x)}, {v(x)}, {v(x)} row_ror:8 {DPP}")
        butterfly(op, x, t)
    if o["f2pos"] == "ml": flag2()
    A("s_waitcnt lgkmcnt(0)")
    A("v_mov_b32 v24, v16")
    allreduce32("v_max_f32", 24, 25)
    A("v_sub_f32 v24, v16, v24")
    A("v_exp_f32 v24, v24")
    A("s_nop 0")
    A("v_mul_f32 v26, v24, v17")
    allreduce32("v_add_f32", 26, 25)
    A("v_rcp_f32 v26, v26")
    A("s_nop 0")
    A("v_mul_f32 v24, v24, v26")
    if stamps: A(f"s_mov_b32 s95, {sCNT}")
    A(f"s_mov_b32 {sCNT}, {o['spin']}")
    A("s_waitcnt vmcnt(0)")
    A("L_opoll:")
    tagcheck(20, 25, 26, "vcc")
    A("s_cmp_eq_u64 vcc, 0")
    A("s_cbranch_scc1 L_odone")
    A(f"s_sub_u32 {sCNT}, {sCNT}, 1")
    A("s_cbranch_scc1 L_odone")
    if o["sleep"]: A(f"s_sleep {o['sleep']}")
    A(f"buffer_load_dwordx4 v[20:23], {v(vH1G)}, {srd(SWS)}, {sH1R} offen {HL}")
    A("s_waitcnt vmcnt(0)")
    A("s_branch L_opoll")
    A("L_odone:")
    stamp("hop1")
    if stamps: A(f"s_mov_b32 s96, {sCNT}")
    if o["f2pos"] == "hop1": flag2()
    for k in range(4): A(f"v_mul_f32 {v(20+k)}, v24, {v(20+k)}")
    def fold4(d):
        A("s_nop 0")
        A(f"v_permlane16_swap_b32 {v(d)}, {v(d+1)}")
        A(f"v_permlane16_swap_b32 {v(d+2)}, {v(d+3)}")
        A(f"v_add_f32 {v(d)}, {v(d)}, {v(d+1)}")
        A(f"v_add_f32 {v(d+2)}, {v(d+2)}, {v(d+3)}")
        A("s_nop 1")
        A(f"v_permlane32_swap_b32 {v(d)}, {v(d+2)}")
        A(f"v_add_f32 {v(d)}, {v(d)}, {v(d+2)}")
        A("s_nop 1")
        A(f"v_add_f32_dpp {v(d)}, {v(d)}, {v(d)} row_ror:8 {DPP}")
        A("s_nop 1")
        A(f"v_add_f32_dpp {v(d)}, {v(d)}, {v(d)} row_ror:4 {DPP}")
    A("s_nop 0")
    fold4(20)
    A("s_nop 1")
    A(f"v_add_f32_dpp v20, v20, v20 quad_perm:[2,3,0,1] {DPP}")
    A("v_cvt_pk_bf16_f32 v20, v20, v20")
    setexec(0x00030003, 0x00030003)
    A(f"ds_write_b16 {v(vOAW)}, v20 offset:{L_OA}")
    setexec(*FULL)
    A("s_waitcnt lgkmcnt(0)")
    A("s_barrier")
    A(f"ds_read_b128 v[28:31], {v(vOAR)} offset:{L_OA}")
    if o["f2pos"] == "oabar": flag2()
    A("s_waitcnt lgkmcnt(0)")
    for e in range(8): A(f"{M32} {v(32+4*e,4)}, v[28:31], {v(192+4*e,4)}, 0")
    A("s_nop 4")
    for k in range(4):
        if k == 3: A("s_nop 0")
        A(f"v_cndmask_b32 {v(16+k)}, {v(32+4*k)}, {v(48+4*k)}, s[10:11]")
    for k in range(4): A(f"v_perm_b32 {v(16+k)}, {v(16+k)}, v8, {sTI[k]}")
    A(f"buffer_store_dwordx4 v[16:19], {v(vH2S)}, {srd(SWS)}, {sH2W} offen {HS}")
    if o["f2pos"] == "pub2": flag2()
    stamp("pub2")
    if o["f2pos"] == "brep":
        A("s_cmp_lg_u32 s9, 0")
        A("s_cbranch_scc1 L_nof2")
        A(f"s_mov_b32 {sCNT}, {o['spin']}")
        A("L_reppoll:")
        A(f"buffer_load_dwordx4 v[24:27], {v(vMLG)}, {srd(SWS)}, s5 offen {HL}")
        A("s_waitcnt vmcnt(0)")
        A(f"v_cmp_ne_u32 vcc, {sT}, v26")
        A("s_and_b64 exec, exec, vcc")
        A("s_cbranch_scc0 L_repall")
        A(f"s_sub_u32 {sCNT}, {sCNT}, 1")
        A("s_cbranch_scc1 L_repall")
        A(f"s_sleep {o.get('mlsleep', 2)}")
        A("s_branch L_reppoll")
        A("L_repall:")
        setexec(*FULL)
        if o.get("f2delay"): A(f"s_sleep {o['f2delay']}")
        A(f"buffer_store_dword v8, {v(vFL)}, {srd(SWS)}, {sF2W} offen {HS}")
        A("L_nof2:")
    A(f"s_mov_b32 {sCNT}, {o['spin']}")
    if o["f2pos"] != "none":
        A("L_f2poll:")
        if o.get("sflag"):
            A(f"s_load_dword {sT1}, s[{SWS}:{SWS+1}], {sF2R} glc")
            A("s_waitcnt lgkmcnt(0)")
            A(f"s_cmp_eq_u32 {sT1}, {sT}")
        else:
            A(f"buffer_load_dword v24, {v(vZ)}, {srd(SWS)}, {sF2R} offen {HL}")
            A("s_waitcnt vmcnt(0)")
            A(f"v_cmp_ne_u32 vcc, {sT}, v24")
            A("s_cmp_eq_u64 vcc, 0")
        spin_tail("L_f2poll", "L_f2done", o.get("f2sleep"))
        stamp("f2_got")
        if stamps: A(f"s_mov_b32 s94, {sCNT}")
        A(f"s_mov_b32 {sCNT}, {o['spin']}")
    if o["fdelay"]: A(f"s_sleep {o['fdelay']}")
    A("L_fpoll:")
    A(f"buffer_load_dwordx4 v[20:23], v2, {srd(SWS)}, {sH2R} offen {HL}")
    A("s_waitcnt vmcnt(0)")
    tagcheck(20, 25, 26, "vcc")
    A("s_cmp_eq_u64 vcc, 0")
    spin_tail("L_fpoll", "L_fdone")
    stamp("hop2")
    if stamps: A(f"s_mov_b32 s97, {sCNT}")
    fold4(20)
    setexec(0x000f000f, 0x000f000f)
    A(f"ds_write_b32 {v(vFPW)}, v20 offset:{L_FP}")
    setexec(*FULL)
    A("s_waitcnt lgkmcnt(0)")
    A("s_barrier")
    A(f"s_cmp_lg_u32 {sW}, 0")
    A("s_cbranch_scc1 L_fin")
    A("v_lshlrev_b32 v9, 5, v0")
    setexec(0xffff, 0)
    A(f"ds_read_b128 v[16:19], v9 offset:{L_FP}")
    A(f"ds_read_b128 v[20:23], v9 offset:{L_FP+16}")
    A(f"s_lshl_b32 {sO}, s7, 12")
    A(f"s_lshl_b32 {sT1}, s8, 11")
    A(f"s_add_u32 {sO}, {sO}, {sT1}")
    A(f"s_lshl_b32 {sT1}, s6, 5")
    A(f"s_add_u32 {sO}, {sO}, {sT1}")
    A("v_lshlrev_b32 v9, 1, v0")
    A("s_waitcnt lgkmcnt(0)")
    for k in range(4): A(f"v_add_f32 {v(16+k)}, {v(16+k)}, {v(20+k)}")
    A("v_add_f32 v16, v16, v17")
    A("v_add_f32 v18, v18, v19")
    A("v_add_f32 v16, v16, v18")
    A("v_cvt_pk_bf16_f32 v16, v16, v16")
    A(f"buffer_store_short v16, v9, {srd(SOUT)}, {sO} offen")
    A("s_cmp_lg_u32 s2, 0")
    A("s_cbranch_scc1 L_fin")
    setexec(1, 0)
    A(f"buffer_store_dword v8, {v(vZ)}, {srd(SWS)}, 0 offen")
    A("L_fin:")
    if stamps:
        setexec(*FULL)
        stamp("end")
        A("s_waitcnt lgkmcnt(0)")
        A("s_getreg_b32 s98, hwreg(HW_REG_XCC_ID)")
        A("s_getreg_b32 s99, hwreg(HW_REG_HW_ID)")
        vals = ["s60"] + [f"s{62+2*k}" for k in range(1, 16)] + ["s94", "s95", "s96", "s97", "s98", "s99", "s61", "s98"]
        for k, s in enumerate(vals): A(f"v_mov_b32 {v(128+k)}, {s}")
        A(f"s_lshl_b32 {sT1}, s2, 3")
        A(f"s_add_u32 {sT1}, {sT1}, {sW}")
        A(f"s_lshl_b32 {sT1}, {sT1}, 7")
        A(f"s_add_u32 {sT1}, {sT1}, {WS_ST}")
        A("v_mov_b32 v9, 0")
        setexec(1, 0)
        for k in range(6): A(f"buffer_store_dwordx4 {v(128+4*k,4)}, v9, {srd(SWS)}, {sT1} offen offset:{16*k}")
    A("L_end:")
    A("s_endpgm")
    A('.section .rodata,"a"')
    A(".p2align 6")
    A(f".amdhsa_kernel {NAME}")
    A(".amdhsa_next_free_vgpr 256")
    A(".amdhsa_next_free_sgpr 102")
    A(".amdhsa_accum_offset 256")
    A(".amdhsa_group_segment_fixed_size 0")
    A(".amdhsa_kernarg_size 104")
    A(".amdhsa_user_sgpr_count 2")
    A(".amdhsa_user_sgpr_kernarg_segment_ptr 1")
    A(".amdhsa_system_sgpr_workgroup_id_x 1")
    A(".amdhsa_float_denorm_mode_32 3")
    A(".end_amdhsa_kernel")
    msgs = check_hazards(A.lines)
    for m in msgs: print(m, file=sys.stderr)
    return A.text()

if __name__ == "__main__":
    import json
    name = sys.argv[1]; opt = json.loads(sys.argv[2]) if len(sys.argv) > 2 else {}
    open(f"k_{name}.s", "w").write(gen(False, opt))
    open(f"k_{name}_st.s", "w").write(gen(True, opt))
```

```python
import sys, struct, math
from asmlib import Asm, check_hazards

NAME = "concat_heads__gqa_block_cached__sliding_block_cached__decode_kernel"
REF = "concat_heads__gqa_block_cached__sliding_block_cached__decode.s.ref"

WS_Q   = 0x10000
WS_ML  = 0x30000
WS_F2  = 0x40000
WS_H1  = 0x100000
WS_H2  = 0x300000
WS_ST  = 0x500000
WS_USED = 0x600000
L_QP = 0
L_QS = L_QP + 4096
L_ML = L_QS + 4096
L_F  = L_ML + 1024
L_W  = L_F + 256
L_OA = L_W + 512
L_FP = L_OA + 128
L_CNT = L_FP + 512
L_OP = 12288
assert L_CNT + 256 <= L_OP
L_END = L_OP + 65536

DEF_STN = ["start", "wq_land", "q_pub", "q_got", "q_lds", "S_done", "lastV", "bar_O", "pub1", "wo_land", "ml_got", "hop1", "pub2", "f2_got", "hop2", "end"]

def f32bits(x):
    return struct.unpack("<I", struct.pack("<f", x))[0]

def gen(stamps=False, opt=None):
    o = dict(spin=400000, ld="nt", hs="sc1", hl="sc1", sleep=1, d=3, d0=8, d2=6, n2=16, gq=12, wo_before=0,
             mlpos="lastV", odelay=0, f2pos="oabar", fdelay=0, skew=1)
    if opt: o.update(opt)
    LD, HS, HL = o["ld"], o["hs"], o["hl"]
    A = Asm()
    hdr = [l.rstrip("\n") for l in open(REF) if l.startswith(";") and "@launch" not in l and "Override" not in l and "grid=ceil" not in l]
    for l in hdr: A(l)
    A(f"; @launch grid=(256,1,1) block=(512,1,1) lds={L_END}")
    STN = o.get("stn", DEF_STN)
    if stamps: A("; stamps: " + " ".join(STN))
    A('.amdgcn_target "amdgcn-amd-amdhsa--gfx950"')
    A(".text")
    A(f".globl {NAME}")
    A(".p2align 8")
    A(f".type {NAME},@function")
    A(f"{NAME}:")

    SX, SWQ, SKA, SVA, SKB, SVB, SWO, SWS, SOUT = 4, 8, 12, 16, 20, 24, 28, 32, 36
    sW, sB, sKVH, sSP, sO, sKA0, sT, sCNT = "s40", "s41", "s42", "s43", "s44", "s45", "s46", "s47"
    sLO, sHI, sXA, sXB, sC = "s48", "s49", "s50", "s51", "s52"
    sTI = ["s53", "s54", "s55", "s56"]
    sO2, sT1, sT2 = "s57", "s58", "s59"
    sR, sKB0, sG = "s3", "s100", "s101"
    srd = lambda b: f"s[{b}:{b+3}]"
    def stamp(name):
        if stamps and name in STN:
            k = STN.index(name)
            A(f"s_memrealtime s[{62+2*k}:{63+2*k}]") if k > 0 else A("s_memrealtime s[60:61]")
        if stamps and o.get("cut") == name: A("s_waitcnt vmcnt(0)"); A("s_branch L_fin")
    def v(b, n=1):
        return f"v{b}" if n == 1 else f"v[{b}:{b+n-1}]"
    def setexec(lo, hi):
        if lo == hi == 0xffffffff: A("s_mov_b64 exec, -1")
        else: A(f"s_mov_b32 exec_lo, {lo:#x}"); A(f"s_mov_b32 exec_hi, {hi:#x}")
    FULL = (0xffffffff, 0xffffffff)
    DPP = "row_mask:0xf bank_mask:0xf"
    M32 = "v_mfma_f32_16x16x32_bf16"

    NTOT = 1 + 8 + 8 + 32 + 2 + 32 + 8
    vm = dict(n=0, done=0, tag={})
    lab = [0]
    sTHR = "s99"
    def vwait(k):
        if k >= vm["done"]:
            A(f"s_waitcnt vmcnt({vm['n'] - 1 - k})")
            vm["done"] = k + 1
    def dwin(i):
        return o["d0"] if i < 9 else (o["d2"] if i >= NTOT - o["n2"] else o["d"])
    FB = o.get("fb", 0)
    def pacewait(i):
        d = dwin(i)
        if FB and 9 <= i < NTOT - o["n2"]:
            if i % FB == 0 and i >= o.get("fb0", 12):
                A("v_mov_b32 v9, 0")
                A("v_mov_b32 v10, 1")
                setexec(1, 0)
                A(f"ds_add_rtn_u32 v10, v9, v10 offset:{L_CNT+16+4*(i//FB)}")
                A("s_waitcnt lgkmcnt(0)")
                A(f"v_cmp_le_u32 vcc, {sTHR if i < o.get('slow_until', 0) else o.get('thr', 4)}, v10")
                setexec(*FULL)
            dhi = o.get("dhi", d + 1)
            vwait(min(i - dhi, vm["n"] - 1))
            k = min(i - d, vm["n"] - 1)
            if k >= vm["done"]:
                lab[0] += 1
                A(f"s_cbranch_vccnz L_sk{lab[0]}")
                A(f"s_waitcnt vmcnt({vm['n'] - 1 - k})")
                A(f"L_sk{lab[0]}:")
        elif i - d >= 0:
            vwait(min(i - d, vm["n"] - 1))
    def load(txt, tag=None, pace=True):
        i = vm["n"]
        if pace: pacewait(i)
        A(txt)
        if tag: vm["tag"][tag] = i
        vm["n"] += 1
    def need(tag): vwait(vm["tag"][tag])
    def run(seq, code, boost):
        base = vm["n"]; issued = 0
        for i in range(len(seq)):
            extra = vm["n"] - base - issued
            if i < issued:
                pacewait(base + extra + i)
            else:
                seq[i](True); issued = i + 1
            while issued < min(len(seq), i + 1 + boost.get(i, 0)):
                seq[issued](False); issued += 1
            for f in code.get(i, []): f()

    def spin_tail(label, done, sl=None):
        sl = o["sleep"] if sl is None else sl
        A(f"s_cbranch_scc1 {done}")
        A(f"s_sub_u32 {sCNT}, {sCNT}, 1")
        A(f"s_cbranch_scc1 {done}")
        if sl: A(f"s_sleep {sl}")
        A(f"s_branch {label}")
        A(f"{done}:")
    def arrive(k):
        A("v_mov_b32 v9, 0")
        A("v_mov_b32 v10, 1")
        setexec(1, 0)
        A(f"ds_add_u32 v9, v10 offset:{L_CNT+4*k}")
        setexec(*FULL)
    def wait_cnt(k):
        lab[0] += 1
        l = f"L_cnt{lab[0]}"
        A("v_mov_b32 v9, 0")
        A(f"s_mov_b32 {sCNT}, {o['spin']}")
        A(f"{l}:")
        A(f"ds_read_b32 v10, v9 offset:{L_CNT+4*k}")
        A("s_waitcnt lgkmcnt(0)")
        A(f"v_readfirstlane_b32 {sT1}, v10")
        A(f"s_cmp_eq_u32 {sT1}, 8")
        spin_tail(l, l + "d", 1)
    def tagcheck(d, t0, t1, dst):
        A(f"v_perm_b32 {v(t0)}, {v(d+1)}, {v(d)}, {sXA}")
        A(f"v_perm_b32 {v(t1)}, {v(d+3)}, {v(d+2)}, {sXB}")
        A(f"v_or_b32 {v(t0)}, {v(t0)}, {v(t1)}")
        A(f"v_cmp_ne_u32 {dst}, {sT}, {v(t0)}")
    def transpose_mfma(src, acc, other, first, tmp, a_is_tile, nrows=8):
        nt = nrows // 2
        op = M32 if nrows == 8 else "v_mfma_f32_16x16x16_bf16"
        def perms(e):
            t = tmp + 4 * (e % 4)
            for k in range(nt):
                A(f"v_perm_b32 {v(t+k)}, {v(src+4*(2*k+1)+(e>>1))}, {v(src+4*(2*k)+(e>>1))}, {sHI if e & 1 else sLO}")
        def mfma(e):
            t = v(tmp + 4 * (e % 4), nt)
            c = "0" if first else v(acc+4*e, 4)
            a, b = (t, other) if a_is_tile else (other, t)
            A(f"{op} {v(acc+4*e,4)}, {a}, {b}, {c}")
        perms(0)
        for e in range(8):
            if e < 7: perms(e+1)
            else: A("s_nop 1")
            mfma(e)
    def butterfly(op, x, t):
        for sw in ("v_permlane16_swap_b32", "v_permlane32_swap_b32"):
            A(f"v_mov_b32 {v(t)}, {v(x)}")
            A("s_nop 1")
            A(f"{sw} {v(x)}, {v(t)}")
            A(f"{op} {v(x)}, {v(x)}, {v(t)}")
    def write_O(br, acc):
        setexec(0x00ff00ff, 0x00ff00ff)
        for e in range(8):
            if e == 0:
                A(f"ds_write_b128 v28, {v(acc,4)} offset:{L_OP+32768*br}")
            else:
                A(f"v_xor_b32 {v(29+(e&1))}, {16*e}, v28")
                A(f"ds_write_b128 {v(29+(e&1))}, {v(acc+4*e,4)} offset:{L_OP+32768*br}")
        setexec(*FULL)

    stamp("start")
    A("s_cmp_ge_u32 s2, 256")
    A("s_cbranch_scc1 L_end")
    A("s_load_dwordx16 s[64:79], s[0:1], 0")
    A("s_load_dwordx8 s[80:87], s[0:1], 64")
    A("s_load_dwordx2 s[88:89], s[0:1], 96")
    A("v_lshrrev_b32 v1, 6, v0")
    A("v_and_b32 v0, 63, v0")
    A(f"v_readfirstlane_b32 {sW}, v1")
    A(f"s_and_b32 {sB}, s2, 1")
    A(f"s_bfe_u32 {sKVH}, s2, 0x20001")
    A(f"s_lshr_b32 {sSP}, s2, 3")
    A("v_lshrrev_b32 v9, 3, v0")
    A("v_and_b32 v10, 7, v0")
    A("v_lshlrev_b32 v10, 4, v10")
    A("v_lshl_or_b32 v3, v9, 16, v10")
    A("v_lshrrev_b32 v12, 4, v0")
    A("v_bfe_u32 v9, v0, 2, 1")
    A("v_and_b32 v10, 1, v0")
    A("v_lshl_or_b32 v10, v12, 1, v10")
    A("v_lshlrev_b32 v10, 4, v10")
    A("v_lshl_or_b32 v11, v9, 11, v10")
    A(f"s_and_b32 {sT1}, {sSP}, 1")
    A(f"s_lshl_b32 {sT1}, {sT1}, 3")
    A(f"s_add_u32 {sT1}, {sT1}, {sW}")
    A(f"s_lshl_b32 {sO}, {sT1}, 19")
    A(f"s_lshl_b32 {sO2}, {sT1}, 7")
    A(f"s_lshl_b32 {sT1}, {sKVH}, 11")
    A(f"s_lshr_b32 {sT2}, {sSP}, 1")
    A(f"s_lshl_b32 {sT2}, {sT2}, 7")
    A(f"s_add_u32 {sO}, {sO}, {sT1}")
    A(f"s_add_u32 {sO}, {sO}, {sT2}")
    A(f"s_mov_b32 s{SX+2}, 4096")
    A(f"s_mov_b32 s{SX+3}, 0x20000")
    A(f"s_mov_b32 s{SWQ+2}, 0x800000")
    A(f"s_mov_b32 s{SWQ+3}, 0x20000")
    A("v_mov_b32 v16, 0")
    A("v_lshlrev_b32 v17, 2, v0")
    A("s_mov_b64 vcc, 0")
    A(f"s_cmp_eq_u32 {sB}, 0")
    A("s_waitcnt lgkmcnt(0)")
    A(f"s_cselect_b64 s[{SX}:{SX+1}], s[64:65], s[74:75]")
    A(f"s_cselect_b64 s[{SWQ}:{SWQ+1}], s[70:71], s[80:81]")
    A(f"s_cselect_b64 s[{SWO}:{SWO+1}], s[72:73], s[82:83]")
    il = o.get("il", False)
    def ldWQ(i, pace=True):
        load(f"buffer_load_dwordx4 {v(64+4*i,4)}, v3, {srd(SWQ)}, {sO} offen {LD}", tag=f"WQ{i}", pace=pace)
        A(f"s_add_u32 {sO}, {sO}, 8192")
    nfirst = 2 if il else min(8, o["d0"])
    for i in range(nfirst): ldWQ(i)
    if o.get("wsoff"):
        A(f"s_add_u32 s88, s88, {o['wsoff']:#x}")
        A("s_addc_u32 s89, s89, 0")
    A(f"s_load_dword {sT}, s[88:89], 0")
    A(f"ds_write_b32 v17, v16 offset:{L_CNT}")
    if o.get("slow_until"):
        A(f"s_lshr_b32 {sT1}, s{SWQ}, 7")
        A(f"s_lshr_b32 {sT2}, {sSP}, 1")
        A(f"s_add_u32 {sT1}, {sT1}, {sT2}")
        A(f"s_and_b32 {sT1}, {sT1}, 7")
        A(f"s_cmp_eq_u32 {sT1}, 3")
        A(f"s_cselect_b32 {sTHR}, 0, {o.get('thr', 4)}")
    for b, p, n in ((SKA, 66, 0x4000000), (SVA, 68, 0x4000000), (SKB, 76, 0x4000000), (SVB, 78, 0x4000000),
                    (SWS, 88, WS_USED), (SOUT, 84, 8192)):
        A(f"s_mov_b64 s[{b}:{b+1}], s[{p}:{p+1}]")
        A(f"s_mov_b32 s{b+2}, {n:#x}")
        A(f"s_mov_b32 s{b+3}, 0x20000")
    A(f"s_mov_b32 s{SWO+2}, 0x800000")
    A(f"s_mov_b32 s{SWO+3}, 0x20000")
    A("v_lshlrev_b32 v2, 4, v0")
    A("v_bfe_u32 v9, v0, 1, 1")
    A("v_lshlrev_b32 v1, 4, v12")
    A("v_lshl_or_b32 v1, v9, 10, v1")
    A("v_bfe_u32 v9, v0, 2, 2")
    A("v_lshl_or_b32 v1, v9, 8, v1")
    A("v_and_b32 v9, 1, v0")
    A("v_lshl_or_b32 v1, v9, 6, v1")
    A(f"s_lshl_b32 {sG}, {sB}, 2")
    A(f"s_add_u32 {sG}, {sG}, {sKVH}")
    A(f"s_lshl_b32 {sT1}, {sG}, 23")
    A(f"s_lshl_b32 {sT2}, {sSP}, 3")
    A(f"s_add_u32 {sT2}, {sT2}, {sW}")
    A(f"s_lshl_b32 {sT2}, {sT2}, 12")
    A(f"s_add_u32 {sKA0}, {sT1}, {sT2}")
    A(f"s_add_u32 {sKB0}, {sKA0}, {28672*256}")
    A(f"s_mov_b32 {sLO}, 0x05040100")
    A(f"s_mov_b32 {sHI}, 0x07060302")
    A(f"s_mov_b32 {sXA}, 0x0c0c0400")
    A(f"s_mov_b32 {sXB}, 0x04000c0c")
    A(f"s_mov_b32 {sC}, {f32bits(128**-0.5 * math.log2(math.e)):#x}")
    for k in range(4): A(f"s_mov_b32 {sTI[k]}, {0x07060500+k:#x}")
    A("s_waitcnt lgkmcnt(0)")
    A("s_barrier")
    KOFF = [0, 128, 2048, 2176]
    def ldB(i, pace=True):
        if i < 4: load(f"buffer_load_dwordx4 {v(96+4*i,4)}, v1, {srd(SKB)}, {sKB0} offen offset:{KOFF[i]} {LD}", tag=f"B{i}", pace=pace)
        else: load(f"buffer_load_dwordx4 {v(96+4*i,4)}, v2, {srd(SVB)}, {sKB0} offen offset:{1024*(i-4)} {LD}", tag=f"B{i}", pace=pace)
    nB = 0
    for i in range(nfirst, 8):
        if il and nB < 5: ldB(nB); nB += 1
        ldWQ(i)
    load(f"buffer_load_dwordx4 v[4:7], v11, {srd(SX)}, {sO2} offen", tag="wq", pace=False)
    A(f"s_mul_i32 {sT}, {sT}, 0x9e3779b1")
    A(f"s_add_u32 {sT}, {sT}, 0x7f4a7c15")
    A(f"v_mov_b32 v8, {sT}")

    def blk_start():
        if o["skew"]: A(f"s_lshl_b32 {sR}, {sG}, 20")
        else: A(f"s_mov_b32 {sR}, 0")
        A(f"s_add_u32 {sO}, {sKA0}, {sR}")
    def blk_step():
        A(f"s_add_u32 {sR}, {sR}, 0x100000")
        A(f"s_and_b32 {sR}, {sR}, 0x7fffff")
        A(f"s_add_u32 {sO}, {sKA0}, {sR}")
    def ldK(i, pace=True):
        if i == 0: blk_start()
        elif i % 4 == 0: blk_step()
        load(f"buffer_load_dwordx4 {v(128+4*i,4)}, v1, {srd(SKA)}, {sO} offen offset:{KOFF[i%4]} {LD}", tag=f"K{i}", pace=pace)
    def ldV(i, pace=True):
        if i == 0: blk_start()
        elif i % 4 == 0: blk_step()
        load(f"buffer_load_dwordx4 {v(128+4*i,4)}, v2, {srd(SVA)}, {sO} offen offset:{1024*(i%4)} {LD}", tag=f"V{i}", pace=pace)
    sWO = "s100"
    def ldWO(i, pace=True):
        load(f"buffer_load_dwordx4 {v(96+4*i,4)}, v3, {srd(SWO)}, {sWO} offen {LD}", tag=f"WO{i}", pace=pace)
        if i < 7: A(f"s_add_u32 {sWO}, {sWO}, 8192")

    for i in range(3):
        vwait(vm["tag"]["wq"] - 3 + i)
        ldB(nB, pace=False); nB += 1
    need("wq")
    stamp("wq_land")
    transpose_mfma(64, 32, "v[4:7]", True, 32 if False else 224, False)
    kpre = 0
    def more():
        nonlocal nB, kpre
        if nB < 8: ldB(nB); nB += 1
        else: ldK(kpre); kpre += 1
    more()
    A("v_and_b32 v9, 15, v0")
    A("v_lshlrev_b32 v9, 5, v9")
    A("v_lshl_or_b32 v9, v12, 8, v9")
    A(f"s_lshl_b32 {sT1}, {sW}, 9")
    A(f"v_add_u32 v13, {sT1}, v9")
    for e in range(8):
        if e == 7: A("s_nop 0")
        A(f"v_add_f32_dpp {v(64+e)}, {v(33+4*e)}, {v(32+4*e)} row_ror:8 {DPP}")
    setexec(0x00ff00ff, 0)
    A(f"ds_write_b128 v13, v[64:67] offset:{L_QP}")
    A(f"ds_write_b128 v13, v[68:71] offset:{L_QP+16}")
    setexec(*FULL)
    arrive(0)
    more()
    A(f"s_cmp_lg_u32 {sW}, 0")
    A("s_cbranch_scc1 L_noqpub")
    A("v_and_b32 v13, 15, v0")
    A("v_lshlrev_b32 v13, 4, v13")
    A("v_lshl_or_b32 v13, v12, 13, v13")
    A(f"s_lshl_b32 {sO2}, {sG}, 14")
    A(f"s_and_b32 {sT2}, {sSP}, 1")
    A(f"s_lshl_b32 {sT2}, {sT2}, 12")
    A(f"s_add_u32 {sO2}, {sO2}, {sT2}")
    A(f"s_lshr_b32 {sT2}, {sSP}, 1")
    A(f"s_lshl_b32 {sT2}, {sT2}, 8")
    A(f"s_add_u32 {sO2}, {sO2}, {sT2}")
    A(f"s_add_u32 {sO2}, {sO2}, {WS_Q}")
    wait_cnt(0)
    for w in range(8): A(f"ds_read_b128 {v(32+4*w,4)}, v2 offset:{L_QP+512*w}")
    for w in range(1, 8):
        A(f"s_waitcnt lgkmcnt({7-w})")
        for k in range(4): A(f"v_add_f32 {v(32+k)}, {v(32+k)}, {v(32+4*w+k)}")
    for k in range(4): A(f"v_perm_b32 {v(32+k)}, {v(32+k)}, v8, {sTI[k]}")
    setexec(0xffffffff, 0)
    A(f"buffer_store_dwordx4 v[32:35], v13, {srd(SWS)}, {sO2} offen {HS}")
    setexec(*FULL)
    stamp("q_pub")
    A("L_noqpub:")
    while nB < 8: more()

    gq = o["gq"]
    def q_issue():
        A(f"s_lshl_b32 {sT1}, {sKVH}, 1")
        A(f"s_add_u32 {sT1}, {sT1}, {sB}")
        A(f"s_lshl_b32 {sT1}, {sT1}, 13")
        A(f"s_lshr_b32 {sT2}, {sW}, 2")
        A(f"s_lshl_b32 {sT2}, {sT2}, 16")
        A(f"s_add_u32 {sT1}, {sT1}, {sT2}")
        A(f"s_and_b32 {sT2}, {sW}, 3")
        A(f"s_lshl_b32 {sT2}, {sT2}, 10")
        A(f"s_add_u32 {sT1}, {sT1}, {sT2}")
        A(f"s_add_u32 s4, {sT1}, {WS_Q}")
        A(f"s_add_u32 s5, s4, 4096")
        load(f"buffer_load_dwordx4 v[16:19], v2, {srd(SWS)}, s4 offen {HL}", pace=False)
        load(f"buffer_load_dwordx4 v[20:23], v2, {srd(SWS)}, s5 offen {HL}", tag="Q", pace=False)
    def q_check():
        need("Q")
        A(f"s_mov_b32 {sCNT}, {o['spin']}")
        A("L_qpoll:")
        tagcheck(16, 9, 10, "s[6:7]")
        tagcheck(20, 9, 10, "s[58:59]")
        A("s_or_b64 s[6:7], s[6:7], s[58:59]")
        A("s_cmp_eq_u64 s[6:7], 0")
        A("s_cbranch_scc1 L_qdone")
        A(f"s_sub_u32 {sCNT}, {sCNT}, 1")
        A("s_cbranch_scc1 L_qdone")
        A("s_sleep 8")
        A(f"buffer_load_dwordx4 v[16:19], v2, {srd(SWS)}, s4 offen {HL}")
        A(f"buffer_load_dwordx4 v[20:23], v2, {srd(SWS)}, s5 offen {HL}")
        A("s_waitcnt vmcnt(0)")
        A("s_branch L_qpoll")
        A("L_qdone:")
        if stamps: A(f"s_mov_b32 s61, {sCNT}")
        stamp("q_got")
        for k in range(4): A(f"v_add_f32 {v(16+k)}, {v(16+k)}, {v(20+k)}")
        A(f"s_lshl_b32 {sT1}, {sW}, 9")
        A("v_lshlrev_b32 v13, 3, v0")
        A(f"v_add_u32 v13, {sT1}, v13")
        A("v_cvt_pk_bf16_f32 v16, v16, v17")
        A("v_cvt_pk_bf16_f32 v17, v18, v19")
        A(f"ds_write_b64 v13, v[16:17] offset:{L_QS}")
        arrive(1)
    def q_read():
        A("v_and_b32 v13, 7, v0")
        A("v_lshlrev_b32 v28, 4, v13")
        A("v_lshl_or_b32 v28, v13, 9, v28")
        A("v_lshl_or_b32 v28, v12, 7, v28")
        A(f"s_lshl_b32 {sT1}, {sW}, 12")
        A(f"v_add_u32 v28, {sT1}, v28")
        A("v_lshlrev_b32 v13, 8, v13")
        A("v_lshl_or_b32 v13, v12, 4, v13")
        A("v_bfe_u32 v14, v0, 3, 1")
        A("v_lshl_or_b32 v13, v14, 6, v13")
        wait_cnt(1)
        stamp("q_lds")
        A(f"ds_read_b128 v[56:59], v13 offset:{L_QS+2048}")
        A(f"ds_read_b128 v[60:63], v13 offset:{L_QS+2048+128}")
        A(f"ds_read_b128 v[48:51], v13 offset:{L_QS}")
        A(f"ds_read_b128 v[52:55], v13 offset:{L_QS+128}")
    def qk_B():
        need("B7")
        A("s_waitcnt lgkmcnt(2)")
        for g in range(2): A(f"{M32} {v(32+4*g,4)}, {v(96+8*g,4)}, v[56:59], 0")
        for g in range(2): A(f"{M32} {v(32+4*g,4)}, {v(100+8*g,4)}, v[60:63], {v(32+4*g,4)}")
        A(f"s_lshl_b32 {sT1}, {sW}, 2")
        A("v_lshlrev_b32 v31, 5, v0")
        A(f"v_add_u32 v31, {sT1}, v31")
        A("s_nop 4")
        for g in range(2):
            for a in range(2):
                A(f"v_add_f32_dpp {v(16+2*g+a)}, {v(32+4*g+2*a+1)}, {v(32+4*g+2*a)} row_ror:8 {DPP}")
    def sm_B():
        A("s_waitcnt lgkmcnt(0)")
        A("v_max3_f32 v23, v16, v17, v18")
        A("v_max_f32 v23, v23, v19")
        butterfly("v_max_f32", 23, 27)
        A(f"v_mul_f32 v23, {sC}, v23")
        for i in range(4): A(f"v_fma_f32 {v(16+i)}, {v(16+i)}, {sC}, -v23")
        for i in range(4): A(f"v_exp_f32 {v(16+i)}, {v(16+i)}")
        A("v_add_f32 v25, v16, v17")
        A("v_add_f32 v27, v18, v19")
        A("v_cvt_pk_bf16_f32 v20, v16, v17")
        A("v_cvt_pk_bf16_f32 v21, v18, v19")
        A("v_add_f32 v25, v25, v27")
        butterfly("v_add_f32", 25, 27)
        setexec(0xff, 0)
        A(f"ds_write_b32 v31, v23 offset:{L_ML+512}")
        A(f"ds_write_b32 v31, v25 offset:{L_ML+768}")
        setexec(*FULL)
    def pv_B():
        transpose_mfma(112, 64, "v[20:21]", True, 32, True, nrows=4)
    def wr_B():
        A("s_nop 3")
        write_O(1, 64)
    def qk(t):
        kb = 128 + 32*t
        need(f"K{8*t+7}")
        for g in range(4): A(f"{M32} {v(32+4*g,4)}, {v(kb+8*g,4)}, v[48:51], 0")
        for g in range(4): A(f"{M32} {v(32+4*g,4)}, {v(kb+8*g+4,4)}, v[52:55], {v(32+4*g,4)}")
        A("s_nop 4")
        for g in range(4):
            for a in range(2):
                if g == 3 and a == 0: A("s_nop 0")
                A(f"v_add_f32_dpp {v(64+8*t+2*g+a)}, {v(32+4*g+2*a+1)}, {v(32+4*g+2*a)} row_ror:8 {DPP}")
    kcode = {gq: [q_issue], gq+3: [q_check], gq+6: [q_read], gq+7: [qk_B], gq+8: [sm_B], gq+9: [pv_B], gq+10: [wr_B],
             gq+11: [lambda: qk(0)], gq+12: [lambda: qk(1)]}
    kcode.setdefault(max(gq+13, 27), []).append(lambda: qk(2))
    assert max(kcode) <= 31
    bk = o.get("bk", 0)
    kboost = {i: bk for i in range(gq+6, gq+14)}
    run([(lambda pace, i=i: ldK(i, pace)) for i in range(kpre, 32)], {i - kpre: f for i, f in kcode.items()}, {i - kpre: f for i, f in kboost.items()})

    def sm_max():
        A("v_max3_f32 v22, v64, v65, v66")
        A("v_max3_f32 v26, v67, v68, v69")
        left = list(range(70, 96)); k = 0
        while left:
            dst = 22 if k % 2 == 0 else 26
            a, b = left.pop(0), left.pop(0)
            A(f"v_max3_f32 {v(dst)}, {v(dst)}, {v(a)}, {v(b)}")
            k += 1
        A("v_max_f32 v22, v22, v26")
        butterfly("v_max_f32", 22, 26)
        A(f"v_mul_f32 v22, {sC}, v22")
        stamp("S_done")
    def sm_exp(t):
        b = 64 + 8*t
        for i in range(8): A(f"v_fma_f32 {v(b+i)}, {v(b+i)}, {sC}, -v22")
        for i in range(8): A(f"v_exp_f32 {v(b+i)}, {v(b+i)}")
        if t == 0:
            A(f"v_add_f32 v24, {v(b)}, {v(b+1)}")
            A(f"v_add_f32 v26, {v(b+2)}, {v(b+3)}")
            r = range(4, 8, 2)
        else:
            r = range(0, 8, 2)
        for i in r:
            A(f"v_add_f32 v24, v24, {v(b+i)}")
            A(f"v_add_f32 v26, v26, {v(b+i+1)}")
        for k in range(4): A(f"v_cvt_pk_bf16_f32 {v(64+4*t+k)}, {v(b+2*k)}, {v(b+2*k+1)}")
    def sm_sum():
        A("v_add_f32 v24, v24, v26")
        butterfly("v_add_f32", 24, 26)
        setexec(0xff, 0)
        A(f"ds_write_b32 v31, v22 offset:{L_ML}")
        A(f"ds_write_b32 v31, v24 offset:{L_ML+256}")
        setexec(*FULL)
        arrive(2)
    sH1W, sMLW, sH1R, sMLR, sH2W, sH2R, sF2W, sF2R = "s20", "s21", "s22", "s23", "s24", "s25", "s26", "s27"
    def addr2():
        A(f"s_and_b32 {sT1}, {sW}, 3")
        A(f"s_lshl_b32 {sT1}, {sT1}, 6")
        A(f"v_add_u32 v9, {sT1}, v0")
        A("v_lshrrev_b32 v10, 5, v9")
        A("v_lshrrev_b32 v11, 3, v9")
        A("v_and_b32 v13, 7, v0")
        A("v_xor_b32 v14, v13, v10")
        A("v_lshlrev_b32 v14, 4, v14")
        A("v_lshl_or_b32 v14, v11, 7, v14")
        A("v_lshlrev_b32 v15, 5, v10")
        A("v_lshlrev_b32 v13, 4, v13")
        A("v_lshl_or_b32 v11, v11, 13, v13")
        A(f"s_lshr_b32 {sT2}, {sW}, 2")
        A(f"s_lshl_b32 {sT2}, {sT2}, 2")
        A(f"s_add_u32 {sT2}, {sT2}, {sKVH}")
        A(f"s_lshl_b32 {sT1}, {sB}, 5")
        A(f"s_add_u32 {sT1}, {sT1}, {sSP}")
        A(f"s_lshl_b32 {sT1}, {sT1}, 7")
        A(f"s_lshl_b32 {sH1W}, {sT2}, 18")
        A(f"s_add_u32 {sH1W}, {sH1W}, {sT1}")
        A(f"s_add_u32 {sH1W}, {sH1W}, {WS_H1}")
        A(f"s_lshl_b32 {sMLW}, {sT2}, 13")
        A(f"s_add_u32 {sMLW}, {sMLW}, {sT1}")
        A(f"s_add_u32 {sMLW}, {sMLW}, {WS_ML}")
        A("v_and_b32 v3, 15, v0")
        A("v_lshlrev_b32 v3, 4, v3")
        A("v_lshl_or_b32 v3, v12, 11, v3")
        A(f"s_lshl_b32 {sT1}, {sKVH}, 5")
        A(f"s_add_u32 {sT1}, {sT1}, {sSP}")
        A(f"s_lshl_b32 {sWO}, {sT1}, 16")
        A(f"s_lshl_b32 {sT2}, {sW}, 8")
        A(f"s_add_u32 {sWO}, {sWO}, {sT2}")
    def duties():
        A(f"s_cmp_lt_u32 {sW}, 4")
        A("s_cbranch_scc1 L_notB")
        wait_cnt(2)
        A(f"ds_read_b128 v[32:35], v15 offset:{L_ML+512}")
        A(f"ds_read_b128 v[36:39], v15 offset:{L_ML+512+16}")
        A("v_add_u32 v13, 32768, v14")
        for w in range(8): A(f"ds_read_b128 {v(96+4*w,4)}, v13 offset:{L_OP+4096*w}")
        A(f"ds_read_b128 v[40:43], v15 offset:{L_ML+768}")
        A(f"ds_read_b128 v[44:47], v15 offset:{L_ML+768+16}")
        A("s_waitcnt lgkmcnt(10)")
        A("v_max3_f32 v48, v32, v33, v34")
        A("v_max3_f32 v49, v35, v36, v37")
        A("v_max3_f32 v48, v48, v38, v39")
        A("v_max_f32 v48, v48, v49")
        for w in range(8): A(f"v_sub_f32 {v(32+w)}, {v(32+w)}, v48")
        for w in range(8): A(f"v_exp_f32 {v(32+w)}, {v(32+w)}")
        A("s_waitcnt lgkmcnt(0)")
        for k in range(4): A(f"v_mul_f32 {v(52+k)}, v32, {v(96+k)}")
        for w in range(1, 8):
            for k in range(4): A(f"v_fmac_f32 {v(52+k)}, {v(32+w)}, {v(96+4*w+k)}")
        for k in range(4): A(f"v_perm_b32 {v(52+k)}, {v(52+k)}, v8, {sTI[k]}")
        A(f"buffer_store_dwordx4 v[52:55], v11, {srd(SWS)}, {sH1W} offen {HS}")
        A("v_mul_f32 v49, v32, v40")
        for w in range(1, 8): A(f"v_fmac_f32 v49, {v(32+w)}, {v(40+w)}")
        A("v_mov_b32 v50, v8")
        A("v_mov_b32 v51, v8")
        A("v_lshrrev_b32 v10, 1, v15")
        setexec(1, 1)
        A(f"buffer_store_dwordx4 v[48:51], v10, {srd(SWS)}, {sMLW} offen {HS}")
        setexec(*FULL)
        A("s_branch L_dutydone")
        A("L_notB:")
        A(f"s_cmp_lg_u32 {sW}, 1")
        A("s_cbranch_scc1 L_dutydone")
        wait_cnt(2)
        A("v_lshlrev_b32 v10, 5, v0")
        setexec(0xff, 0)
        A(f"ds_read_b128 v[32:35], v10 offset:{L_ML}")
        A(f"ds_read_b128 v[36:39], v10 offset:{L_ML+16}")
        A(f"ds_read_b128 v[40:43], v10 offset:{L_ML+256}")
        A(f"ds_read_b128 v[44:47], v10 offset:{L_ML+256+16}")
        A("s_waitcnt lgkmcnt(2)")
        A("v_max3_f32 v4, v32, v33, v34")
        A("v_max3_f32 v5, v35, v36, v37")
        A("v_max3_f32 v4, v4, v38, v39")
        A("v_max_f32 v4, v4, v5")
        for w in range(8): A(f"v_sub_f32 {v(32+w)}, {v(32+w)}, v4")
        for w in range(8): A(f"v_exp_f32 {v(32+w)}, {v(32+w)}")
        A("v_mov_b32 v6, v8")
        A("v_mov_b32 v7, v8")
        A(f"ds_write_b128 v10, v[32:35] offset:{L_F}")
        A(f"ds_write_b128 v10, v[36:39] offset:{L_F+16}")
        A("s_waitcnt lgkmcnt(2)")
        A("v_mul_f32 v5, v32, v40")
        for w in range(1, 8): A(f"v_fmac_f32 v5, {v(32+w)}, {v(40+w)}")
        setexec(*FULL)
        A("L_dutydone:")
    def pv(t):
        need(f"V{8*t+7}")
        transpose_mfma(128+32*t, 32, v(64+4*t, 4), t == 0, 80, True)
    def addr3():
        A(f"s_lshl_b32 {sH1R}, {sG}, 5")
        A(f"s_add_u32 {sH1R}, {sH1R}, {sSP}")
        A(f"s_lshl_b32 {sH1R}, {sH1R}, 13")
        A(f"s_lshr_b32 {sT1}, {sW}, 2")
        A(f"s_lshl_b32 {sT1}, {sT1}, 12")
        A(f"s_add_u32 {sH1R}, {sH1R}, {sT1}")
        A(f"s_and_b32 {sO2}, {sW}, 3")
        A(f"s_lshl_b32 {sO2}, {sO2}, 5")
        A(f"s_add_u32 {sH1R}, {sH1R}, {sO2}")
        A(f"s_add_u32 {sH1R}, {sH1R}, {WS_H1}")
        A(f"s_lshl_b32 {sMLR}, {sG}, 13")
        A(f"s_lshr_b32 {sO2}, {sSP}, 2")
        A(f"s_lshl_b32 {sO2}, {sO2}, 4")
        A(f"s_add_u32 {sMLR}, {sMLR}, {sO2}")
        A(f"s_add_u32 {sMLR}, {sMLR}, {WS_ML}")
        A(f"s_lshl_b32 {sT1}, {sKVH}, 5")
        A(f"s_add_u32 {sT1}, {sT1}, {sSP}")
        A(f"s_lshl_b32 {sH2W}, {sB}, 20")
        A(f"s_lshl_b32 {sT2}, {sW}, 16")
        A(f"s_add_u32 {sH2W}, {sH2W}, {sT2}")
        A(f"s_lshl_b32 {sT2}, {sT1}, 6")
        A(f"s_add_u32 {sH2W}, {sH2W}, {sT2}")
        A(f"s_add_u32 {sH2W}, {sH2W}, {WS_H2}")
        A(f"s_lshl_b32 {sF2W}, {sW}, 15")
        A(f"s_lshl_b32 {sT2}, {sKVH}, 7")
        A(f"s_add_u32 {sF2W}, {sF2W}, {sT2}")
        A(f"s_add_u32 {sF2W}, {sF2W}, {WS_F2}")
        A(f"s_lshl_b32 {sF2R}, s2, 9")
        A(f"s_lshr_b32 {sT2}, {sW}, 1")
        A(f"s_lshl_b32 {sT2}, {sT2}, 7")
        A(f"s_add_u32 {sF2R}, {sF2R}, {sT2}")
        A(f"s_add_u32 {sF2R}, {sF2R}, {WS_F2}")
        A("s_bfe_u32 s7, s2, 0x10001")
        A("s_lshr_b32 s6, s2, 2")
        A(f"s_xor_b32 s8, {sB}, {1 if o.get('swap') else 0}")
        A(f"s_lshl_b32 {sT1}, s8, 1")
        A(f"s_add_u32 {sT1}, {sT1}, s7")
        A(f"s_lshl_b32 {sT1}, {sT1}, 6")
        A(f"s_add_u32 {sT1}, {sT1}, s6")
        A(f"s_lshl_b32 {sH2R}, {sT1}, 13")
        A(f"s_lshl_b32 {sT1}, {sW}, 10")
        A(f"s_add_u32 {sH2R}, {sH2R}, {sT1}")
        A(f"s_add_u32 {sH2R}, {sH2R}, {WS_H2}")
        A("s_mov_b32 s10, 0")
        A("s_mov_b32 s11, -1")
        if o["f2pos"] == "brep":
            A(f"s_xor_b32 s9, {sB}, 1")
            A(f"s_or_b32 s9, s9, {sSP}")
            A(f"s_lshl_b32 s5, {sKVH}, 13")
            A(f"s_add_u32 s5, s5, {WS_ML}")
        else:
            A(f"s_or_b32 s9, {sB}, {sSP}")
        A(f"s_lshr_b32 {sT1}, {sW}, 2")
        A(f"s_or_b32 s9, s9, {sT1}")
    vMLG, vH1G, vOAW, vOAR, vH2S, vFPW, vZ, vFL, vWR = 64, 65, 66, 67, 68, 69, 70, 71, 72
    def addr4():
        A("v_lshrrev_b32 v9, 1, v0")
        A("v_and_b32 v10, 1, v0")
        A("v_lshlrev_b32 v10, 4, v10")
        A(f"v_lshlrev_b32 {v(vMLG)}, 7, v0")
        A(f"v_lshl_or_b32 {v(vH1G)}, v9, 7, v10")
        A(f"s_lshr_b32 {sT1}, {sW}, 2")
        A(f"s_lshl_b32 {sT2}, {sT1}, 8")
        A(f"v_lshl_add_u32 {v(vWR)}, v9, 3, {sT2}")
        A(f"s_lshl_b32 {sT1}, {sT1}, 6")
        A(f"s_and_b32 {sT2}, {sW}, 1")
        A(f"s_lshl_b32 {sT2}, {sT2}, 5")
        A(f"s_add_u32 {sT1}, {sT1}, {sT2}")
        A(f"s_and_b32 {sT2}, {sW}, 2")
        A(f"s_add_u32 {sT1}, {sT1}, {sT2}")
        A(f"v_lshl_or_b32 {v(vOAW)}, v12, 2, v10")
        A(f"v_add_u32 {v(vOAW)}, {sT1}, {v(vOAW)}")
        A(f"v_bfe_u32 {v(vOAR)}, v0, 2, 1")
        A(f"v_lshlrev_b32 {v(vOAR)}, 6, {v(vOAR)}")
        A(f"v_lshl_or_b32 {v(vOAR)}, v12, 4, {v(vOAR)}")
        A("v_bfe_u32 v9, v0, 4, 1")
        A("v_lshlrev_b32 v9, 19, v9")
        A("v_bfe_u32 v10, v0, 1, 3")
        A("v_lshl_or_b32 v9, v10, 13, v9")
        A("v_and_b32 v10, 1, v0")
        A("v_lshl_or_b32 v9, v10, 5, v9")
        A("v_lshrrev_b32 v10, 5, v0")
        A(f"v_lshl_or_b32 {v(vH2S)}, v10, 4, v9")
        A("v_and_b32 v9, 3, v0")
        A("v_lshlrev_b32 v9, 7, v9")
        A("v_lshl_or_b32 v9, v12, 5, v9")
        A(f"s_lshl_b32 {sT1}, {sW}, 2")
        A(f"v_add_u32 {v(vFPW)}, {sT1}, v9")
        A(f"v_mov_b32 {v(vZ)}, 0")
        A(f"v_lshlrev_b32 {v(vFL)}, 9, v0")
    vcode = {2: [lambda: qk(3)], 3: [sm_max], 4: [lambda: sm_exp(0)], 5: [lambda: sm_exp(1)], 6: [lambda: sm_exp(2)],
             7: [lambda: sm_exp(3)], 8: [sm_sum], 9: [addr2], 11: [duties], 13: [lambda: pv(0)], 15: [addr3], 18: [lambda: pv(1)],
             }
    p2 = o.get("pv2", min(30, 23 + (o["d2"] if o["n2"] >= 16 else o["d"]) - o["wo_before"]))
    p2 = max(p2, 24)
    vcode[p2] = [lambda: pv(2)]
    vcode.setdefault(p2 + 1, []).append(addr4)
    nb = o["wo_before"]
    bv, bd = o.get("bv", 0), o.get("bd", 0)
    vboost = {i: bv for i in range(2, 19)}
    vboost[11] = bd; vboost[12] = max(bv, bd - 1)
    seq = [(lambda pace, i=i: ldV(i, pace)) for i in range(24)] + [(lambda pace, k=k: ldWO(k, pace)) for k in range(nb)] + [(lambda pace, i=i: ldV(i, pace)) for i in range(24, 32)]
    vcode = {(i if i < 24 else i + nb): f for i, f in vcode.items()}
    run(seq, vcode, vboost)
    def ml_pub():
        A(f"s_cmp_lg_u32 {sW}, 1")
        A("s_cbranch_scc1 L_noml")
        setexec(0xff, 0)
        A(f"buffer_store_dwordx4 v[4:7], v2, {srd(SWS)}, {sMLW} offen {HS}")
        setexec(*FULL)
        A("L_noml:")
    for k in range(nb, 8):
        i = vm["n"]
        ldWO(k, pace=(i - o["d2"] <= vm["tag"]["V31"]))
    assert vm["n"] == NTOT
    need("V31")
    stamp("lastV")
    if o["mlpos"] == "lastV": ml_pub()
    pv(3)
    if o["mlpos"] == "pv": ml_pub()
    A("s_nop 5")
    write_O(0, 32)
    if o["mlpos"] == "wr": ml_pub()
    A("s_waitcnt lgkmcnt(0)")
    A("s_barrier")
    stamp("bar_O")
    if o["mlpos"] == "bar": ml_pub()
    A(f"s_cmp_ge_u32 {sW}, 4")
    A("s_cbranch_scc1 L_nocomb")
    A(f"ds_read_b128 v[128:131], v15 offset:{L_F}")
    for w in range(4): A(f"ds_read_b128 {v(160+4*w,4)}, v14 offset:{L_OP+4096*w}")
    A(f"ds_read_b128 v[132:135], v15 offset:{L_F+16}")
    for w in range(4, 8): A(f"ds_read_b128 {v(160+4*w,4)}, v14 offset:{L_OP+4096*w}")
    A("s_waitcnt lgkmcnt(8)")
    for k in range(4): A(f"v_mul_f32 {v(148+k)}, v128, {v(160+k)}")
    for w in range(1, 8):
        A(f"s_waitcnt lgkmcnt({8-w if w < 4 else 7-w})")
        for k in range(4): A(f"v_fmac_f32 {v(148+k)}, {v(128+w)}, {v(160+4*w+k)}")
    for k in range(4): A(f"v_perm_b32 {v(148+k)}, {v(148+k)}, v8, {sTI[k]}")
    A(f"buffer_store_dwordx4 v[148:151], v11, {srd(SWS)}, {sH1W} offen {HS}")
    stamp("pub1")
    A("s_waitcnt vmcnt(1)")
    A("s_branch L_wot")
    A("L_nocomb:")
    stamp("pub1")
    A("s_waitcnt vmcnt(0)")
    A("L_wot:")
    stamp("wo_land")
    for e in range(8):
        for k in range(4):
            A(f"v_perm_b32 {v(192+4*e+k)}, {v(96+4*(2*k+1)+(e>>1))}, {v(96+4*(2*k)+(e>>1))}, {sHI if e & 1 else sLO}")
    A(f"s_mov_b32 {sCNT}, {o['spin']}")
    A(f"s_cmp_lg_u32 {sW}, 4")
    A("s_cbranch_scc1 L_mldone")
    if o.get("mlsleep0"): A(f"s_sleep {o['mlsleep0']}")
    A("L_mlpoll:")
    A(f"buffer_load_dwordx4 v[16:19], {v(vMLG)}, {srd(SWS)}, {sMLR} offen {HL}")
    A("s_waitcnt vmcnt(0)")
    A(f"v_cmp_ne_u32 vcc, {sT}, v18")
    A(f"v_cmp_ne_u32 s[58:59], {sT}, v19")
    A("s_or_b64 vcc, vcc, s[58:59]")
    A("s_and_b64 exec, exec, vcc")
    A("s_cbranch_scc0 L_mlall")
    A(f"s_sub_u32 {sCNT}, {sCNT}, 1")
    A("s_cbranch_scc1 L_mlall")
    if o.get("mlsleep", 2): A(f"s_sleep {o.get('mlsleep', 2)}")
    A("s_branch L_mlpoll")
    A("L_mlall:")
    setexec(*FULL)
    A("v_lshlrev_b32 v9, 3, v0")
    A(f"ds_write_b64 v9, v[16:17] offset:{L_W}")
    A("s_waitcnt lgkmcnt(0)")
    A("L_mldone:")
    A("s_barrier")
    stamp("ml_got")
    if o["odelay"]: A(f"s_sleep {o['odelay']}")
    A(f"buffer_load_dwordx4 v[20:23], {v(vH1G)}, {srd(SWS)}, {sH1R} offen {HL}")
    A(f"ds_read_b64 v[16:17], {v(vWR)} offset:{L_W}")
    def flag2():
        A("s_cmp_lg_u32 s9, 0")
        A("s_cbranch_scc1 L_nof2")
        A(f"buffer_store_dword v8, {v(vFL)}, {srd(SWS)}, {sF2W} offen {HS}")
        A("L_nof2:")
    def allreduce32(op, x, t):
        A("s_nop 1")
        A(f"{op}_dpp {v(x)}, {v(x)}, {v(x)} quad_perm:[2,3,0,1] {DPP}")
        A("s_nop 1")
        A(f"{op}_dpp {v(x)}, {v(x)}, {v(x)} row_ror:4 {DPP}")
        A("s_nop 1")
        A(f"{op}_dpp {v(x)}, {v(x)}, {v(x)} row_ror:8 {DPP}")
        butterfly(op, x, t)
    if o["f2pos"] == "ml": flag2()
    A("s_waitcnt lgkmcnt(0)")
    A("v_mov_b32 v24, v16")
    allreduce32("v_max_f32", 24, 25)
    A("v_sub_f32 v24, v16, v24")
    A("v_exp_f32 v24, v24")
    A("s_nop 0")
    A("v_mul_f32 v26, v24, v17")
    allreduce32("v_add_f32", 26, 25)
    A("v_rcp_f32 v26, v26")
    A("s_nop 0")
    A("v_mul_f32 v24, v24, v26")
    if stamps: A(f"s_mov_b32 s95, {sCNT}")
    A(f"s_mov_b32 {sCNT}, {o['spin']}")
    A("s_waitcnt vmcnt(0)")
    A("L_opoll:")
    tagcheck(20, 25, 26, "vcc")
    A("s_cmp_eq_u64 vcc, 0")
    A("s_cbranch_scc1 L_odone")
    A(f"s_sub_u32 {sCNT}, {sCNT}, 1")
    A("s_cbranch_scc1 L_odone")
    if o["sleep"]: A(f"s_sleep {o['sleep']}")
    A(f"buffer_load_dwordx4 v[20:23], {v(vH1G)}, {srd(SWS)}, {sH1R} offen {HL}")
    A("s_waitcnt vmcnt(0)")
    A("s_branch L_opoll")
    A("L_odone:")
    stamp("hop1")
    if stamps: A(f"s_mov_b32 s96, {sCNT}")
    if o["f2pos"] == "hop1": flag2()
    for k in range(4): A(f"v_mul_f32 {v(20+k)}, v24, {v(20+k)}")
    def fold4(d):
        A("s_nop 0")
        A(f"v_permlane16_swap_b32 {v(d)}, {v(d+1)}")
        A(f"v_permlane16_swap_b32 {v(d+2)}, {v(d+3)}")
        A(f"v_add_f32 {v(d)}, {v(d)}, {v(d+1)}")
        A(f"v_add_f32 {v(d+2)}, {v(d+2)}, {v(d+3)}")
        A("s_nop 1")
        A(f"v_permlane32_swap_b32 {v(d)}, {v(d+2)}")
        A(f"v_add_f32 {v(d)}, {v(d)}, {v(d+2)}")
        A("s_nop 1")
        A(f"v_add_f32_dpp {v(d)}, {v(d)}, {v(d)} row_ror:8 {DPP}")
        A("s_nop 1")
        A(f"v_add_f32_dpp {v(d)}, {v(d)}, {v(d)} row_ror:4 {DPP}")
    A("s_nop 0")
    fold4(20)
    A("s_nop 1")
    A(f"v_add_f32_dpp v20, v20, v20 quad_perm:[2,3,0,1] {DPP}")
    A("v_cvt_pk_bf16_f32 v20, v20, v20")
    setexec(0x00030003, 0x00030003)
    A(f"ds_write_b16 {v(vOAW)}, v20 offset:{L_OA}")
    setexec(*FULL)
    A("s_waitcnt lgkmcnt(0)")
    A("s_barrier")
    A(f"ds_read_b128 v[28:31], {v(vOAR)} offset:{L_OA}")
    if o["f2pos"] == "oabar": flag2()
    A("s_waitcnt lgkmcnt(0)")
    for e in range(8): A(f"{M32} {v(32+4*e,4)}, v[28:31], {v(192+4*e,4)}, 0")
    A("s_nop 4")
    for k in range(4):
        if k == 3: A("s_nop 0")
        A(f"v_cndmask_b32 {v(16+k)}, {v(32+4*k)}, {v(48+4*k)}, s[10:11]")
    for k in range(4): A(f"v_perm_b32 {v(16+k)}, {v(16+k)}, v8, {sTI[k]}")
    A(f"buffer_store_dwordx4 v[16:19], {v(vH2S)}, {srd(SWS)}, {sH2W} offen {HS}")
    if o["f2pos"] == "pub2": flag2()
    stamp("pub2")
    if o["f2pos"] == "brep":
        A("s_cmp_lg_u32 s9, 0")
        A("s_cbranch_scc1 L_nof2")
        A(f"s_mov_b32 {sCNT}, {o['spin']}")
        A("L_reppoll:")
        A(f"buffer_load_dwordx4 v[24:27], {v(vMLG)}, {srd(SWS)}, s5 offen {HL}")
        A("s_waitcnt vmcnt(0)")
        A(f"v_cmp_ne_u32 vcc, {sT}, v26")
        A("s_and_b64 exec, exec, vcc")
        A("s_cbranch_scc0 L_repall")
        A(f"s_sub_u32 {sCNT}, {sCNT}, 1")
        A("s_cbranch_scc1 L_repall")
        A(f"s_sleep {o.get('mlsleep', 2)}")
        A("s_branch L_reppoll")
        A("L_repall:")
        setexec(*FULL)
        if o.get("f2delay"): A(f"s_sleep {o['f2delay']}")
        A(f"buffer_store_dword v8, {v(vFL)}, {srd(SWS)}, {sF2W} offen {HS}")
        A("L_nof2:")
    A(f"s_mov_b32 {sCNT}, {o['spin']}")
    if o["f2pos"] != "none":
        A("L_f2poll:")
        if o.get("sflag"):
            A(f"s_load_dword {sT1}, s[{SWS}:{SWS+1}], {sF2R} glc")
            A("s_waitcnt lgkmcnt(0)")
            A(f"s_cmp_eq_u32 {sT1}, {sT}")
        else:
            A(f"buffer_load_dword v24, {v(vZ)}, {srd(SWS)}, {sF2R} offen {HL}")
            A("s_waitcnt vmcnt(0)")
            A(f"v_cmp_ne_u32 vcc, {sT}, v24")
            A("s_cmp_eq_u64 vcc, 0")
        spin_tail("L_f2poll", "L_f2done", o.get("f2sleep"))
        stamp("f2_got")
        if stamps: A(f"s_mov_b32 s94, {sCNT}")
        A(f"s_mov_b32 {sCNT}, {o['spin']}")
    if o["fdelay"]: A(f"s_sleep {o['fdelay']}")
    A("L_fpoll:")
    A(f"buffer_load_dwordx4 v[20:23], v2, {srd(SWS)}, {sH2R} offen {HL}")
    A("s_waitcnt vmcnt(0)")
    tagcheck(20, 25, 26, "vcc")
    A("s_cmp_eq_u64 vcc, 0")
    spin_tail("L_fpoll", "L_fdone")
    stamp("hop2")
    if stamps: A(f"s_mov_b32 s97, {sCNT}")
    fold4(20)
    setexec(0x000f000f, 0x000f000f)
    A(f"ds_write_b32 {v(vFPW)}, v20 offset:{L_FP}")
    setexec(*FULL)
    A("s_waitcnt lgkmcnt(0)")
    A("s_barrier")
    A(f"s_cmp_lg_u32 {sW}, 0")
    A("s_cbranch_scc1 L_fin")
    A("v_lshlrev_b32 v9, 5, v0")
    setexec(0xffff, 0)
    A(f"ds_read_b128 v[16:19], v9 offset:{L_FP}")
    A(f"ds_read_b128 v[20:23], v9 offset:{L_FP+16}")
    A(f"s_lshl_b32 {sO}, s7, 12")
    A(f"s_lshl_b32 {sT1}, s8, 11")
    A(f"s_add_u32 {sO}, {sO}, {sT1}")
    A(f"s_lshl_b32 {sT1}, s6, 5")
    A(f"s_add_u32 {sO}, {sO}, {sT1}")
    A("v_lshlrev_b32 v9, 1, v0")
    A("s_waitcnt lgkmcnt(0)")
    for k in range(4): A(f"v_add_f32 {v(16+k)}, {v(16+k)}, {v(20+k)}")
    A("v_add_f32 v16, v16, v17")
    A("v_add_f32 v18, v18, v19")
    A("v_add_f32 v16, v16, v18")
    A("v_cvt_pk_bf16_f32 v16, v16, v16")
    A(f"buffer_store_short v16, v9, {srd(SOUT)}, {sO} offen")
    A("s_cmp_lg_u32 s2, 0")
    A("s_cbranch_scc1 L_fin")
    setexec(1, 0)
    A(f"buffer_store_dword v8, {v(vZ)}, {srd(SWS)}, 0 offen")
    A("L_fin:")
    if stamps:
        setexec(*FULL)
        stamp("end")
        A("s_waitcnt lgkmcnt(0)")
        A("s_getreg_b32 s98, hwreg(HW_REG_XCC_ID)")
        A("s_getreg_b32 s99, hwreg(HW_REG_HW_ID)")
        vals = ["s60"] + [f"s{62+2*k}" for k in range(1, 16)] + ["s94", "s95", "s96", "s97", "s98", "s99", "s61", "s98"]
        for k, s in enumerate(vals): A(f"v_mov_b32 {v(128+k)}, {s}")
        A(f"s_lshl_b32 {sT1}, s2, 3")
        A(f"s_add_u32 {sT1}, {sT1}, {sW}")
        A(f"s_lshl_b32 {sT1}, {sT1}, 7")
        A(f"s_add_u32 {sT1}, {sT1}, {WS_ST}")
        A("v_mov_b32 v9, 0")
        setexec(1, 0)
        if o.get("dbgout"):
            A("s_load_dwordx2 s[4:5], s[0:1], 88")
            A("s_mov_b32 s6, 256")
            A("s_mov_b32 s7, 0x20000")
            A("v_not_b32 v128, v128")
            A("s_waitcnt lgkmcnt(0)")
            A(f"s_cmp_lg_u32 {sW}, 0")
            A("s_cbranch_scc1 L_end")
            for k in range(16): A(f"buffer_atomic_umax {v(128+k)}, v9, s[4:7], 0 offen offset:{4*k}")
        else:
            for k in range(6): A(f"buffer_store_dwordx4 {v(128+4*k,4)}, v9, {srd(SWS)}, {sT1} offen offset:{16*k}")
    A("L_end:")
    A("s_endpgm")
    A('.section .rodata,"a"')
    A(".p2align 6")
    A(f".amdhsa_kernel {NAME}")
    A(".amdhsa_next_free_vgpr 256")
    A(".amdhsa_next_free_sgpr 102")
    A(".amdhsa_accum_offset 256")
    A(".amdhsa_group_segment_fixed_size 0")
    A(".amdhsa_kernarg_size 104")
    A(".amdhsa_user_sgpr_count 2")
    A(".amdhsa_user_sgpr_kernarg_segment_ptr 1")
    A(".amdhsa_system_sgpr_workgroup_id_x 1")
    A(".amdhsa_float_denorm_mode_32 3")
    A(".end_amdhsa_kernel")
    msgs = check_hazards(A.lines)
    for m in msgs: print(m, file=sys.stderr)
    return A.text()

if __name__ == "__main__":
    import json
    name = sys.argv[1]; opt = json.loads(sys.argv[2]) if len(sys.argv) > 2 else {}
    open(f"k_{name}.s", "w").write(gen(False, opt))
    open(f"k_{name}_st.s", "w").write(gen(True, opt))
```

```python
import sys, struct, math
from asmlib import Asm, check_hazards

NAME = "concat_heads__gqa_block_cached__sliding_block_cached__decode_kernel"
REF = "concat_heads__gqa_block_cached__sliding_block_cached__decode.s.ref"

WS_Q   = 0x10000
WS_ML  = 0x30000
WS_F2  = 0x40000
WS_H1  = 0x100000
WS_H2  = 0x300000
WS_ST  = 0x500000
WS_USED = 0x600000
L_QP = 0
L_QS = L_QP + 4096
L_ML = L_QS + 4096
L_F  = L_ML + 1024
L_W  = L_F + 256
L_OA = L_W + 512
L_FP = L_OA + 128
L_CNT = L_FP + 512
L_OP = 12288
assert L_CNT + 256 <= L_OP
L_END = L_OP + 65536

DEF_STN = ["start", "wq_land", "q_pub", "q_got", "q_lds", "S_done", "lastV", "bar_O", "pub1", "wo_land", "ml_got", "hop1", "pub2", "f2_got", "hop2", "end"]

def f32bits(x):
    return struct.unpack("<I", struct.pack("<f", x))[0]

def gen(stamps=False, opt=None):
    o = dict(spin=400000, ld="nt", hs="sc1", hl="sc1", sleep=1, d=3, d0=8, d2=6, n2=16, gq=12, wo_before=0,
             mlpos="lastV", odelay=0, f2pos="oabar", fdelay=0, skew=1)
    if opt: o.update(opt)
    LD, HS, HL = o["ld"], o["hs"], o["hl"]
    A = Asm()
    hdr = [l.rstrip("\n") for l in open(REF) if l.startswith(";") and "@launch" not in l and "Override" not in l and "grid=ceil" not in l]
    for l in hdr: A(l)
    A(f"; @launch grid=(256,1,1) block=(512,1,1) lds={L_END}")
    STN = o.get("stn", DEF_STN)
    if stamps: A("; stamps: " + " ".join(STN))
    A('.amdgcn_target "amdgcn-amd-amdhsa--gfx950"')
    A(".text")
    A(f".globl {NAME}")
    A(".p2align 8")
    A(f".type {NAME},@function")
    A(f"{NAME}:")

    SX, SWQ, SKA, SVA, SKB, SVB, SWO, SWS, SOUT = 4, 8, 12, 16, 20, 24, 28, 32, 36
    sW, sB, sKVH, sSP, sO, sKA0, sT, sCNT = "s40", "s41", "s42", "s43", "s44", "s45", "s46", "s47"
    sLO, sHI, sXA, sXB, sC = "s48", "s49", "s50", "s51", "s52"
    sTI = ["s53", "s54", "s55", "s56"]
    sO2, sT1, sT2 = "s57", "s58", "s59"
    sR, sKB0, sG = "s3", "s100", "s101"
    srd = lambda b: f"s[{b}:{b+3}]"
    def stamp(name):
        if stamps and name in STN:
            k = STN.index(name)
            A(f"s_memrealtime s[{62+2*k}:{63+2*k}]") if k > 0 else A("s_memrealtime s[60:61]")
        if stamps and o.get("cut") == name: A("s_waitcnt vmcnt(0)"); A("s_branch L_fin")
    def v(b, n=1):
        return f"v{b}" if n == 1 else f"v[{b}:{b+n-1}]"
    def setexec(lo, hi):
        if lo == hi == 0xffffffff: A("s_mov_b64 exec, -1")
        else: A(f"s_mov_b32 exec_lo, {lo:#x}"); A(f"s_mov_b32 exec_hi, {hi:#x}")
    FULL = (0xffffffff, 0xffffffff)
    DPP = "row_mask:0xf bank_mask:0xf"
    M32 = "v_mfma_f32_16x16x32_bf16"

    NTOT = 1 + 8 + 8 + 32 + 2 + 32 + 8
    vm = dict(n=0, done=0, tag={})
    lab = [0]
    sTHR, sTHR2 = "s99", "s98"
    def vwait(k):
        if k >= vm["done"]:
            A(f"s_waitcnt vmcnt({vm['n'] - 1 - k})")
            vm["done"] = k + 1
    def dwin(i):
        return o["d0"] if i < 9 else (o["d2"] if i >= NTOT - o["n2"] else o["d"])
    FB = o.get("fb", 0)
    def pacewait(i):
        d = dwin(i)
        if FB and 9 <= i < NTOT - o["n2"]:
            if i % FB == 0 and i >= o.get("fb0", 12):
                A("v_mov_b32 v9, 0")
                A("v_mov_b32 v10, 1")
                setexec(1, 0)
                A(f"ds_add_rtn_u32 v10, v9, v10 offset:{L_CNT+16+4*(i//FB)}")
                A("s_waitcnt lgkmcnt(0)")
                A(f"v_cmp_le_u32 vcc, {sTHR if i < o.get('slow_until', 0) else sTHR2 if o.get('odd') else o.get('thr', 4)}, v10")
                setexec(*FULL)
            dhi = o.get("dhi", d + 1)
            vwait(min(i - dhi, vm["n"] - 1))
            k = min(i - d, vm["n"] - 1)
            if k >= vm["done"]:
                lab[0] += 1
                A(f"s_cbranch_vccnz L_sk{lab[0]}")
                A(f"s_waitcnt vmcnt({vm['n'] - 1 - k})")
                A(f"L_sk{lab[0]}:")
        elif i - d >= 0:
            vwait(min(i - d, vm["n"] - 1))
    def load(txt, tag=None, pace=True):
        i = vm["n"]
        if pace: pacewait(i)
        A(txt)
        if tag: vm["tag"][tag] = i
        vm["n"] += 1
    def need(tag): vwait(vm["tag"][tag])
    def run(seq, code, boost):
        base = vm["n"]; issued = 0
        for i in range(len(seq)):
            extra = vm["n"] - base - issued
            if i < issued:
                pacewait(base + extra + i)
            else:
                seq[i](True); issued = i + 1
            while issued < min(len(seq), i + 1 + boost.get(i, 0)):
                seq[issued](False); issued += 1
            for f in code.get(i, []): f()

    def spin_tail(label, done, sl=None):
        sl = o["sleep"] if sl is None else sl
        A(f"s_cbranch_scc1 {done}")
        A(f"s_sub_u32 {sCNT}, {sCNT}, 1")
        A(f"s_cbranch_scc1 {done}")
        if sl: A(f"s_sleep {sl}")
        A(f"s_branch {label}")
        A(f"{done}:")
    def arrive(k):
        A("v_mov_b32 v9, 0")
        A("v_mov_b32 v10, 1")
        setexec(1, 0)
        A(f"ds_add_u32 v9, v10 offset:{L_CNT+4*k}")
        setexec(*FULL)
    def wait_cnt(k):
        lab[0] += 1
        l = f"L_cnt{lab[0]}"
        A("v_mov_b32 v9, 0")
        A(f"s_mov_b32 {sCNT}, {o['spin']}")
        A(f"{l}:")
        A(f"ds_read_b32 v10, v9 offset:{L_CNT+4*k}")
        A("s_waitcnt lgkmcnt(0)")
        A(f"v_readfirstlane_b32 {sT1}, v10")
        A(f"s_cmp_eq_u32 {sT1}, 8")
        spin_tail(l, l + "d", 1)
    def tagcheck(d, t0, t1, dst):
        A(f"v_perm_b32 {v(t0)}, {v(d+1)}, {v(d)}, {sXA}")
        A(f"v_perm_b32 {v(t1)}, {v(d+3)}, {v(d+2)}, {sXB}")
        A(f"v_or_b32 {v(t0)}, {v(t0)}, {v(t1)}")
        A(f"v_cmp_ne_u32 {dst}, {sT}, {v(t0)}")
    def transpose_mfma(src, acc, other, first, tmp, a_is_tile, nrows=8):
        nt = nrows // 2
        op = M32 if nrows == 8 else "v_mfma_f32_16x16x16_bf16"
        def perms(e):
            t = tmp + 4 * (e % 4)
            for k in range(nt):
                A(f"v_perm_b32 {v(t+k)}, {v(src+4*(2*k+1)+(e>>1))}, {v(src+4*(2*k)+(e>>1))}, {sHI if e & 1 else sLO}")
        def mfma(e):
            t = v(tmp + 4 * (e % 4), nt)
            c = "0" if first else v(acc+4*e, 4)
            a, b = (t, other) if a_is_tile else (other, t)
            A(f"{op} {v(acc+4*e,4)}, {a}, {b}, {c}")
        perms(0)
        for e in range(8):
            if e < 7: perms(e+1)
            else: A("s_nop 1")
            mfma(e)
    def butterfly(op, x, t):
        for sw in ("v_permlane16_swap_b32", "v_permlane32_swap_b32"):
            A(f"v_mov_b32 {v(t)}, {v(x)}")
            A("s_nop 1")
            A(f"{sw} {v(x)}, {v(t)}")
            A(f"{op} {v(x)}, {v(x)}, {v(t)}")
    def write_O(br, acc):
        setexec(0x00ff00ff, 0x00ff00ff)
        for e in range(8):
            if e == 0:
                A(f"ds_write_b128 v28, {v(acc,4)} offset:{L_OP+32768*br}")
            else:
                A(f"v_xor_b32 {v(29+(e&1))}, {16*e}, v28")
                A(f"ds_write_b128 {v(29+(e&1))}, {v(acc+4*e,4)} offset:{L_OP+32768*br}")
        setexec(*FULL)

    stamp("start")
    A("s_cmp_ge_u32 s2, 256")
    A("s_cbranch_scc1 L_end")
    A("s_load_dwordx16 s[64:79], s[0:1], 0")
    A("s_load_dwordx8 s[80:87], s[0:1], 64")
    A("s_load_dwordx2 s[88:89], s[0:1], 96")
    A("v_lshrrev_b32 v1, 6, v0")
    A("v_and_b32 v0, 63, v0")
    A(f"v_readfirstlane_b32 {sW}, v1")
    A(f"s_and_b32 {sB}, s2, 1")
    A(f"s_bfe_u32 {sKVH}, s2, 0x20001")
    A(f"s_lshr_b32 {sSP}, s2, 3")
    A("v_lshrrev_b32 v9, 3, v0")
    A("v_and_b32 v10, 7, v0")
    A("v_lshlrev_b32 v10, 4, v10")
    A("v_lshl_or_b32 v3, v9, 16, v10")
    A("v_lshrrev_b32 v12, 4, v0")
    A("v_bfe_u32 v9, v0, 2, 1")
    A("v_and_b32 v10, 1, v0")
    A("v_lshl_or_b32 v10, v12, 1, v10")
    A("v_lshlrev_b32 v10, 4, v10")
    A("v_lshl_or_b32 v11, v9, 11, v10")
    A(f"s_and_b32 {sT1}, {sSP}, 1")
    A(f"s_lshl_b32 {sT1}, {sT1}, 3")
    A(f"s_add_u32 {sT1}, {sT1}, {sW}")
    A(f"s_lshl_b32 {sO}, {sT1}, 19")
    A(f"s_lshl_b32 {sO2}, {sT1}, 7")
    A(f"s_lshl_b32 {sT1}, {sKVH}, 11")
    A(f"s_lshr_b32 {sT2}, {sSP}, 1")
    A(f"s_lshl_b32 {sT2}, {sT2}, 7")
    A(f"s_add_u32 {sO}, {sO}, {sT1}")
    A(f"s_add_u32 {sO}, {sO}, {sT2}")
    A(f"s_mov_b32 s{SX+2}, 4096")
    A(f"s_mov_b32 s{SX+3}, 0x20000")
    A(f"s_mov_b32 s{SWQ+2}, 0x800000")
    A(f"s_mov_b32 s{SWQ+3}, 0x20000")
    A("v_mov_b32 v16, 0")
    A("v_lshlrev_b32 v17, 2, v0")
    A("s_mov_b64 vcc, 0")
    A(f"s_cmp_eq_u32 {sB}, 0")
    A("s_waitcnt lgkmcnt(0)")
    A(f"s_cselect_b64 s[{SX}:{SX+1}], s[64:65], s[74:75]")
    A(f"s_cselect_b64 s[{SWQ}:{SWQ+1}], s[70:71], s[80:81]")
    A(f"s_cselect_b64 s[{SWO}:{SWO+1}], s[72:73], s[82:83]")
    il = o.get("il", False)
    def ldWQ(i, pace=True):
        load(f"buffer_load_dwordx4 {v(64+4*i,4)}, v3, {srd(SWQ)}, {sO} offen {LD}", tag=f"WQ{i}", pace=pace)
        A(f"s_add_u32 {sO}, {sO}, 8192")
    nfirst = 2 if il else min(8, o["d0"])
    for i in range(nfirst): ldWQ(i)
    if o.get("wsoff"):
        A(f"s_add_u32 s88, s88, {o['wsoff']:#x}")
        A("s_addc_u32 s89, s89, 0")
    A(f"s_load_dword {sT}, s[88:89], 0")
    A(f"ds_write_b32 v17, v16 offset:{L_CNT}")
    if o.get("odd"):
        A(f"s_getreg_b32 {sT1}, hwreg(HW_REG_XCC_ID, 0, 1)")
        A(f"s_mul_i32 {sT1}, {sT1}, {o['odd']}")
        A(f"s_sub_u32 {sTHR2}, {o.get('thr', 4)}, {sT1}")
    if o.get("slow_until"):
        A(f"s_lshr_b32 {sT1}, s{SWQ}, 7")
        A(f"s_lshr_b32 {sT2}, {sSP}, 1")
        A(f"s_add_u32 {sT1}, {sT1}, {sT2}")
        A(f"s_and_b32 {sT1}, {sT1}, 7")
        A(f"s_cmp_eq_u32 {sT1}, 3")
        A(f"s_cselect_b32 {sTHR}, 0, {sTHR2 if o.get('odd') else o.get('thr', 4)}")
    for b, p, n in ((SKA, 66, 0x4000000), (SVA, 68, 0x4000000), (SKB, 76, 0x4000000), (SVB, 78, 0x4000000),
                    (SWS, 88, WS_USED), (SOUT, 84, 8192)):
        A(f"s_mov_b64 s[{b}:{b+1}], s[{p}:{p+1}]")
        A(f"s_mov_b32 s{b+2}, {n:#x}")
        A(f"s_mov_b32 s{b+3}, 0x20000")
    A(f"s_mov_b32 s{SWO+2}, 0x800000")
    A(f"s_mov_b32 s{SWO+3}, 0x20000")
    A("v_lshlrev_b32 v2, 4, v0")
    A("v_bfe_u32 v9, v0, 1, 1")
    A("v_lshlrev_b32 v1, 4, v12")
    A("v_lshl_or_b32 v1, v9, 10, v1")
    A("v_bfe_u32 v9, v0, 2, 2")
    A("v_lshl_or_b32 v1, v9, 8, v1")
    A("v_and_b32 v9, 1, v0")
    A("v_lshl_or_b32 v1, v9, 6, v1")
    A(f"s_lshl_b32 {sG}, {sB}, 2")
    A(f"s_add_u32 {sG}, {sG}, {sKVH}")
    A(f"s_lshl_b32 {sT1}, {sG}, 23")
    A(f"s_lshl_b32 {sT2}, {sSP}, 3")
    A(f"s_add_u32 {sT2}, {sT2}, {sW}")
    if o.get("blk"):
        A(f"s_lshl_b32 {sKA0}, {sT2}, 15")
        A(f"s_add_u32 {sKA0}, {sKA0}, {sT1}")
        A(f"s_lshl_b32 {sT2}, {sT2}, 12")
        A(f"s_add_u32 {sKB0}, {sT1}, {sT2}")
        A(f"s_add_u32 {sKB0}, {sKB0}, {28672*256}")
    else:
        A(f"s_lshl_b32 {sT2}, {sT2}, 12")
        A(f"s_add_u32 {sKA0}, {sT1}, {sT2}")
        A(f"s_add_u32 {sKB0}, {sKA0}, {28672*256}")
    A(f"s_mov_b32 {sLO}, 0x05040100")
    A(f"s_mov_b32 {sHI}, 0x07060302")
    A(f"s_mov_b32 {sXA}, 0x0c0c0400")
    A(f"s_mov_b32 {sXB}, 0x04000c0c")
    A(f"s_mov_b32 {sC}, {f32bits(128**-0.5 * math.log2(math.e)):#x}")
    for k in range(4): A(f"s_mov_b32 {sTI[k]}, {0x07060500+k:#x}")
    A("s_waitcnt lgkmcnt(0)")
    A("s_barrier")
    if o.get("touch"):
        A(f"s_and_b32 {sT1}, {sW}, 3")
        A(f"s_lshl_b32 {sT1}, {sT1}, 21")
        A(f"s_lshl_b32 {sT2}, {sG}, 23")
        A(f"s_add_u32 {sT1}, {sT1}, {sT2}")
        if o.get("blk"): A(f"s_mov_b32 {sT1}, {sKA0}")
        A(f"s_cmp_lt_u32 {sW}, 4")
        A(f"s_cselect_b64 s[90:91], s[{SKA}:{SKA+1}], s[{SVA}:{SVA+1}]")
        A(f"s_load_dword s92, s[90:91], {sT1}")
        A(f"s_and_b32 {sT2}, {sW}, 3")
        A(f"s_lshl_b32 {sT2}, {sT2}, 21")
        A(f"s_min_u32 {sT2}, {sT2}, 0x400000")
        A(f"s_cselect_b64 s[90:91], s[{SWS}:{SWS+1}], s[{SWS}:{SWS+1}]")
        A(f"s_cmp_lt_u32 {sW}, 4")
        A("s_cbranch_scc1 L_tw")
        A(f"s_lshl_b32 {sT2}, {sKVH}, 21")
        A(f"s_mov_b64 s[90:91], s[{SWO}:{SWO+1}]")
        A("L_tw:")
        A(f"s_load_dword s93, s[90:91], {sT2}")
    KOFF = [0, 128, 2048, 2176]
    def ldB(i, pace=True):
        if i < 4: load(f"buffer_load_dwordx4 {v(96+4*i,4)}, v1, {srd(SKB)}, {sKB0} offen offset:{KOFF[i]} {LD}", tag=f"B{i}", pace=pace)
        else: load(f"buffer_load_dwordx4 {v(96+4*i,4)}, v2, {srd(SVB)}, {sKB0} offen offset:{1024*(i-4)} {LD}", tag=f"B{i}", pace=pace)
    nB = 0
    for i in range(nfirst, 8):
        if il and nB < 5: ldB(nB); nB += 1
        ldWQ(i)
    load(f"buffer_load_dwordx4 v[4:7], v11, {srd(SX)}, {sO2} offen", tag="wq", pace=False)
    A(f"s_mul_i32 {sT}, {sT}, 0x9e3779b1")
    A(f"s_add_u32 {sT}, {sT}, 0x7f4a7c15")
    A(f"v_mov_b32 v8, {sT}")

    def blk_start():
        if o.get("blk"): A(f"s_lshl_b32 {sR}, {sW}, 12")
        elif o["skew"]: A(f"s_lshl_b32 {sR}, {sG}, 20")
        else: A(f"s_mov_b32 {sR}, 0")
        A(f"s_add_u32 {sO}, {sKA0}, {sR}")
    def blk_step():
        A(f"s_add_u32 {sR}, {sR}, {0x1000 if o.get('blk') else 0x100000:#x}")
        A(f"s_and_b32 {sR}, {sR}, {0x7fff if o.get('blk') else 0x7fffff:#x}")
        A(f"s_add_u32 {sO}, {sKA0}, {sR}")
    def ldK(i, pace=True):
        if i == 0: blk_start()
        elif i % 4 == 0: blk_step()
        load(f"buffer_load_dwordx4 {v(128+4*i,4)}, v1, {srd(SKA)}, {sO} offen offset:{KOFF[i%4]} {LD}", tag=f"K{i}", pace=pace)
    def ldV(i, pace=True):
        if i == 0: blk_start()
        elif i % 4 == 0: blk_step()
        load(f"buffer_load_dwordx4 {v(128+4*i,4)}, v2, {srd(SVA)}, {sO} offen offset:{1024*(i%4)} {LD}", tag=f"V{i}", pace=pace)
    sWO = "s100"
    def ldWO(i, pace=True):
        load(f"buffer_load_dwordx4 {v(96+4*i,4)}, v3, {srd(SWO)}, {sWO} offen {LD}", tag=f"WO{i}", pace=pace)
        if i < 7: A(f"s_add_u32 {sWO}, {sWO}, 8192")

    for i in range(3):
        vwait(vm["tag"]["wq"] - 3 + i)
        ldB(nB, pace=False); nB += 1
    need("wq")
    stamp("wq_land")
    transpose_mfma(64, 32, "v[4:7]", True, 32 if False else 224, False)
    kpre = 0
    def more():
        nonlocal nB, kpre
        if nB < 8: ldB(nB); nB += 1
        else: ldK(kpre); kpre += 1
    more()
    A("v_and_b32 v9, 15, v0")
    A("v_lshlrev_b32 v9, 5, v9")
    A("v_lshl_or_b32 v9, v12, 8, v9")
    A(f"s_lshl_b32 {sT1}, {sW}, 9")
    A(f"v_add_u32 v13, {sT1}, v9")
    for e in range(8):
        if e == 7: A("s_nop 0")
        A(f"v_add_f32_dpp {v(64+e)}, {v(33+4*e)}, {v(32+4*e)} row_ror:8 {DPP}")
    setexec(0x00ff00ff, 0)
    A(f"ds_write_b128 v13, v[64:67] offset:{L_QP}")
    A(f"ds_write_b128 v13, v[68:71] offset:{L_QP+16}")
    setexec(*FULL)
    arrive(0)
    more()
    A(f"s_cmp_lg_u32 {sW}, 0")
    A("s_cbranch_scc1 L_noqpub")
    A("v_and_b32 v13, 15, v0")
    A("v_lshlrev_b32 v13, 4, v13")
    A("v_lshl_or_b32 v13, v12, 13, v13")
    A(f"s_lshl_b32 {sO2}, {sG}, 14")
    A(f"s_and_b32 {sT2}, {sSP}, 1")
    A(f"s_lshl_b32 {sT2}, {sT2}, 12")
    A(f"s_add_u32 {sO2}, {sO2}, {sT2}")
    A(f"s_lshr_b32 {sT2}, {sSP}, 1")
    A(f"s_lshl_b32 {sT2}, {sT2}, 8")
    A(f"s_add_u32 {sO2}, {sO2}, {sT2}")
    A(f"s_add_u32 {sO2}, {sO2}, {WS_Q}")
    wait_cnt(0)
    for w in range(8): A(f"ds_read_b128 {v(32+4*w,4)}, v2 offset:{L_QP+512*w}")
    for w in range(1, 8):
        A(f"s_waitcnt lgkmcnt({7-w})")
        for k in range(4): A(f"v_add_f32 {v(32+k)}, {v(32+k)}, {v(32+4*w+k)}")
    for k in range(4): A(f"v_perm_b32 {v(32+k)}, {v(32+k)}, v8, {sTI[k]}")
    setexec(0xffffffff, 0)
    A(f"buffer_store_dwordx4 v[32:35], v13, {srd(SWS)}, {sO2} offen {HS}")
    setexec(*FULL)
    stamp("q_pub")
    A("L_noqpub:")
    while nB < 8: more()

    gq = o["gq"]
    def q_issue():
        A(f"s_lshl_b32 {sT1}, {sKVH}, 1")
        A(f"s_add_u32 {sT1}, {sT1}, {sB}")
        A(f"s_lshl_b32 {sT1}, {sT1}, 13")
        A(f"s_lshr_b32 {sT2}, {sW}, 2")
        A(f"s_lshl_b32 {sT2}, {sT2}, 16")
        A(f"s_add_u32 {sT1}, {sT1}, {sT2}")
        A(f"s_and_b32 {sT2}, {sW}, 3")
        A(f"s_lshl_b32 {sT2}, {sT2}, 10")
        A(f"s_add_u32 {sT1}, {sT1}, {sT2}")
        A(f"s_add_u32 s4, {sT1}, {WS_Q}")
        A(f"s_add_u32 s5, s4, 4096")
        load(f"buffer_load_dwordx4 v[16:19], v2, {srd(SWS)}, s4 offen {HL}", pace=False)
        load(f"buffer_load_dwordx4 v[20:23], v2, {srd(SWS)}, s5 offen {HL}", tag="Q", pace=False)
    def q_check():
        need("Q")
        A(f"s_mov_b32 {sCNT}, {o['spin']}")
        A("L_qpoll:")
        tagcheck(16, 9, 10, "s[6:7]")
        tagcheck(20, 9, 10, "s[58:59]")
        A("s_or_b64 s[6:7], s[6:7], s[58:59]")
        A("s_cmp_eq_u64 s[6:7], 0")
        A("s_cbranch_scc1 L_qdone")
        A(f"s_sub_u32 {sCNT}, {sCNT}, 1")
        A("s_cbranch_scc1 L_qdone")
        A("s_sleep 8")
        A(f"buffer_load_dwordx4 v[16:19], v2, {srd(SWS)}, s4 offen {HL}")
        A(f"buffer_load_dwordx4 v[20:23], v2, {srd(SWS)}, s5 offen {HL}")
        A("s_waitcnt vmcnt(0)")
        A("s_branch L_qpoll")
        A("L_qdone:")
        if stamps: A(f"s_mov_b32 s61, {sCNT}")
        stamp("q_got")
        for k in range(4): A(f"v_add_f32 {v(16+k)}, {v(16+k)}, {v(20+k)}")
        A(f"s_lshl_b32 {sT1}, {sW}, 9")
        A("v_lshlrev_b32 v13, 3, v0")
        A(f"v_add_u32 v13, {sT1}, v13")
        A("v_cvt_pk_bf16_f32 v16, v16, v17")
        A("v_cvt_pk_bf16_f32 v17, v18, v19")
        A(f"ds_write_b64 v13, v[16:17] offset:{L_QS}")
        arrive(1)
    def q_read():
        A("v_and_b32 v13, 7, v0")
        A("v_lshlrev_b32 v28, 4, v13")
        A("v_lshl_or_b32 v28, v13, 9, v28")
        A("v_lshl_or_b32 v28, v12, 7, v28")
        A(f"s_lshl_b32 {sT1}, {sW}, 12")
        A(f"v_add_u32 v28, {sT1}, v28")
        A("v_lshlrev_b32 v13, 8, v13")
        A("v_lshl_or_b32 v13, v12, 4, v13")
        A("v_bfe_u32 v14, v0, 3, 1")
        A("v_lshl_or_b32 v13, v14, 6, v13")
        wait_cnt(1)
        stamp("q_lds")
        A(f"ds_read_b128 v[56:59], v13 offset:{L_QS+2048}")
        A(f"ds_read_b128 v[60:63], v13 offset:{L_QS+2048+128}")
        A(f"ds_read_b128 v[48:51], v13 offset:{L_QS}")
        A(f"ds_read_b128 v[52:55], v13 offset:{L_QS+128}")
    def qk_B():
        need("B7")
        A("s_waitcnt lgkmcnt(2)")
        for g in range(2): A(f"{M32} {v(32+4*g,4)}, {v(96+8*g,4)}, v[56:59], 0")
        for g in range(2): A(f"{M32} {v(32+4*g,4)}, {v(100+8*g,4)}, v[60:63], {v(32+4*g,4)}")
        A(f"s_lshl_b32 {sT1}, {sW}, 2")
        A("v_lshlrev_b32 v31, 5, v0")
        A(f"v_add_u32 v31, {sT1}, v31")
        A("s_nop 4")
        for g in range(2):
            for a in range(2):
                A(f"v_add_f32_dpp {v(16+2*g+a)}, {v(32+4*g+2*a+1)}, {v(32+4*g+2*a)} row_ror:8 {DPP}")
    def sm_B():
        A("s_waitcnt lgkmcnt(0)")
        A("v_max3_f32 v23, v16, v17, v18")
        A("v_max_f32 v23, v23, v19")
        butterfly("v_max_f32", 23, 27)
        A(f"v_mul_f32 v23, {sC}, v23")
        for i in range(4): A(f"v_fma_f32 {v(16+i)}, {v(16+i)}, {sC}, -v23")
        for i in range(4): A(f"v_exp_f32 {v(16+i)}, {v(16+i)}")
        A("v_add_f32 v25, v16, v17")
        A("v_add_f32 v27, v18, v19")
        A("v_cvt_pk_bf16_f32 v20, v16, v17")
        A("v_cvt_pk_bf16_f32 v21, v18, v19")
        A("v_add_f32 v25, v25, v27")
        butterfly("v_add_f32", 25, 27)
        setexec(0xff, 0)
        A(f"ds_write_b32 v31, v23 offset:{L_ML+512}")
        A(f"ds_write_b32 v31, v25 offset:{L_ML+768}")
        setexec(*FULL)
    def pv_B():
        transpose_mfma(112, 64, "v[20:21]", True, 32, True, nrows=4)
    def wr_B():
        A("s_nop 3")
        write_O(1, 64)
    def qk(t):
        kb = 128 + 32*t
        need(f"K{8*t+7}")
        for g in range(4): A(f"{M32} {v(32+4*g,4)}, {v(kb+8*g,4)}, v[48:51], 0")
        for g in range(4): A(f"{M32} {v(32+4*g,4)}, {v(kb+8*g+4,4)}, v[52:55], {v(32+4*g,4)}")
        A("s_nop 4")
        for g in range(4):
            for a in range(2):
                if g == 3 and a == 0: A("s_nop 0")
                A(f"v_add_f32_dpp {v(64+8*t+2*g+a)}, {v(32+4*g+2*a+1)}, {v(32+4*g+2*a)} row_ror:8 {DPP}")
    kcode = {gq: [q_issue], gq+3: [q_check], gq+6: [q_read], gq+7: [qk_B], gq+8: [sm_B], gq+9: [pv_B], gq+10: [wr_B],
             gq+11: [lambda: qk(0)], gq+12: [lambda: qk(1)]}
    kcode.setdefault(max(gq+13, 27), []).append(lambda: qk(2))
    assert max(kcode) <= 31
    bk = o.get("bk", 0)
    kboost = {i: bk for i in range(gq+6, gq+14)}
    run([(lambda pace, i=i: ldK(i, pace)) for i in range(kpre, 32)], {i - kpre: f for i, f in kcode.items()}, {i - kpre: f for i, f in kboost.items()})

    def sm_max():
        A("v_max3_f32 v22, v64, v65, v66")
        A("v_max3_f32 v26, v67, v68, v69")
        left = list(range(70, 96)); k = 0
        while left:
            dst = 22 if k % 2 == 0 else 26
            a, b = left.pop(0), left.pop(0)
            A(f"v_max3_f32 {v(dst)}, {v(dst)}, {v(a)}, {v(b)}")
            k += 1
        A("v_max_f32 v22, v22, v26")
        butterfly("v_max_f32", 22, 26)
        A(f"v_mul_f32 v22, {sC}, v22")
        stamp("S_done")
    def sm_exp(t):
        b = 64 + 8*t
        for i in range(8): A(f"v_fma_f32 {v(b+i)}, {v(b+i)}, {sC}, -v22")
        for i in range(8): A(f"v_exp_f32 {v(b+i)}, {v(b+i)}")
        if t == 0:
            A(f"v_add_f32 v24, {v(b)}, {v(b+1)}")
            A(f"v_add_f32 v26, {v(b+2)}, {v(b+3)}")
            r = range(4, 8, 2)
        else:
            r = range(0, 8, 2)
        for i in r:
            A(f"v_add_f32 v24, v24, {v(b+i)}")
            A(f"v_add_f32 v26, v26, {v(b+i+1)}")
        for k in range(4): A(f"v_cvt_pk_bf16_f32 {v(64+4*t+k)}, {v(b+2*k)}, {v(b+2*k+1)}")
    def sm_sum():
        A("v_add_f32 v24, v24, v26")
        butterfly("v_add_f32", 24, 26)
        setexec(0xff, 0)
        A(f"ds_write_b32 v31, v22 offset:{L_ML}")
        A(f"ds_write_b32 v31, v24 offset:{L_ML+256}")
        setexec(*FULL)
        arrive(2)
    sH1W, sMLW, sH1R, sMLR, sH2W, sH2R, sF2W, sF2R = "s20", "s21", "s22", "s23", "s24", "s25", "s26", "s27"
    def addr2():
        A(f"s_and_b32 {sT1}, {sW}, 3")
        A(f"s_lshl_b32 {sT1}, {sT1}, 6")
        A(f"v_add_u32 v9, {sT1}, v0")
        A("v_lshrrev_b32 v10, 5, v9")
        A("v_lshrrev_b32 v11, 3, v9")
        A("v_and_b32 v13, 7, v0")
        A("v_xor_b32 v14, v13, v10")
        A("v_lshlrev_b32 v14, 4, v14")
        A("v_lshl_or_b32 v14, v11, 7, v14")
        A("v_lshlrev_b32 v15, 5, v10")
        A("v_lshlrev_b32 v13, 4, v13")
        A("v_lshl_or_b32 v11, v11, 13, v13")
        A(f"s_lshr_b32 {sT2}, {sW}, 2")
        A(f"s_lshl_b32 {sT2}, {sT2}, 2")
        A(f"s_add_u32 {sT2}, {sT2}, {sKVH}")
        A(f"s_lshl_b32 {sT1}, {sB}, 5")
        A(f"s_add_u32 {sT1}, {sT1}, {sSP}")
        A(f"s_lshl_b32 {sT1}, {sT1}, 7")
        A(f"s_lshl_b32 {sH1W}, {sT2}, 18")
        A(f"s_add_u32 {sH1W}, {sH1W}, {sT1}")
        A(f"s_add_u32 {sH1W}, {sH1W}, {WS_H1}")
        A(f"s_lshl_b32 {sMLW}, {sT2}, 13")
        A(f"s_add_u32 {sMLW}, {sMLW}, {sT1}")
        A(f"s_add_u32 {sMLW}, {sMLW}, {WS_ML}")
        A("v_and_b32 v3, 15, v0")
        A("v_lshlrev_b32 v3, 4, v3")
        A("v_lshl_or_b32 v3, v12, 11, v3")
        A(f"s_lshl_b32 {sT1}, {sKVH}, 5")
        A(f"s_add_u32 {sT1}, {sT1}, {sSP}")
        A(f"s_lshl_b32 {sWO}, {sT1}, 16")
        A(f"s_lshl_b32 {sT2}, {sW}, 8")
        A(f"s_add_u32 {sWO}, {sWO}, {sT2}")
    def duties():
        A(f"s_cmp_lt_u32 {sW}, 4")
        A("s_cbranch_scc1 L_notB")
        wait_cnt(2)
        A(f"ds_read_b128 v[32:35], v15 offset:{L_ML+512}")
        A(f"ds_read_b128 v[36:39], v15 offset:{L_ML+512+16}")
        A("v_add_u32 v13, 32768, v14")
        for w in range(8): A(f"ds_read_b128 {v(96+4*w,4)}, v13 offset:{L_OP+4096*w}")
        A(f"ds_read_b128 v[40:43], v15 offset:{L_ML+768}")
        A(f"ds_read_b128 v[44:47], v15 offset:{L_ML+768+16}")
        A("s_waitcnt lgkmcnt(10)")
        A("v_max3_f32 v48, v32, v33, v34")
        A("v_max3_f32 v49, v35, v36, v37")
        A("v_max3_f32 v48, v48, v38, v39")
        A("v_max_f32 v48, v48, v49")
        for w in range(8): A(f"v_sub_f32 {v(32+w)}, {v(32+w)}, v48")
        for w in range(8): A(f"v_exp_f32 {v(32+w)}, {v(32+w)}")
        A("s_waitcnt lgkmcnt(0)")
        for k in range(4): A(f"v_mul_f32 {v(52+k)}, v32, {v(96+k)}")
        for w in range(1, 8):
            for k in range(4): A(f"v_fmac_f32 {v(52+k)}, {v(32+w)}, {v(96+4*w+k)}")
        for k in range(4): A(f"v_perm_b32 {v(52+k)}, {v(52+k)}, v8, {sTI[k]}")
        A(f"buffer_store_dwordx4 v[52:55], v11, {srd(SWS)}, {sH1W} offen {HS}")
        A("v_mul_f32 v49, v32, v40")
        for w in range(1, 8): A(f"v_fmac_f32 v49, {v(32+w)}, {v(40+w)}")
        A("v_mov_b32 v50, v8")
        A("v_mov_b32 v51, v8")
        A("v_lshrrev_b32 v10, 1, v15")
        setexec(1, 1)
        A(f"buffer_store_dwordx4 v[48:51], v10, {srd(SWS)}, {sMLW} offen {HS}")
        setexec(*FULL)
        A("s_branch L_dutydone")
        A("L_notB:")
        A(f"s_cmp_lg_u32 {sW}, 1")
        A("s_cbranch_scc1 L_dutydone")
        wait_cnt(2)
        A("v_lshlrev_b32 v10, 5, v0")
        setexec(0xff, 0)
        A(f"ds_read_b128 v[32:35], v10 offset:{L_ML}")
        A(f"ds_read_b128 v[36:39], v10 offset:{L_ML+16}")
        A(f"ds_read_b128 v[40:43], v10 offset:{L_ML+256}")
        A(f"ds_read_b128 v[44:47], v10 offset:{L_ML+256+16}")
        A("s_waitcnt lgkmcnt(2)")
        A("v_max3_f32 v4, v32, v33, v34")
        A("v_max3_f32 v5, v35, v36, v37")
        A("v_max3_f32 v4, v4, v38, v39")
        A("v_max_f32 v4, v4, v5")
        for w in range(8): A(f"v_sub_f32 {v(32+w)}, {v(32+w)}, v4")
        for w in range(8): A(f"v_exp_f32 {v(32+w)}, {v(32+w)}")
        A("v_mov_b32 v6, v8")
        A("v_mov_b32 v7, v8")
        A(f"ds_write_b128 v10, v[32:35] offset:{L_F}")
        A(f"ds_write_b128 v10, v[36:39] offset:{L_F+16}")
        A("s_waitcnt lgkmcnt(2)")
        A("v_mul_f32 v5, v32, v40")
        for w in range(1, 8): A(f"v_fmac_f32 v5, {v(32+w)}, {v(40+w)}")
        setexec(*FULL)
        A("L_dutydone:")
    def pv(t):
        need(f"V{8*t+7}")
        transpose_mfma(128+32*t, 32, v(64+4*t, 4), t == 0, 80, True)
    def addr3():
        A(f"s_lshl_b32 {sH1R}, {sG}, 5")
        A(f"s_add_u32 {sH1R}, {sH1R}, {sSP}")
        A(f"s_lshl_b32 {sH1R}, {sH1R}, 13")
        A(f"s_lshr_b32 {sT1}, {sW}, 2")
        A(f"s_lshl_b32 {sT1}, {sT1}, 12")
        A(f"s_add_u32 {sH1R}, {sH1R}, {sT1}")
        A(f"s_and_b32 {sO2}, {sW}, 3")
        A(f"s_lshl_b32 {sO2}, {sO2}, 5")
        A(f"s_add_u32 {sH1R}, {sH1R}, {sO2}")
        A(f"s_add_u32 {sH1R}, {sH1R}, {WS_H1}")
        A(f"s_lshl_b32 {sMLR}, {sG}, 13")
        A(f"s_lshr_b32 {sO2}, {sSP}, 2")
        A(f"s_lshl_b32 {sO2}, {sO2}, 4")
        A(f"s_add_u32 {sMLR}, {sMLR}, {sO2}")
        A(f"s_add_u32 {sMLR}, {sMLR}, {WS_ML}")
        A(f"s_lshl_b32 {sT1}, {sKVH}, 5")
        A(f"s_add_u32 {sT1}, {sT1}, {sSP}")
        A(f"s_lshl_b32 {sH2W}, {sB}, 20")
        A(f"s_lshl_b32 {sT2}, {sW}, 16")
        A(f"s_add_u32 {sH2W}, {sH2W}, {sT2}")
        A(f"s_lshl_b32 {sT2}, {sT1}, 6")
        A(f"s_add_u32 {sH2W}, {sH2W}, {sT2}")
        A(f"s_add_u32 {sH2W}, {sH2W}, {WS_H2}")
        A(f"s_lshl_b32 {sF2W}, {sW}, 15")
        A(f"s_lshl_b32 {sT2}, {sKVH}, 7")
        A(f"s_add_u32 {sF2W}, {sF2W}, {sT2}")
        A(f"s_add_u32 {sF2W}, {sF2W}, {WS_F2}")
        A(f"s_lshl_b32 {sF2R}, s2, 9")
        A(f"s_lshr_b32 {sT2}, {sW}, 1")
        A(f"s_lshl_b32 {sT2}, {sT2}, 7")
        A(f"s_add_u32 {sF2R}, {sF2R}, {sT2}")
        A(f"s_add_u32 {sF2R}, {sF2R}, {WS_F2}")
        A("s_bfe_u32 s7, s2, 0x10001")
        A("s_lshr_b32 s6, s2, 2")
        A(f"s_xor_b32 s8, {sB}, {1 if o.get('swap') else 0}")
        A(f"s_lshl_b32 {sT1}, s8, 1")
        A(f"s_add_u32 {sT1}, {sT1}, s7")
        A(f"s_lshl_b32 {sT1}, {sT1}, 6")
        A(f"s_add_u32 {sT1}, {sT1}, s6")
        A(f"s_lshl_b32 {sH2R}, {sT1}, 13")
        A(f"s_lshl_b32 {sT1}, {sW}, 10")
        A(f"s_add_u32 {sH2R}, {sH2R}, {sT1}")
        A(f"s_add_u32 {sH2R}, {sH2R}, {WS_H2}")
        A("s_mov_b32 s10, 0")
        A("s_mov_b32 s11, -1")
        if o["f2pos"] == "brep":
            A(f"s_xor_b32 s9, {sB}, 1")
            A(f"s_or_b32 s9, s9, {sSP}")
            A(f"s_lshl_b32 s5, {sKVH}, 13")
            A(f"s_add_u32 s5, s5, {WS_ML}")
        else:
            A(f"s_or_b32 s9, {sB}, {sSP}")
        A(f"s_lshr_b32 {sT1}, {sW}, 2")
        A(f"s_or_b32 s9, s9, {sT1}")
    vMLG, vH1G, vOAW, vOAR, vH2S, vFPW, vZ, vFL, vWR = 64, 65, 66, 67, 68, 69, 70, 71, 72
    def addr4():
        A("v_lshrrev_b32 v9, 1, v0")
        A("v_and_b32 v10, 1, v0")
        A("v_lshlrev_b32 v10, 4, v10")
        A(f"v_lshlrev_b32 {v(vMLG)}, 7, v0")
        A(f"v_lshl_or_b32 {v(vH1G)}, v9, 7, v10")
        A(f"s_lshr_b32 {sT1}, {sW}, 2")
        A(f"s_lshl_b32 {sT2}, {sT1}, 8")
        A(f"v_lshl_add_u32 {v(vWR)}, v9, 3, {sT2}")
        A(f"s_lshl_b32 {sT1}, {sT1}, 6")
        A(f"s_and_b32 {sT2}, {sW}, 1")
        A(f"s_lshl_b32 {sT2}, {sT2}, 5")
        A(f"s_add_u32 {sT1}, {sT1}, {sT2}")
        A(f"s_and_b32 {sT2}, {sW}, 2")
        A(f"s_add_u32 {sT1}, {sT1}, {sT2}")
        A(f"v_lshl_or_b32 {v(vOAW)}, v12, 2, v10")
        A(f"v_add_u32 {v(vOAW)}, {sT1}, {v(vOAW)}")
        A(f"v_bfe_u32 {v(vOAR)}, v0, 2, 1")
        A(f"v_lshlrev_b32 {v(vOAR)}, 6, {v(vOAR)}")
        A(f"v_lshl_or_b32 {v(vOAR)}, v12, 4, {v(vOAR)}")
        A("v_bfe_u32 v9, v0, 4, 1")
        A("v_lshlrev_b32 v9, 19, v9")
        A("v_bfe_u32 v10, v0, 1, 3")
        A("v_lshl_or_b32 v9, v10, 13, v9")
        A("v_and_b32 v10, 1, v0")
        A("v_lshl_or_b32 v9, v10, 5, v9")
        A("v_lshrrev_b32 v10, 5, v0")
        A(f"v_lshl_or_b32 {v(vH2S)}, v10, 4, v9")
        A("v_and_b32 v9, 3, v0")
        A("v_lshlrev_b32 v9, 7, v9")
        A("v_lshl_or_b32 v9, v12, 5, v9")
        A(f"s_lshl_b32 {sT1}, {sW}, 2")
        A(f"v_add_u32 {v(vFPW)}, {sT1}, v9")
        A(f"v_mov_b32 {v(vZ)}, 0")
        A(f"v_lshlrev_b32 {v(vFL)}, 9, v0")
    vcode = {2: [lambda: qk(3)], 3: [sm_max], 4: [lambda: sm_exp(0)], 5: [lambda: sm_exp(1)], 6: [lambda: sm_exp(2)],
             7: [lambda: sm_exp(3)], 8: [sm_sum], 9: [addr2], 11: [duties], 13: [lambda: pv(0)], 15: [addr3], 18: [lambda: pv(1)],
             }
    p2 = o.get("pv2", min(30, 23 + (o["d2"] if o["n2"] >= 16 else o["d"]) - o["wo_before"]))
    p2 = max(p2, 24)
    vcode[p2] = [lambda: pv(2)]
    vcode.setdefault(p2 + 1, []).append(addr4)
    nb = o["wo_before"]
    bv, bd = o.get("bv", 0), o.get("bd", 0)
    vboost = {i: bv for i in range(2, 19)}
    vboost[11] = bd; vboost[12] = max(bv, bd - 1)
    seq = [(lambda pace, i=i: ldV(i, pace)) for i in range(24)] + [(lambda pace, k=k: ldWO(k, pace)) for k in range(nb)] + [(lambda pace, i=i: ldV(i, pace)) for i in range(24, 32)]
    vcode = {(i if i < 24 else i + nb): f for i, f in vcode.items()}
    run(seq, vcode, vboost)
    def ml_pub():
        A(f"s_cmp_lg_u32 {sW}, 1")
        A("s_cbranch_scc1 L_noml")
        setexec(0xff, 0)
        A(f"buffer_store_dwordx4 v[4:7], v2, {srd(SWS)}, {sMLW} offen {HS}")
        setexec(*FULL)
        A("L_noml:")
    for k in range(nb, 8):
        i = vm["n"]
        ldWO(k, pace=(i - o["d2"] <= vm["tag"]["V31"]))
    assert vm["n"] == NTOT
    need("V31")
    stamp("lastV")
    if o["mlpos"] == "lastV": ml_pub()
    pv(3)
    if o["mlpos"] == "pv": ml_pub()
    A("s_nop 5")
    write_O(0, 32)
    if o["mlpos"] == "wr": ml_pub()
    A("s_waitcnt lgkmcnt(0)")
    A("s_barrier")
    stamp("bar_O")
    if o["mlpos"] == "bar": ml_pub()
    A(f"s_cmp_ge_u32 {sW}, 4")
    A("s_cbranch_scc1 L_nocomb")
    A(f"ds_read_b128 v[128:131], v15 offset:{L_F}")
    for w in range(4): A(f"ds_read_b128 {v(160+4*w,4)}, v14 offset:{L_OP+4096*w}")
    A(f"ds_read_b128 v[132:135], v15 offset:{L_F+16}")
    for w in range(4, 8): A(f"ds_read_b128 {v(160+4*w,4)}, v14 offset:{L_OP+4096*w}")
    A("s_waitcnt lgkmcnt(8)")
    for k in range(4): A(f"v_mul_f32 {v(148+k)}, v128, {v(160+k)}")
    for w in range(1, 8):
        A(f"s_waitcnt lgkmcnt({8-w if w < 4 else 7-w})")
        for k in range(4): A(f"v_fmac_f32 {v(148+k)}, {v(128+w)}, {v(160+4*w+k)}")
    for k in range(4): A(f"v_perm_b32 {v(148+k)}, {v(148+k)}, v8, {sTI[k]}")
    A(f"buffer_store_dwordx4 v[148:151], v11, {srd(SWS)}, {sH1W} offen {HS}")
    stamp("pub1")
    A("s_waitcnt vmcnt(1)")
    A("s_branch L_wot")
    A("L_nocomb:")
    stamp("pub1")
    A("s_waitcnt vmcnt(0)")
    A("L_wot:")
    stamp("wo_land")
    for e in range(8):
        for k in range(4):
            A(f"v_perm_b32 {v(192+4*e+k)}, {v(96+4*(2*k+1)+(e>>1))}, {v(96+4*(2*k)+(e>>1))}, {sHI if e & 1 else sLO}")
    A(f"s_mov_b32 {sCNT}, {o['spin']}")
    A(f"s_cmp_lg_u32 {sW}, 4")
    A("s_cbranch_scc1 L_mldone")
    if o.get("mlsleep0"): A(f"s_sleep {o['mlsleep0']}")
    A("L_mlpoll:")
    A(f"buffer_load_dwordx4 v[16:19], {v(vMLG)}, {srd(SWS)}, {sMLR} offen {HL}")
    A("s_waitcnt vmcnt(0)")
    A(f"v_cmp_ne_u32 vcc, {sT}, v18")
    A(f"v_cmp_ne_u32 s[58:59], {sT}, v19")
    A("s_or_b64 vcc, vcc, s[58:59]")
    A("s_and_b64 exec, exec, vcc")
    A("s_cbranch_scc0 L_mlall")
    A(f"s_sub_u32 {sCNT}, {sCNT}, 1")
    A("s_cbranch_scc1 L_mlall")
    if o.get("mlsleep", 2): A(f"s_sleep {o.get('mlsleep', 2)}")
    A("s_branch L_mlpoll")
    A("L_mlall:")
    setexec(*FULL)
    A("v_lshlrev_b32 v9, 3, v0")
    A(f"ds_write_b64 v9, v[16:17] offset:{L_W}")
    A("s_waitcnt lgkmcnt(0)")
    A("L_mldone:")
    A("s_barrier")
    stamp("ml_got")
    if o["odelay"]: A(f"s_sleep {o['odelay']}")
    A(f"buffer_load_dwordx4 v[20:23], {v(vH1G)}, {srd(SWS)}, {sH1R} offen {HL}")
    A(f"ds_read_b64 v[16:17], {v(vWR)} offset:{L_W}")
    def flag2():
        A("s_cmp_lg_u32 s9, 0")
        A("s_cbranch_scc1 L_nof2")
        A(f"buffer_store_dword v8, {v(vFL)}, {srd(SWS)}, {sF2W} offen {HS}")
        A("L_nof2:")
    def allreduce32(op, x, t):
        A("s_nop 1")
        A(f"{op}_dpp {v(x)}, {v(x)}, {v(x)} quad_perm:[2,3,0,1] {DPP}")
        A("s_nop 1")
        A(f"{op}_dpp {v(x)}, {v(x)}, {v(x)} row_ror:4 {DPP}")
        A("s_nop 1")
        A(f"{op}_dpp {v(x)}, {v(x)}, {v(x)} row_ror:8 {DPP}")
        butterfly(op, x, t)
    if o["f2pos"] == "ml": flag2()
    A("s_waitcnt lgkmcnt(0)")
    A("v_mov_b32 v24, v16")
    allreduce32("v_max_f32", 24, 25)
    A("v_sub_f32 v24, v16, v24")
    A("v_exp_f32 v24, v24")
    A("s_nop 0")
    A("v_mul_f32 v26, v24, v17")
    allreduce32("v_add_f32", 26, 25)
    A("v_rcp_f32 v26, v26")
    A("s_nop 0")
    A("v_mul_f32 v24, v24, v26")
    if stamps: A(f"s_mov_b32 s95, {sCNT}")
    A(f"s_mov_b32 {sCNT}, {o['spin']}")
    A("s_waitcnt vmcnt(0)")
    A("L_opoll:")
    tagcheck(20, 25, 26, "vcc")
    A("s_cmp_eq_u64 vcc, 0")
    A("s_cbranch_scc1 L_odone")
    A(f"s_sub_u32 {sCNT}, {sCNT}, 1")
    A("s_cbranch_scc1 L_odone")
    if o["sleep"]: A(f"s_sleep {o['sleep']}")
    A(f"buffer_load_dwordx4 v[20:23], {v(vH1G)}, {srd(SWS)}, {sH1R} offen {HL}")
    A("s_waitcnt vmcnt(0)")
    A("s_branch L_opoll")
    A("L_odone:")
    stamp("hop1")
    if stamps: A(f"s_mov_b32 s96, {sCNT}")
    if o["f2pos"] == "hop1": flag2()
    for k in range(4): A(f"v_mul_f32 {v(20+k)}, v24, {v(20+k)}")
    def fold4(d):
        A("s_nop 0")
        A(f"v_permlane16_swap_b32 {v(d)}, {v(d+1)}")
        A(f"v_permlane16_swap_b32 {v(d+2)}, {v(d+3)}")
        A(f"v_add_f32 {v(d)}, {v(d)}, {v(d+1)}")
        A(f"v_add_f32 {v(d+2)}, {v(d+2)}, {v(d+3)}")
        A("s_nop 1")
        A(f"v_permlane32_swap_b32 {v(d)}, {v(d+2)}")
        A(f"v_add_f32 {v(d)}, {v(d)}, {v(d+2)}")
        A("s_nop 1")
        A(f"v_add_f32_dpp {v(d)}, {v(d)}, {v(d)} row_ror:8 {DPP}")
        A("s_nop 1")
        A(f"v_add_f32_dpp {v(d)}, {v(d)}, {v(d)} row_ror:4 {DPP}")
    A("s_nop 0")
    fold4(20)
    A("s_nop 1")
    A(f"v_add_f32_dpp v20, v20, v20 quad_perm:[2,3,0,1] {DPP}")
    A("v_cvt_pk_bf16_f32 v20, v20, v20")
    setexec(0x00030003, 0x00030003)
    A(f"ds_write_b16 {v(vOAW)}, v20 offset:{L_OA}")
    setexec(*FULL)
    A("s_waitcnt lgkmcnt(0)")
    A("s_barrier")
    A(f"ds_read_b128 v[28:31], {v(vOAR)} offset:{L_OA}")
    if o["f2pos"] == "oabar": flag2()
    A("s_waitcnt lgkmcnt(0)")
    for e in range(8): A(f"{M32} {v(32+4*e,4)}, v[28:31], {v(192+4*e,4)}, 0")
    A("s_nop 4")
    for k in range(4):
        if k == 3: A("s_nop 0")
        A(f"v_cndmask_b32 {v(16+k)}, {v(32+4*k)}, {v(48+4*k)}, s[10:11]")
    for k in range(4): A(f"v_perm_b32 {v(16+k)}, {v(16+k)}, v8, {sTI[k]}")
    A(f"buffer_store_dwordx4 v[16:19], {v(vH2S)}, {srd(SWS)}, {sH2W} offen {HS}")
    if o["f2pos"] == "pub2": flag2()
    stamp("pub2")
    if o["f2pos"] == "brep":
        A("s_cmp_lg_u32 s9, 0")
        A("s_cbranch_scc1 L_nof2")
        A(f"s_mov_b32 {sCNT}, {o['spin']}")
        A("L_reppoll:")
        A(f"buffer_load_dwordx4 v[24:27], {v(vMLG)}, {srd(SWS)}, s5 offen {HL}")
        A("s_waitcnt vmcnt(0)")
        A(f"v_cmp_ne_u32 vcc, {sT}, v26")
        A("s_and_b64 exec, exec, vcc")
        A("s_cbranch_scc0 L_repall")
        A(f"s_sub_u32 {sCNT}, {sCNT}, 1")
        A("s_cbranch_scc1 L_repall")
        A(f"s_sleep {o.get('mlsleep', 2)}")
        A("s_branch L_reppoll")
        A("L_repall:")
        setexec(*FULL)
        if o.get("f2delay"): A(f"s_sleep {o['f2delay']}")
        A(f"buffer_store_dword v8, {v(vFL)}, {srd(SWS)}, {sF2W} offen {HS}")
        A("L_nof2:")
    A(f"s_mov_b32 {sCNT}, {o['spin']}")
    if o["f2pos"] != "none":
        A("L_f2poll:")
        if o.get("sflag"):
            A(f"s_load_dword {sT1}, s[{SWS}:{SWS+1}], {sF2R} glc")
            A("s_waitcnt lgkmcnt(0)")
            A(f"s_cmp_eq_u32 {sT1}, {sT}")
        else:
            A(f"buffer_load_dword v24, {v(vZ)}, {srd(SWS)}, {sF2R} offen {HL}")
            A("s_waitcnt vmcnt(0)")
            A(f"v_cmp_ne_u32 vcc, {sT}, v24")
            A("s_cmp_eq_u64 vcc, 0")
        spin_tail("L_f2poll", "L_f2done", o.get("f2sleep"))
        stamp("f2_got")
        if stamps: A(f"s_mov_b32 s94, {sCNT}")
        A(f"s_mov_b32 {sCNT}, {o['spin']}")
    if o["fdelay"]: A(f"s_sleep {o['fdelay']}")
    A("L_fpoll:")
    A(f"buffer_load_dwordx4 v[20:23], v2, {srd(SWS)}, {sH2R} offen {HL}")
    A("s_waitcnt vmcnt(0)")
    tagcheck(20, 25, 26, "vcc")
    A("s_cmp_eq_u64 vcc, 0")
    spin_tail("L_fpoll", "L_fdone")
    stamp("hop2")
    if stamps: A(f"s_mov_b32 s97, {sCNT}")
    fold4(20)
    setexec(0x000f000f, 0x000f000f)
    A(f"ds_write_b32 {v(vFPW)}, v20 offset:{L_FP}")
    setexec(*FULL)
    A("s_waitcnt lgkmcnt(0)")
    A("s_barrier")
    A(f"s_cmp_lg_u32 {sW}, 0")
    A("s_cbranch_scc1 L_fin")
    A("v_lshlrev_b32 v9, 5, v0")
    setexec(0xffff, 0)
    A(f"ds_read_b128 v[16:19], v9 offset:{L_FP}")
    A(f"ds_read_b128 v[20:23], v9 offset:{L_FP+16}")
    A(f"s_lshl_b32 {sO}, s7, 12")
    A(f"s_lshl_b32 {sT1}, s8, 11")
    A(f"s_add_u32 {sO}, {sO}, {sT1}")
    A(f"s_lshl_b32 {sT1}, s6, 5")
    A(f"s_add_u32 {sO}, {sO}, {sT1}")
    A("v_lshlrev_b32 v9, 1, v0")
    A("s_waitcnt lgkmcnt(0)")
    for k in range(4): A(f"v_add_f32 {v(16+k)}, {v(16+k)}, {v(20+k)}")
    A("v_add_f32 v16, v16, v17")
    A("v_add_f32 v18, v18, v19")
    A("v_add_f32 v16, v16, v18")
    A("v_cvt_pk_bf16_f32 v16, v16, v16")
    A(f"buffer_store_short v16, v9, {srd(SOUT)}, {sO} offen")
    A("s_cmp_lg_u32 s2, 0")
    A("s_cbranch_scc1 L_fin")
    setexec(1, 0)
    A(f"buffer_store_dword v8, {v(vZ)}, {srd(SWS)}, 0 offen")
    A("L_fin:")
    if stamps and o.get("hold"):
        A("s_waitcnt lgkmcnt(0)")
        A("L_hold:")
        A("s_memrealtime s[62:63]")
        A("s_waitcnt lgkmcnt(0)")
        A("s_sub_u32 s62, s62, s60")
        A(f"s_cmp_lt_u32 s62, {o['hold']}")
        A("s_cbranch_scc1 L_hold")
        A("s_endpgm")
    if stamps:
        setexec(*FULL)
        stamp("end")
        A("s_waitcnt lgkmcnt(0)")
        A("s_getreg_b32 s98, hwreg(HW_REG_XCC_ID)")
        A("s_getreg_b32 s99, hwreg(HW_REG_HW_ID)")
        vals = ["s60"] + [f"s{62+2*k}" for k in range(1, 16)] + ["s94", "s95", "s96", "s97", "s98", "s99", "s61", "s98"]
        for k, s in enumerate(vals): A(f"v_mov_b32 {v(128+k)}, {s}")
        A(f"s_lshl_b32 {sT1}, s2, 3")
        A(f"s_add_u32 {sT1}, {sT1}, {sW}")
        A(f"s_lshl_b32 {sT1}, {sT1}, 7")
        A(f"s_add_u32 {sT1}, {sT1}, {WS_ST}")
        A("v_mov_b32 v9, 0")
        setexec(1, 0)
        if o.get("dbgout"):
            A("s_load_dwordx2 s[4:5], s[0:1], 88")
            A("s_mov_b32 s6, 256")
            A("s_mov_b32 s7, 0x20000")
            A("v_not_b32 v128, v128")
            A("s_waitcnt lgkmcnt(0)")
            A(f"s_cmp_lg_u32 {sW}, 0")
            A("s_cbranch_scc1 L_end")
            for k in range(16): A(f"buffer_atomic_umax {v(128+k)}, v9, s[4:7], 0 offen offset:{4*k}")
        else:
            for k in range(6): A(f"buffer_store_dwordx4 {v(128+4*k,4)}, v9, {srd(SWS)}, {sT1} offen offset:{16*k}")
    A("L_end:")
    A("s_endpgm")
    A('.section .rodata,"a"')
    A(".p2align 6")
    A(f".amdhsa_kernel {NAME}")
    A(".amdhsa_next_free_vgpr 256")
    A(".amdhsa_next_free_sgpr 102")
    A(".amdhsa_accum_offset 256")
    A(".amdhsa_group_segment_fixed_size 0")
    A(".amdhsa_kernarg_size 104")
    A(".amdhsa_user_sgpr_count 2")
    A(".amdhsa_user_sgpr_kernarg_segment_ptr 1")
    A(".amdhsa_system_sgpr_workgroup_id_x 1")
    A(".amdhsa_float_denorm_mode_32 3")
    A(".end_amdhsa_kernel")
    msgs = check_hazards(A.lines)
    for m in msgs: print(m, file=sys.stderr)
    return A.text()

if __name__ == "__main__":
    import json
    name = sys.argv[1]; opt = json.loads(sys.argv[2]) if len(sys.argv) > 2 else {}
    open(f"k_{name}.s", "w").write(gen(False, opt))
    open(f"k_{name}_st.s", "w").write(gen(True, opt))
```

```python
import sys, struct, math
from asmlib import Asm, check_hazards

NAME = "concat_heads__gqa_block_cached__sliding_block_cached__decode_kernel"
REF = "concat_heads__gqa_block_cached__sliding_block_cached__decode.s.ref"

WS_Q   = 0x10000
WS_ML  = 0x30000
WS_F2  = 0x40000
WS_H1  = 0x100000
WS_H2  = 0x300000
WS_ST  = 0x500000
WS_USED = 0x600000
L_QP = 0
L_QS = L_QP + 4096
L_ML = L_QS + 4096
L_F  = L_ML + 1024
L_W  = L_F + 256
L_OA = L_W + 512
L_FP = L_OA + 256
L_CNT = L_FP + 512
L_OP = 12288
assert L_CNT + 256 <= L_OP
L_END = L_OP + 65536

DEF_STN = ["start", "wq_land", "q_pub", "q_got", "q_lds", "S_done", "lastV", "bar_O", "pub1", "wo_land", "ml_got", "hop1", "pub2", "f2_got", "hop2", "end"]

def f32bits(x):
    return struct.unpack("<I", struct.pack("<f", x))[0]

def gen(stamps=False, opt=None):
    o = dict(spin=400000, ld="nt", hs="sc1", hl="sc1", sleep=1, d=3, d0=3, d2=4, n2=11, gq=12, wo_before=1,
             mlpos="bar", odelay=0, f2pos="oabar", fdelay=0, skew="gp", fb=4, sflag=1, swap=1, halves=1, slow_until=60, xbboost=1, lay="cu")
    if opt: o.update(opt)
    LD, HS, HL = o["ld"], o["hs"], o["hl"]
    A = Asm()
    hdr = [l.rstrip("\n") for l in open(REF) if l.startswith(";") and "@launch" not in l and "Override" not in l and "grid=ceil" not in l]
    for l in hdr: A(l)
    A(f"; @launch grid=(256,1,1) block=(512,1,1) lds={L_END}")
    STN = o.get("stn", DEF_STN)
    if stamps: A("; stamps: " + " ".join(STN))
    A('.amdgcn_target "amdgcn-amd-amdhsa--gfx950"')
    A(".text")
    A(f".globl {NAME}")
    A(".p2align 8")
    A(f".type {NAME},@function")
    A(f"{NAME}:")

    SX, SWQ, SKA, SVA, SKB, SVB, SWO, SWS, SOUT = 4, 8, 12, 16, 20, 24, 28, 32, 36
    sW, sB, sKVH, sSP, sO, sKA0, sT, sCNT = "s40", "s41", "s42", "s43", "s44", "s45", "s46", "s47"
    sLO, sHI, sXA, sXB, sC = "s48", "s49", "s50", "s51", "s52"
    sTI = ["s53", "s54", "s55", "s56"]
    sO2, sT1, sT2 = "s57", "s58", "s59"
    sR, sKB0, sG = "s3", "s100", "s101"
    sXBf, sSTEP, sWRAP = "s97", "s96", "s95"
    srd = lambda b: f"s[{b}:{b+3}]"
    def stamp(name):
        if stamps and name in STN:
            k = STN.index(name)
            A(f"s_memrealtime s[{62+2*k}:{63+2*k}]") if k > 0 else A("s_memrealtime s[60:61]")
        if stamps and o.get("cut") == name: A("s_waitcnt vmcnt(0)"); A("s_branch L_fin")
    def v(b, n=1):
        return f"v{b}" if n == 1 else f"v[{b}:{b+n-1}]"
    def setexec(lo, hi):
        if lo == hi == 0xffffffff: A("s_mov_b64 exec, -1")
        else: A(f"s_mov_b32 exec_lo, {lo:#x}"); A(f"s_mov_b32 exec_hi, {hi:#x}")
    FULL = (0xffffffff, 0xffffffff)
    DPP = "row_mask:0xf bank_mask:0xf"
    M32 = "v_mfma_f32_16x16x32_bf16"

    NL = o.get("wo_late", 0)
    assert NL % 2 == 0
    NTOT = (0 if o.get("c2") else 1) + 8 + 8 + 32 + 2 + 32 + 8 - NL
    vm = dict(n=0, done=0, tag={})
    lab = [0]
    sTHR, sTHR2 = "s99", "s98"
    def vwait(k):
        if k >= vm["done"]:
            A(f"s_waitcnt vmcnt({vm['n'] - 1 - k})")
            vm["done"] = k + 1
    def dwin(i):
        return o["d0"] if i < 9 else (o["d2"] if i >= NTOT - o["n2"] else o["d"])
    FB = o.get("fb", 0)
    def pacewait(i):
        d = dwin(i)
        if FB and 9 <= i < NTOT - o["n2"]:
            if i % FB == 0 and i >= o.get("fb0", 12):
                A("v_mov_b32 v9, 0")
                A("v_mov_b32 v10, 1")
                setexec(1, 0)
                A(f"ds_add_rtn_u32 v10, v9, v10 offset:{L_CNT+16+4*(i//FB)}")
                A("s_waitcnt lgkmcnt(0)")
                A(f"v_cmp_le_u32 vcc, {sTHR if i < o.get('slow_until', 0) else sTHR2 if o.get('odd') else o.get('thr', 4)}, v10")
                setexec(*FULL)
            dhi = o.get("dhi", d + 1)
            vwait(min(i - dhi, vm["n"] - 1))
            k = min(i - d, vm["n"] - 1)
            if k >= vm["done"]:
                lab[0] += 1
                A(f"s_cbranch_vccnz L_sk{lab[0]}")
                A(f"s_waitcnt vmcnt({vm['n'] - 1 - k})")
                A(f"L_sk{lab[0]}:")
        elif i - d >= 0:
            vwait(min(i - d, vm["n"] - 1))
    def load(txt, tag=None, pace=True):
        i = vm["n"]
        if pace: pacewait(i)
        A(txt)
        if tag: vm["tag"][tag] = i
        vm["n"] += 1
    def need(tag): vwait(vm["tag"][tag])
    def run(seq, code, boost):
        base = vm["n"]; issued = 0
        for i in range(len(seq)):
            extra = vm["n"] - base - issued
            if i < issued:
                pacewait(base + extra + i)
            else:
                seq[i](True); issued = i + 1
            while issued < min(len(seq), i + 1 + boost.get(i, 0)):
                seq[issued](False); issued += 1
            for f in code.get(i, []): f()

    def spin_tail(label, done, sl=None):
        sl = o["sleep"] if sl is None else sl
        A(f"s_cbranch_scc1 {done}")
        A(f"s_sub_u32 {sCNT}, {sCNT}, 1")
        A(f"s_cbranch_scc1 {done}")
        if sl: A(f"s_sleep {sl}")
        A(f"s_branch {label}")
        A(f"{done}:")
    def arrive(k):
        A("v_mov_b32 v9, 0")
        A("v_mov_b32 v10, 1")
        setexec(1, 0)
        A(f"ds_add_u32 v9, v10 offset:{L_CNT+4*k}")
        setexec(*FULL)
    def wait_cnt(k):
        lab[0] += 1
        l = f"L_cnt{lab[0]}"
        A("v_mov_b32 v9, 0")
        A(f"s_mov_b32 {sCNT}, {o['spin']}")
        A(f"{l}:")
        A(f"ds_read_b32 v10, v9 offset:{L_CNT+4*k}")
        A("s_waitcnt lgkmcnt(0)")
        A(f"v_readfirstlane_b32 {sT1}, v10")
        A(f"s_cmp_eq_u32 {sT1}, 8")
        spin_tail(l, l + "d", 1)
    def tagcheck(d, t0, t1, dst):
        A(f"v_perm_b32 {v(t0)}, {v(d+1)}, {v(d)}, {sXA}")
        A(f"v_perm_b32 {v(t1)}, {v(d+3)}, {v(d+2)}, {sXB}")
        A(f"v_or_b32 {v(t0)}, {v(t0)}, {v(t1)}")
        A(f"v_cmp_ne_u32 {dst}, {sT}, {v(t0)}")
    def transpose_mfma(src, acc, other, first, tmp, a_is_tile, nrows=8):
        nt = nrows // 2
        op = M32 if nrows == 8 else "v_mfma_f32_16x16x16_bf16"
        def perms(e):
            t = tmp + 4 * (e % 4)
            for k in range(nt):
                A(f"v_perm_b32 {v(t+k)}, {v(src+4*(2*k+1)+(e>>1))}, {v(src+4*(2*k)+(e>>1))}, {sHI if e & 1 else sLO}")
        def mfma(e):
            t = v(tmp + 4 * (e % 4), nt)
            c = "0" if first else v(acc+4*e, 4)
            a, b = (t, other) if a_is_tile else (other, t)
            A(f"{op} {v(acc+4*e,4)}, {a}, {b}, {c}")
        perms(0)
        for e in range(8):
            if e < 7: perms(e+1)
            else: A("s_nop 1")
            mfma(e)
    def butterfly(op, x, t):
        for sw in ("v_permlane16_swap_b32", "v_permlane32_swap_b32"):
            A(f"v_mov_b32 {v(t)}, {v(x)}")
            A("s_nop 1")
            A(f"{sw} {v(x)}, {v(t)}")
            A(f"{op} {v(x)}, {v(x)}, {v(t)}")
    def write_O(br, acc):
        setexec(0x00ff00ff, 0x00ff00ff)
        for e in range(8):
            if e == 0:
                A(f"ds_write_b128 v28, {v(acc,4)} offset:{L_OP+32768*br}")
            else:
                A(f"v_xor_b32 {v(29+(e&1))}, {16*e}, v28")
                A(f"ds_write_b128 {v(29+(e&1))}, {v(acc+4*e,4)} offset:{L_OP+32768*br}")
        setexec(*FULL)

    stamp("start")
    A("s_cmp_ge_u32 s2, 256")
    A("s_cbranch_scc1 L_end")
    A("s_load_dwordx16 s[64:79], s[0:1], 0")
    A("s_load_dwordx8 s[80:87], s[0:1], 64")
    A("s_load_dwordx2 s[88:89], s[0:1], 96")
    A("v_lshrrev_b32 v1, 6, v0")
    A("v_and_b32 v0, 63, v0")
    A(f"v_readfirstlane_b32 {sW}, v1")
    A(f"s_and_b32 {sB}, s2, 1")
    A(f"s_bfe_u32 {sKVH}, s2, 0x20001")
    A(f"s_lshr_b32 {sSP}, s2, 3")
    A("v_lshrrev_b32 v9, 3, v0")
    A("v_and_b32 v10, 7, v0")
    A("v_lshlrev_b32 v10, 4, v10")
    c2 = o.get("c2")
    A(f"v_lshl_or_b32 v3, v9, {13 if c2 else 16}, v10")
    A("v_lshrrev_b32 v12, 4, v0")
    A("v_bfe_u32 v9, v0, 2, 1")
    A("v_and_b32 v10, 1, v0")
    A("v_lshl_or_b32 v10, v12, 1, v10")
    A(f"v_lshlrev_b32 v10, {1 if c2 else 4}, v10")
    A("v_lshl_or_b32 v11, v9, 11, v10")
    A(f"s_and_b32 {sT1}, {sSP}, 1")
    A(f"s_lshl_b32 {sT1}, {sT1}, 3")
    A(f"s_add_u32 {sT1}, {sT1}, {sW}")
    A(f"s_lshl_b32 {sO}, {sT1}, 19")
    A(f"s_lshl_b32 {sO2}, {sT1}, 7")
    A(f"s_lshl_b32 {sT1}, {sKVH}, 11")
    A(f"s_lshr_b32 {sT2}, {sSP}, 1")
    A(f"s_lshl_b32 {sT2}, {sT2}, 7")
    A(f"s_add_u32 {sO}, {sO}, {sT1}")
    A(f"s_add_u32 {sO}, {sO}, {sT2}")
    A(f"s_mov_b32 s{SX+2}, 4096")
    A(f"s_mov_b32 s{SX+3}, 0x20000")
    A(f"s_mov_b32 s{SWQ+2}, 0x800000")
    A(f"s_mov_b32 s{SWQ+3}, 0x20000")
    A("v_mov_b32 v16, 0")
    A("v_lshlrev_b32 v17, 2, v0")
    A("s_mov_b64 vcc, 0")
    A(f"s_cmp_eq_u32 {sB}, 0")
    A("s_waitcnt lgkmcnt(0)")
    A(f"s_cselect_b64 s[{SX}:{SX+1}], s[64:65], s[74:75]")
    A(f"s_cselect_b64 s[{SWQ}:{SWQ+1}], s[70:71], s[80:81]")
    A(f"s_cselect_b64 s[{SWO}:{SWO+1}], s[72:73], s[82:83]")
    il = o.get("il", False)
    def ldWQ(i, pace=True):
        load(f"buffer_load_dwordx4 {v(64+4*i,4)}, v3, {srd(SWQ)}, {sO} offen {LD}", tag=f"WQ{i}", pace=pace)
        A(f"s_add_u32 {sO}, {sO}, {65536 if c2 else 8192}")
    nfirst = 2 if il else min(8, o["d0"])
    if c2:
        for i in range(8): A(f"buffer_load_ushort {v(20+i)}, v11, {srd(SX)}, {sO2} offen offset:{16*i}")
    for i in range(nfirst): ldWQ(i)
    if o.get("wsoff"):
        A(f"s_add_u32 s88, s88, {o['wsoff']:#x}")
        A("s_addc_u32 s89, s89, 0")
    A(f"s_load_dword {sT}, s[88:89], 0")
    A(f"ds_write_b32 v17, v16 offset:{L_CNT}")
    if o.get("odd"):
        A(f"s_getreg_b32 {sT1}, hwreg(HW_REG_XCC_ID, 0, 1)")
        A(f"s_mul_i32 {sT1}, {sT1}, {o['odd']}")
        A(f"s_sub_u32 {sTHR2}, {o.get('thr', 4)}, {sT1}")
    if o.get("slow_until"):
        A(f"s_lshr_b32 {sT1}, s{SWQ}, 7")
        A(f"s_lshr_b32 {sT2}, {sSP}, 1")
        A(f"s_add_u32 {sT1}, {sT1}, {sT2}")
        A(f"s_and_b32 {sT1}, {sT1}, 7")
        A(f"s_cmp_eq_u32 {sT1}, 3")
        A(f"s_cselect_b32 {sTHR}, 0, {sTHR2 if o.get('odd') else o.get('thr', 4)}")
    A(f"s_cmp_ge_u32 {sSP}, 28")
    A(f"s_cselect_b32 {sXBf}, 1, 0")
    A(f"s_cselect_b32 {sSTEP}, 32, 224")
    A(f"s_cselect_b64 s[{SKA}:{SKA+1}], s[76:77], s[66:67]")
    A(f"s_cselect_b64 s[{SVA}:{SVA+1}], s[78:79], s[68:69]")
    if o.get("xbboost"): A(f"s_cselect_b32 {sTHR}, {o['xbboost'] - 1}, {sTHR}")
    A(f"s_lshl_b32 {sSTEP}, {sSTEP}, 12")
    A(f"s_lshl_b32 {sWRAP}, {sSTEP}, 3")
    for b in (SKA, SVA):
        A(f"s_mov_b32 s{b+2}, 0x4000000")
        A(f"s_mov_b32 s{b+3}, 0x20000")
    for b, p, n in ((SKB, 66, 0x4000000), (SVB, 68, 0x4000000), (SWS, 88, WS_USED), (SOUT, 84, 8192)):
        A(f"s_mov_b64 s[{b}:{b+1}], s[{p}:{p+1}]")
        A(f"s_mov_b32 s{b+2}, {n:#x}")
        A(f"s_mov_b32 s{b+3}, 0x20000")
    A(f"s_mov_b32 s{SWO+2}, 0x800000")
    A(f"s_mov_b32 s{SWO+3}, 0x20000")
    A("v_lshlrev_b32 v2, 4, v0")
    A("v_bfe_u32 v9, v0, 1, 1")
    A("v_lshlrev_b32 v1, 4, v12")
    A("v_lshl_or_b32 v1, v9, 10, v1")
    A("v_bfe_u32 v9, v0, 2, 2")
    A("v_lshl_or_b32 v1, v9, 8, v1")
    A("v_and_b32 v9, 1, v0")
    A("v_lshl_or_b32 v1, v9, 6, v1")
    A(f"s_lshl_b32 {sG}, {sB}, 2")
    A(f"s_add_u32 {sG}, {sG}, {sKVH}")
    A(f"s_lshl_b32 {sT1}, {sG}, 23")
    A(f"s_lshl_b32 {sT2}, {sSP}, 3")
    A(f"s_add_u32 {sT2}, {sT2}, {sW}")
    A(f"s_lshl_b32 {sT2}, {sT2}, 12")
    A(f"s_add_u32 {sKA0}, {sT1}, {sT2}")
    A(f"s_add_u32 {sKB0}, {sKA0}, {28672*256}")
    if o.get("lay") == "blk":
        A(f"s_lshl_b32 {sT2}, {sT2}, 3")
        A(f"s_add_u32 {sKA0}, {sT1}, {sT2}")
        A(f"s_mov_b32 {sSTEP}, 4096")
        A(f"s_mov_b32 {sWRAP}, 32768")
        A(f"s_mul_i32 {sT1}, {sXBf}, {28672*256 - 224*32768}")
    elif o.get("lay") == "cu":
        A(f"s_lshl_b32 {sT2}, {sSP}, 18")
        A(f"s_add_u32 {sKA0}, {sT1}, {sT2}")
        A(f"s_lshl_b32 {sT2}, {sW}, 12")
        A(f"s_add_u32 {sKA0}, {sKA0}, {sT2}")
        A(f"s_mov_b32 {sSTEP}, 32768")
        A(f"s_mov_b32 {sWRAP}, 262144")
        A(f"s_mul_i32 {sT1}, {sXBf}, {28672*256 - 224*32768}")
    else:
        A(f"s_mul_i32 {sT1}, {sXBf}, {28672*256 - 224*4096}")
    A(f"s_add_u32 {sKA0}, {sKA0}, {sT1}")
    A(f"s_mov_b32 {sLO}, 0x05040100")
    A(f"s_mov_b32 {sHI}, 0x07060302")
    A(f"s_mov_b32 {sXA}, 0x0c0c0400")
    A(f"s_mov_b32 {sXB}, 0x04000c0c")
    A(f"s_mov_b32 {sC}, {f32bits(128**-0.5 * math.log2(math.e)):#x}")
    for k in range(4): A(f"s_mov_b32 {sTI[k]}, {0x07060500+k:#x}")
    A("s_waitcnt lgkmcnt(0)")
    A("s_barrier")
    KOFF = [0, 128, 2048, 2176]
    def ldB(i, pace=True):
        if i < 4: load(f"buffer_load_dwordx4 {v(96+4*i,4)}, v1, {srd(SKB)}, {sKB0} offen offset:{KOFF[i]} {LD}", tag=f"B{i}", pace=pace)
        else: load(f"buffer_load_dwordx4 {v(96+4*i,4)}, v2, {srd(SVB)}, {sKB0} offen offset:{1024*(i-4)} {LD}", tag=f"B{i}", pace=pace)
    nB = 0
    for i in range(nfirst, 8):
        if il and nB < 5: ldB(nB); nB += 1
        ldWQ(i)
    if not c2: load(f"buffer_load_dwordx4 v[4:7], v11, {srd(SX)}, {sO2} offen", tag="wq", pace=False)
    else: vm["tag"]["wq"] = vm["n"] - 1
    A(f"s_mul_i32 {sT}, {sT}, 0x9e3779b1")
    A(f"s_add_u32 {sT}, {sT}, 0x7f4a7c15")
    A(f"v_mov_b32 v8, {sT}")

    def blk_start():
        if o["skew"] == "w": A(f"s_mul_i32 {sR}, {sW}, {sSTEP}")
        elif o["skew"] == "p":
            A(f"s_and_b32 {sR}, {sSP}, 7"); A(f"s_mul_i32 {sR}, {sR}, {sSTEP}")
        elif o["skew"] == "gp":
            A(f"s_add_u32 {sR}, {sSP}, {sG}"); A(f"s_and_b32 {sR}, {sR}, 7"); A(f"s_mul_i32 {sR}, {sR}, {sSTEP}")
        elif o["skew"] == "gw":
            A(f"s_add_u32 {sR}, {sW}, {sG}"); A(f"s_and_b32 {sR}, {sR}, 7"); A(f"s_mul_i32 {sR}, {sR}, {sSTEP}")
        elif o["skew"]: A(f"s_mul_i32 {sR}, {sG}, {sSTEP}")
        else: A(f"s_mov_b32 {sR}, 0")
        A(f"s_add_u32 {sO}, {sKA0}, {sR}")
    def blk_step():
        A(f"s_add_u32 {sR}, {sR}, {sSTEP}")
        A(f"s_cmp_eq_u32 {sR}, {sWRAP}")
        A(f"s_cselect_b32 {sR}, 0, {sR}")
        A(f"s_add_u32 {sO}, {sKA0}, {sR}")
    def ldK(i, pace=True):
        if i == 0: blk_start()
        elif i % 4 == 0: blk_step()
        load(f"buffer_load_dwordx4 {v(128+4*i,4)}, v1, {srd(SKA)}, {sO} offen offset:{KOFF[i%4]} {LD}", tag=f"K{i}", pace=pace)
    def ldV(i, pace=True):
        if i == 0: blk_start()
        elif i % 4 == 0: blk_step()
        load(f"buffer_load_dwordx4 {v(128+4*i,4)}, v2, {srd(SVA)}, {sO} offen offset:{1024*(i%4)} {LD}", tag=f"V{i}", pace=pace)
    sWO = "s100"
    def ldWO(i, pace=True):
        load(f"buffer_load_dwordx4 {v(96+4*i,4)}, v3, {srd(SWO)}, {sWO} offen {LD}", tag=f"WO{i}", pace=pace)
        if i < 7: A(f"s_add_u32 {sWO}, {sWO}, 16384")

    for i in range(3):
        vwait(vm["tag"]["wq"] - 3 + i)
        ldB(nB, pace=False); nB += 1
    need("wq")
    stamp("wq_land")
    if c2:
        for k in range(4): A(f"v_perm_b32 {v(4+k)}, {v(21+2*k)}, {v(20+2*k)}, {sLO}")
    transpose_mfma(64, 32, "v[4:7]", True, 32 if False else 224, False)
    kpre = 0
    def more():
        nonlocal nB, kpre
        if nB < 8: ldB(nB); nB += 1
        else: ldK(kpre); kpre += 1
    more()
    A("v_and_b32 v9, 15, v0")
    A("v_lshlrev_b32 v9, 5, v9")
    A("v_lshl_or_b32 v9, v12, 8, v9")
    A(f"s_lshl_b32 {sT1}, {sW}, 9")
    A(f"v_add_u32 v13, {sT1}, v9")
    for e in range(8):
        if e == 7: A("s_nop 0")
        A(f"v_add_f32_dpp {v(64+e)}, {v(33+4*e)}, {v(32+4*e)} row_ror:8 {DPP}")
    setexec(0x00ff00ff, 0)
    A(f"ds_write_b128 v13, v[64:67] offset:{L_QP}")
    A(f"ds_write_b128 v13, v[68:71] offset:{L_QP+16}")
    setexec(*FULL)
    arrive(0)
    more()
    A(f"s_cmp_lg_u32 {sW}, 0")
    A("s_cbranch_scc1 L_noqpub")
    A("v_and_b32 v13, 15, v0")
    A("v_lshlrev_b32 v13, 4, v13")
    A("v_lshl_or_b32 v13, v12, 13, v13")
    A(f"s_lshl_b32 {sO2}, {sG}, 14")
    A(f"s_and_b32 {sT2}, {sSP}, 1")
    A(f"s_lshl_b32 {sT2}, {sT2}, 12")
    A(f"s_add_u32 {sO2}, {sO2}, {sT2}")
    A(f"s_lshr_b32 {sT2}, {sSP}, 1")
    A(f"s_lshl_b32 {sT2}, {sT2}, 8")
    A(f"s_add_u32 {sO2}, {sO2}, {sT2}")
    A(f"s_add_u32 {sO2}, {sO2}, {WS_Q}")
    wait_cnt(0)
    for w in range(8): A(f"ds_read_b128 {v(32+4*w,4)}, v2 offset:{L_QP+512*w}")
    for w in range(1, 8):
        A(f"s_waitcnt lgkmcnt({7-w})")
        for k in range(4): A(f"v_add_f32 {v(32+k)}, {v(32+k)}, {v(32+4*w+k)}")
    for k in range(4): A(f"v_perm_b32 {v(32+k)}, {v(32+k)}, v8, {sTI[k]}")
    setexec(0xffffffff, 0)
    A(f"buffer_store_dwordx4 v[32:35], v13, {srd(SWS)}, {sO2} offen {HS}")
    setexec(*FULL)
    stamp("q_pub")
    A("L_noqpub:")
    while nB < 8: more()

    gq = o["gq"]
    def q_issue():
        A(f"s_lshl_b32 {sT1}, {sKVH}, 1")
        A(f"s_add_u32 {sT1}, {sT1}, {sB}")
        A(f"s_lshl_b32 {sT1}, {sT1}, 13")
        A(f"s_lshr_b32 {sT2}, {sW}, 2")
        A(f"s_lshl_b32 {sT2}, {sT2}, 16")
        A(f"s_add_u32 {sT1}, {sT1}, {sT2}")
        A(f"s_and_b32 {sT2}, {sW}, 3")
        A(f"s_lshl_b32 {sT2}, {sT2}, 10")
        A(f"s_add_u32 {sT1}, {sT1}, {sT2}")
        A(f"s_add_u32 s4, {sT1}, {WS_Q}")
        A(f"s_add_u32 s5, s4, 4096")
        load(f"buffer_load_dwordx4 v[16:19], v2, {srd(SWS)}, s4 offen {HL}", pace=False)
        load(f"buffer_load_dwordx4 v[20:23], v2, {srd(SWS)}, s5 offen {HL}", tag="Q", pace=False)
    def q_check():
        need("Q")
        A(f"s_mov_b32 {sCNT}, {o['spin']}")
        A("L_qpoll:")
        tagcheck(16, 9, 10, "s[6:7]")
        tagcheck(20, 9, 10, "s[58:59]")
        A("s_or_b64 s[6:7], s[6:7], s[58:59]")
        A("s_cmp_eq_u64 s[6:7], 0")
        A("s_cbranch_scc1 L_qdone")
        A(f"s_sub_u32 {sCNT}, {sCNT}, 1")
        A("s_cbranch_scc1 L_qdone")
        A("s_sleep 8")
        A(f"buffer_load_dwordx4 v[16:19], v2, {srd(SWS)}, s4 offen {HL}")
        A(f"buffer_load_dwordx4 v[20:23], v2, {srd(SWS)}, s5 offen {HL}")
        A("s_waitcnt vmcnt(0)")
        A("s_branch L_qpoll")
        A("L_qdone:")
        if stamps: A(f"s_mov_b32 s61, {sCNT}")
        stamp("q_got")
        for k in range(4): A(f"v_add_f32 {v(16+k)}, {v(16+k)}, {v(20+k)}")
        A(f"s_lshl_b32 {sT1}, {sW}, 9")
        A("v_lshlrev_b32 v13, 3, v0")
        A(f"v_add_u32 v13, {sT1}, v13")
        A("v_cvt_pk_bf16_f32 v16, v16, v17")
        A("v_cvt_pk_bf16_f32 v17, v18, v19")
        A(f"ds_write_b64 v13, v[16:17] offset:{L_QS}")
        arrive(1)
    def q_read():
        A("v_and_b32 v13, 7, v0")
        A("v_lshlrev_b32 v28, 4, v13")
        A("v_lshl_or_b32 v28, v13, 9, v28")
        A("v_lshl_or_b32 v28, v12, 7, v28")
        A(f"s_lshl_b32 {sT1}, {sW}, 12")
        A(f"v_add_u32 v28, {sT1}, v28")
        A("v_lshlrev_b32 v13, 8, v13")
        A("v_lshl_or_b32 v13, v12, 4, v13")
        A("v_bfe_u32 v14, v0, 3, 1")
        A("v_lshl_or_b32 v13, v14, 6, v13")
        A(f"s_lshl_b32 {sT1}, {sXBf}, 11")
        A(f"v_add_u32 v14, {sT1}, v13")
        wait_cnt(1)
        stamp("q_lds")
        A(f"ds_read_b128 v[56:59], v13 offset:{L_QS}")
        A(f"ds_read_b128 v[60:63], v13 offset:{L_QS+128}")
        A(f"ds_read_b128 v[48:51], v14 offset:{L_QS}")
        A(f"ds_read_b128 v[52:55], v14 offset:{L_QS+128}")
    def qk_B():
        need("B7")
        A("s_waitcnt lgkmcnt(2)")
        for g in range(2): A(f"{M32} {v(32+4*g,4)}, {v(96+8*g,4)}, v[56:59], 0")
        for g in range(2): A(f"{M32} {v(32+4*g,4)}, {v(100+8*g,4)}, v[60:63], {v(32+4*g,4)}")
        A(f"s_lshl_b32 {sT1}, {sW}, 2")
        A("v_lshlrev_b32 v31, 5, v0")
        A(f"v_add_u32 v31, {sT1}, v31")
        A("s_nop 4")
        for g in range(2):
            for a in range(2):
                A(f"v_add_f32_dpp {v(16+2*g+a)}, {v(32+4*g+2*a+1)}, {v(32+4*g+2*a)} row_ror:8 {DPP}")
    def qk(t):
        kb = 128 + 32*t
        need(f"K{8*t+7}")
        if t == 0: A("s_waitcnt lgkmcnt(0)")
        for g in range(4): A(f"{M32} {v(32+4*g,4)}, {v(kb+8*g,4)}, v[48:51], 0")
        for g in range(4): A(f"{M32} {v(32+4*g,4)}, {v(kb+8*g+4,4)}, v[52:55], {v(32+4*g,4)}")
        A("s_nop 4")
        for g in range(4):
            for a in range(2):
                if g == 3 and a == 0: A("s_nop 0")
                A(f"v_add_f32_dpp {v(64+8*t+2*g+a)}, {v(32+4*g+2*a+1)}, {v(32+4*g+2*a)} row_ror:8 {DPP}")
    kcode = {gq: [q_issue], gq+4: [q_check], gq+8: [q_read], gq+9: [qk_B], gq+10: [lambda: qk(0)], gq+11: [lambda: qk(1)]}
    kcode.setdefault(max(gq+12, 28), []).append(lambda: qk(2))
    assert max(kcode) <= 31
    bk = o.get("bk", 0)
    kboost = {i: bk for i in range(gq+6, gq+14)}
    run([(lambda pace, i=i: ldK(i, pace)) for i in range(kpre, 32)], {i - kpre: f for i, f in kcode.items()}, {i - kpre: f for i, f in kboost.items()})

    def sm_max():
        A("v_max3_f32 v22, v64, v65, v66")
        A("v_max3_f32 v26, v67, v68, v69")
        left = list(range(70, 96)); k = 0
        while left:
            dst = 22 if k % 2 == 0 else 26
            a, b = left.pop(0), left.pop(0)
            A(f"v_max3_f32 {v(dst)}, {v(dst)}, {v(a)}, {v(b)}")
            k += 1
        A("v_max3_f32 v23, v16, v17, v18")
        A("v_max_f32 v22, v22, v26")
        A("v_max_f32 v23, v23, v19")
        A(f"s_cmp_eq_u32 {sXBf}, 1")
        A("s_cbranch_scc1 L_twomax")
        A("v_max_f32 v22, v22, v23")
        butterfly("v_max_f32", 22, 26)
        A("v_mov_b32 v23, v22")
        A("s_branch L_onemax")
        A("L_twomax:")
        butterfly("v_max_f32", 22, 26)
        butterfly("v_max_f32", 23, 26)
        A("L_onemax:")
        A(f"v_mul_f32 v22, {sC}, v22")
        A(f"v_mul_f32 v23, {sC}, v23")
        stamp("S_done")
    def sm_Y():
        for i in range(4): A(f"v_fma_f32 {v(16+i)}, {v(16+i)}, {sC}, -v23")
        for i in range(4): A(f"v_exp_f32 {v(16+i)}, {v(16+i)}")
        A("v_add_f32 v25, v16, v17")
        A("v_add_f32 v27, v18, v19")
        A("v_cvt_pk_bf16_f32 v20, v16, v17")
        A("v_cvt_pk_bf16_f32 v21, v18, v19")
        A("v_add_f32 v25, v25, v27")
    def sm_exp(t):
        b = 64 + 8*t
        for i in range(8): A(f"v_fma_f32 {v(b+i)}, {v(b+i)}, {sC}, -v22")
        for i in range(8): A(f"v_exp_f32 {v(b+i)}, {v(b+i)}")
        if t == 0:
            A(f"v_add_f32 v24, {v(b)}, {v(b+1)}")
            A(f"v_add_f32 v26, {v(b+2)}, {v(b+3)}")
            r = range(4, 8, 2)
        else:
            r = range(0, 8, 2)
        for i in r:
            A(f"v_add_f32 v24, v24, {v(b+i)}")
            A(f"v_add_f32 v26, v26, {v(b+i+1)}")
        for k in range(4): A(f"v_cvt_pk_bf16_f32 {v(64+4*t+k)}, {v(b+2*k)}, {v(b+2*k+1)}")
    def sm_sum():
        A("v_add_f32 v24, v24, v26")
        A(f"s_cmp_eq_u32 {sXBf}, 1")
        A("s_cbranch_scc1 L_twosum")
        A("v_add_f32 v24, v24, v25")
        A("s_branch L_onesum")
        A("L_twosum:")
        butterfly("v_add_f32", 25, 26)
        setexec(0xff, 0)
        A(f"ds_write_b32 v31, v23 offset:{L_ML+512}")
        A(f"ds_write_b32 v31, v25 offset:{L_ML+768}")
        setexec(*FULL)
        A("L_onesum:")
        butterfly("v_add_f32", 24, 26)
        setexec(0xff, 0)
        A(f"ds_write_b32 v31, v22 offset:{L_ML}")
        A(f"ds_write_b32 v31, v24 offset:{L_ML+256}")
        setexec(*FULL)
    def pv_Y():
        transpose_mfma(112, 32, "v[20:21]", True, 80, True, nrows=4)
    def wr_Y():
        A(f"s_cmp_eq_u32 {sXBf}, 0")
        A("s_cbranch_scc1 L_noYw")
        A("s_nop 3")
        write_O(1, 32)
        A("L_noYw:")
        arrive(2)
    sH1W, sMLW, sH1R, sMLR, sH2W, sH2R, sF2W, sF2R = "s20", "s21", "s22", "s23", "s24", "s25", "s26", "s27"
    def addr2():
        A(f"s_and_b32 {sT1}, {sW}, 3")
        A(f"s_lshl_b32 {sT1}, {sT1}, 6")
        A(f"v_add_u32 v9, {sT1}, v0")
        A("v_lshrrev_b32 v10, 5, v9")
        A("v_lshrrev_b32 v11, 3, v9")
        A("v_and_b32 v13, 7, v0")
        A("v_xor_b32 v14, v13, v10")
        A("v_lshlrev_b32 v14, 4, v14")
        A("v_lshl_or_b32 v14, v11, 7, v14")
        A("v_lshlrev_b32 v15, 5, v10")
        A("v_and_b32 v13, 15, v0")
        A("v_lshlrev_b32 v13, 4, v13")
        A("v_lshrrev_b32 v11, 4, v9")
        A("v_lshl_or_b32 v11, v11, 14, v13")
        A(f"s_cmp_lt_u32 {sW}, 4")
        A(f"s_cselect_b32 {sO2}, {sXBf}, 0")
        A(f"s_lshl_b32 {sT2}, {sO2}, 2")
        A(f"s_add_u32 {sT2}, {sT2}, {sKVH}")
        A(f"s_mul_i32 {sO2}, {sO2}, 28")
        A(f"s_lshl_b32 {sT1}, {sB}, 5")
        A(f"s_add_u32 {sT1}, {sT1}, {sSP}")
        A(f"s_sub_u32 {sT1}, {sT1}, {sO2}")
        A(f"s_lshl_b32 {sH1W}, {sT2}, 18")
        A(f"s_lshl_b32 {sO2}, {sT1}, 8")
        A(f"s_add_u32 {sH1W}, {sH1W}, {sO2}")
        A(f"s_add_u32 {sH1W}, {sH1W}, {WS_H1}")
        A(f"s_lshl_b32 {sMLW}, {sT2}, 13")
        A(f"s_lshl_b32 {sO2}, {sT1}, 7")
        A(f"s_add_u32 {sMLW}, {sMLW}, {sO2}")
        A(f"s_add_u32 {sMLW}, {sMLW}, {WS_ML}")
        A("v_and_b32 v3, 7, v0")
        A("v_lshlrev_b32 v3, 4, v3")
        A("v_lshrrev_b32 v13, 3, v0")
        A("v_lshl_or_b32 v3, v13, 11, v3")
        A(f"s_lshl_b32 {sT1}, {sKVH}, 4")
        A(f"s_lshr_b32 {sT2}, {sSP}, 1")
        A(f"s_add_u32 {sT1}, {sT1}, {sT2}")
        A(f"s_lshl_b32 {sWO}, {sT1}, 17")
        A(f"s_and_b32 {sT2}, {sSP}, 1")
        A(f"s_lshl_b32 {sT2}, {sT2}, 3")
        A(f"s_add_u32 {sT2}, {sT2}, {sW}")
        A(f"s_lshl_b32 {sT2}, {sT2}, 7")
        A(f"s_add_u32 {sWO}, {sWO}, {sT2}")
    def dutyB(R, P, done):
        A(f"s_cmp_lt_u32 {sW}, 4")
        A(f"s_cbranch_scc1 {done}")
        A(f"s_cmp_eq_u32 {sXBf}, 0")
        A(f"s_cbranch_scc1 L_dutydone")
        wait_cnt(2)
        A(f"ds_read_b128 {v(R,4)}, v15 offset:{L_ML+512}")
        A(f"ds_read_b128 {v(R+4,4)}, v15 offset:{L_ML+512+16}")
        A("v_add_u32 v13, 32768, v14")
        for w in range(8): A(f"ds_read_b128 {v(P+4*w,4)}, v13 offset:{L_OP+4096*w}")
        A(f"ds_read_b128 {v(R+8,4)}, v15 offset:{L_ML+768}")
        A(f"ds_read_b128 {v(R+12,4)}, v15 offset:{L_ML+768+16}")
        A("s_waitcnt lgkmcnt(10)")
        A(f"v_max3_f32 {v(R+16)}, {v(R)}, {v(R+1)}, {v(R+2)}")
        A(f"v_max3_f32 {v(R+17)}, {v(R+3)}, {v(R+4)}, {v(R+5)}")
        A(f"v_max3_f32 {v(R+16)}, {v(R+16)}, {v(R+6)}, {v(R+7)}")
        A(f"v_max_f32 {v(R+16)}, {v(R+16)}, {v(R+17)}")
        for w in range(8): A(f"v_sub_f32 {v(R+w)}, {v(R+w)}, {v(R+16)}")
        for w in range(8): A(f"v_exp_f32 {v(R+w)}, {v(R+w)}")
        A("s_waitcnt lgkmcnt(0)")
        for k in range(4): A(f"v_mul_f32 {v(R+20+k)}, {v(R)}, {v(P+k)}")
        for w in range(1, 8):
            for k in range(4): A(f"v_fmac_f32 {v(R+20+k)}, {v(R+w)}, {v(P+4*w+k)}")
        for k in range(4): A(f"v_perm_b32 {v(R+20+k)}, {v(R+20+k)}, v8, {sTI[k]}")
        A(f"v_mul_f32 {v(R+17)}, {v(R)}, {v(R+8)}")
        for w in range(1, 8): A(f"v_fmac_f32 {v(R+17)}, {v(R+w)}, {v(R+8+w)}")
        A(f"v_mov_b32 {v(R+18)}, v8")
        A(f"v_mov_b32 {v(R+19)}, v8")
    def pubB(R):
        if o.get("noB"): return
        A(f"buffer_store_dwordx4 {v(R+20,4)}, v11, {srd(SWS)}, {sH1W} offen {HS}")
        A("v_lshrrev_b32 v10, 1, v15")
        setexec(1, 1)
        A(f"buffer_store_dwordx4 {v(R+16,4)}, v10, {srd(SWS)}, {sMLW} offen {HS}")
        setexec(*FULL)
    def duties():
        if o.get("bpos", "mid") == "mid":
            dutyB(32, 96, "L_notB")
            if o.get("ypos") == "bar":
                for k in range(4): A(f"v_mov_b32 {v(4+k)}, {v(48+k)}")
                for k in range(4): A(f"v_mov_b32 {v(16+k)}, {v(52+k)}")
            else:
                pubB(32)
            A("s_branch L_dutydone")
        A("L_notB:")
        A(f"s_cmp_lg_u32 {sW}, 1")
        A("s_cbranch_scc1 L_dutydone")
        wait_cnt(2)
        A("v_lshlrev_b32 v10, 5, v0")
        setexec(0xff, 0)
        A(f"ds_read_b128 v[96:99], v10 offset:{L_ML}")
        A(f"ds_read_b128 v[100:103], v10 offset:{L_ML+16}")
        A(f"ds_read_b128 v[104:107], v10 offset:{L_ML+256}")
        A(f"ds_read_b128 v[108:111], v10 offset:{L_ML+256+16}")
        A("s_waitcnt lgkmcnt(2)")
        A("v_max3_f32 v4, v96, v97, v98")
        A("v_max3_f32 v5, v99, v100, v101")
        A("v_max3_f32 v4, v4, v102, v103")
        A("v_max_f32 v4, v4, v5")
        for w in range(8): A(f"v_sub_f32 {v(96+w)}, {v(96+w)}, v4")
        for w in range(8): A(f"v_exp_f32 {v(96+w)}, {v(96+w)}")
        A("v_mov_b32 v6, v8")
        A("v_mov_b32 v7, v8")
        A(f"ds_write_b128 v10, v[96:99] offset:{L_F}")
        A(f"ds_write_b128 v10, v[100:103] offset:{L_F+16}")
        A("s_waitcnt lgkmcnt(2)")
        A("v_mul_f32 v5, v96, v104")
        for w in range(1, 8): A(f"v_fmac_f32 v5, {v(96+w)}, {v(104+w)}")
        setexec(*FULL)
        A("L_dutydone:")
    def pv(t):
        need(f"V{8*t+7}")
        if t == 0:
            A(f"s_cmp_eq_u32 {sXBf}, 1")
            A("s_cbranch_scc1 L_pv0new")
            transpose_mfma(128, 32, v(64, 4), False, 80, True)
            A("s_branch L_pv0done")
            A("L_pv0new:")
            transpose_mfma(128, 32, v(64, 4), True, 80, True)
            A("L_pv0done:")
        else:
            transpose_mfma(128+32*t, 32, v(64+4*t, 4), False, 80, True)
    def pv_half(hf):
        need(f"V{24+4*hf+3}")
        transpose_mfma(224+16*hf, 32, v(76+2*hf, 2), False, 80, True, nrows=4)
    def addr3():
        A(f"s_lshl_b32 {sH1R}, {sG}, 4")
        A(f"s_lshr_b32 {sT2}, {sSP}, 1")
        A(f"s_add_u32 {sH1R}, {sH1R}, {sT2}")
        A(f"s_lshl_b32 {sH1R}, {sH1R}, 14")
        A(f"s_lshr_b32 {sT1}, {sW}, 2")
        A(f"s_lshl_b32 {sT1}, {sT1}, 13")
        A(f"s_add_u32 {sH1R}, {sH1R}, {sT1}")
        A(f"s_and_b32 {sO2}, {sW}, 3")
        A(f"s_lshl_b32 {sO2}, {sO2}, 6")
        A(f"s_add_u32 {sH1R}, {sH1R}, {sO2}")
        A(f"s_add_u32 {sH1R}, {sH1R}, {WS_H1}")
        A(f"s_add_u32 s4, {sH1R}, 4096")
        A(f"s_lshl_b32 {sMLR}, {sG}, 13")
        A(f"s_lshr_b32 {sO2}, {sSP}, 2")
        A(f"s_lshl_b32 {sO2}, {sO2}, 4")
        A(f"s_add_u32 {sMLR}, {sMLR}, {sO2}")
        A(f"s_add_u32 {sMLR}, {sMLR}, {WS_ML}")
        A(f"s_lshl_b32 {sT1}, {sKVH}, 4")
        A(f"s_add_u32 {sT1}, {sT1}, {sT2}")
        A(f"s_lshl_b32 {sT1}, {sT1}, 6")
        A(f"s_lshl_b32 {sH2W}, {sB}, 19")
        A(f"s_add_u32 {sH2W}, {sH2W}, {sT1}")
        A(f"s_and_b32 {sT2}, {sSP}, 1")
        A(f"s_lshl_b32 {sT2}, {sT2}, 3")
        A(f"s_add_u32 {sT2}, {sT2}, {sW}")
        A(f"s_lshl_b32 {sT2}, {sT2}, 14")
        A(f"s_add_u32 {sH2W}, {sH2W}, {sT2}")
        A(f"s_add_u32 {sH2W}, {sH2W}, {WS_H2}")
        A(f"s_xor_b32 {sT1}, {sB}, {1 if o.get('swap') else 0}")
        A(f"s_lshl_b32 {sT1}, {sT1}, 9")
        A(f"s_lshl_b32 {sF2W}, {sW}, 16")
        A(f"s_add_u32 {sF2W}, {sF2W}, {sT1}")
        A(f"s_lshl_b32 {sT2}, {sKVH}, 7")
        A(f"s_add_u32 {sF2W}, {sF2W}, {sT2}")
        A(f"s_add_u32 {sF2W}, {sF2W}, {WS_F2}")
        A(f"s_lshl_b32 {sF2R}, s2, 9")
        A(f"s_and_b32 {sT2}, {sW}, 3")
        A(f"s_lshl_b32 {sT2}, {sT2}, 7")
        A(f"s_add_u32 {sF2R}, {sF2R}, {sT2}")
        A(f"s_add_u32 {sF2R}, {sF2R}, {WS_F2}")
        A(f"s_cmp_eq_u32 {sB}, 0")
        A("s_cselect_b32 s12, -1, 0xf")
        A("s_cselect_b32 s13, -1, 0xf")
        A("s_cselect_b32 s14, -1, 0xffff")
        A("s_cselect_b32 s15, -1, 0")
        A("s_bfe_u32 s7, s2, 0x10001")
        A("s_lshr_b32 s6, s2, 2")
        A(f"s_xor_b32 s8, {sB}, {1 if o.get('swap') else 0}")
        A(f"s_lshl_b32 {sT1}, s8, 1")
        A(f"s_add_u32 {sT1}, {sT1}, s7")
        A(f"s_lshl_b32 {sT1}, {sT1}, 6")
        A(f"s_add_u32 {sT1}, {sT1}, s6")
        A(f"s_lshl_b32 {sH2R}, {sT1}, 12")
        A(f"s_and_b32 {sT1}, {sW}, 3")
        A(f"s_lshl_b32 {sT1}, {sT1}, 10")
        A(f"s_add_u32 {sH2R}, {sH2R}, {sT1}")
        A(f"s_add_u32 {sH2R}, {sH2R}, {WS_H2}")
        A("s_mov_b32 s10, 0")
        A("s_mov_b32 s11, -1")
        A(f"s_lshr_b32 {sT1}, {sW}, 1")
        A(f"s_or_b32 s9, {sSP}, {sT1}")
    vMLG, vH1G, vOAW, vOAR, vH2S, vFPW, vZ, vFL, vWR = 64, 65, 66, 67, 68, 69, 70, 71, 72
    def addr4():
        A("v_lshrrev_b32 v9, 2, v0")
        A("v_and_b32 v10, 3, v0")
        A("v_lshlrev_b32 v10, 4, v10")
        A(f"v_lshlrev_b32 {v(vMLG)}, 7, v0")
        A(f"v_lshl_or_b32 {v(vH1G)}, v9, 8, v10")
        A(f"s_lshr_b32 {sT1}, {sW}, 2")
        A(f"s_lshl_b32 {sT2}, {sT1}, 8")
        A(f"v_lshl_add_u32 {v(vWR)}, v9, 3, {sT2}")
        A(f"s_lshl_b32 {sT1}, {sT1}, 7")
        A(f"s_and_b32 {sT2}, {sW}, 1")
        A(f"s_lshl_b32 {sT2}, {sT2}, 6")
        A(f"s_add_u32 {sT1}, {sT1}, {sT2}")
        A(f"s_and_b32 {sT2}, {sW}, 2")
        A(f"s_lshl_b32 {sT2}, {sT2}, 2")
        A(f"s_add_u32 {sT1}, {sT1}, {sT2}")
        A(f"v_lshl_or_b32 {v(vOAW)}, v12, 1, v10")
        A(f"v_add_u32 {v(vOAW)}, {sT1}, {v(vOAW)}")
        A("v_and_b32 v10, 1, v0")
        A("v_lshlrev_b32 v10, 4, v10")
        A(f"v_bfe_u32 {v(vOAR)}, v0, 2, 1")
        A(f"v_lshlrev_b32 {v(vOAR)}, 7, {v(vOAR)}")
        A(f"v_lshl_or_b32 {v(vOAR)}, v12, 5, {v(vOAR)}")
        A(f"v_or_b32 {v(vOAR)}, {v(vOAR)}, v10")
        A("v_bfe_u32 v9, v0, 4, 1")
        A("v_lshlrev_b32 v9, 18, v9")
        A("v_bfe_u32 v13, v0, 1, 2")
        A("v_lshl_or_b32 v9, v13, 12, v9")
        A("v_lshl_or_b32 v9, v10, 1, v9")
        A("v_lshrrev_b32 v10, 5, v0")
        A(f"v_lshl_or_b32 {v(vH2S)}, v10, 4, v9")
        A("v_and_b32 v9, 3, v0")
        A("v_lshlrev_b32 v9, 6, v9")
        A("v_lshl_or_b32 v9, v12, 4, v9")
        A(f"s_and_b32 {sT1}, {sW}, 3")
        A(f"s_lshl_b32 {sT1}, {sT1}, 2")
        A(f"v_add_u32 {v(vFPW)}, {sT1}, v9")
        A(f"v_mov_b32 {v(vZ)}, 0")
        A(f"v_lshlrev_b32 {v(vFL)}, 10, v0")
        if o.get("ypos") != "bar":
            A("v_mov_b32 v16, 0xff800000")
            A("v_mov_b32 v17, 0")
        for k in range(8): A(f"v_mov_b32 {v(20+k)}, 0")
    vcode = {3: [lambda: qk(3)], 4: [sm_max], 5: [sm_Y, lambda: sm_exp(0)], 6: [lambda: sm_exp(1)], 7: [lambda: sm_exp(2)],
             8: [lambda: sm_exp(3)], 9: [sm_sum], 10: [pv_Y], 11: [wr_Y], 12: [addr2], 14: [duties], 16: [lambda: pv(0)], 18: [addr3],
             20: [lambda: pv(1)]}
    p2 = o.get("pv2", min(30, 23 + (o["d2"] if o["n2"] >= 16 else o["d"]) - o["wo_before"]))
    p2 = max(p2, 24)
    vcode[p2] = [lambda: pv(2)]
    vcode.setdefault(p2 + 1, []).append(addr4)
    nb = o["wo_before"]
    bv, bd = o.get("bv", 0), o.get("bd", 0)
    vboost = {i: bv for i in range(2, 19)}
    vboost[14] = bd; vboost[15] = max(bv, bd - 1)
    seq = [(lambda pace, i=i: ldV(i, pace)) for i in range(24)] + [(lambda pace, k=k: ldWO(k, pace)) for k in range(nb)] + [(lambda pace, i=i: ldV(i, pace)) for i in range(24, 32)]
    vcode = {(i if i < 24 else i + nb): f for i, f in vcode.items()}
    run(seq, vcode, vboost)
    def ml_pub():
        A(f"s_cmp_lg_u32 {sW}, 1")
        A("s_cbranch_scc1 L_noml")
        setexec(0xff, 0)
        A(f"buffer_store_dwordx4 v[4:7], v2, {srd(SWS)}, {sMLW} offen {HS}")
        setexec(*FULL)
        A("L_noml:")
    A(f"s_mov_b32 s16, s15")
    A(f"s_mov_b32 s17, s15")
    hv = o["halves"]
    did = False
    for k in range(nb, 8 - NL):
        i = vm["n"]
        ldWO(k, pace=(i - o["d2"] <= vm["tag"]["V31"]))
        if hv and not did and vm["done"] > vm["tag"]["V27"]:
            pv_half(0); did = True
    assert vm["n"] == NTOT
    if hv and not did: pv_half(0)
    need("V31")
    stamp("lastV")
    if o["mlpos"] == "lastV": ml_pub()
    if hv: pv_half(1)
    else: pv(3)
    if o["mlpos"] == "pv": ml_pub()
    A("s_nop 5")
    write_O(0, 32)
    if o["mlpos"] == "wr": ml_pub()
    A("s_waitcnt lgkmcnt(0)")
    A("s_barrier")
    stamp("bar_O")
    if o["mlpos"] == "bar": ml_pub()
    A(f"s_cmp_ge_u32 {sW}, 4")
    A("s_cbranch_scc1 L_nocomb")
    A(f"ds_read_b128 v[128:131], v15 offset:{L_F}")
    for w in range(4): A(f"ds_read_b128 {v(160+4*w,4)}, v14 offset:{L_OP+4096*w}")
    A(f"ds_read_b128 v[132:135], v15 offset:{L_F+16}")
    for w in range(4, 8): A(f"ds_read_b128 {v(160+4*w,4)}, v14 offset:{L_OP+4096*w}")
    A("s_waitcnt lgkmcnt(8)")
    for k in range(4): A(f"v_mul_f32 {v(148+k)}, v128, {v(160+k)}")
    for w in range(1, 8):
        A(f"s_waitcnt lgkmcnt({8-w if w < 4 else 7-w})")
        for k in range(4): A(f"v_fmac_f32 {v(148+k)}, {v(128+w)}, {v(160+4*w+k)}")
    for k in range(4): A(f"v_perm_b32 {v(148+k)}, {v(148+k)}, v8, {sTI[k]}")
    A(f"buffer_store_dwordx4 v[148:151], v11, {srd(SWS)}, {sH1W} offen {HS}")
    stamp("pub1")
    A("s_waitcnt vmcnt(1)")
    A("s_branch L_wot")
    A("L_nocomb:")
    stamp("pub1")
    if o.get("ypos") == "bar":
        A(f"s_cmp_eq_u32 {sXBf}, 0")
        A("s_cbranch_scc1 L_noYpub")
        A("v_lshrrev_b32 v10, 1, v15")
        setexec(1, 1)
        A(f"buffer_store_dwordx4 v[4:7], v10, {srd(SWS)}, {sMLW} offen {HS}")
        setexec(*FULL)
        A(f"buffer_store_dwordx4 v[16:19], v11, {srd(SWS)}, {sH1W} offen {HS}")
        A("s_waitcnt vmcnt(2)")
        A("s_branch L_wot2")
        A("L_noYpub:")
    if o.get("ml0") is not None:
        A(f"s_cmp_lg_u32 {sW}, 4")
        A("s_cbranch_scc1 L_noml0")
        if o["ml0"]: A(f"s_sleep {o['ml0']}")
        A("s_mov_b64 exec, s[12:13]")
        A(f"buffer_load_dwordx4 v[16:19], {v(vMLG)}, {srd(SWS)}, {sMLR} offen {HL}")
        setexec(*FULL)
        A("s_waitcnt vmcnt(1)")
        A("s_branch L_wot")
        A("L_noml0:")
    A("s_waitcnt vmcnt(0)")
    if o.get("ypos") == "bar":
        A("L_wot2:")
        A("v_mov_b32 v16, 0xff800000")
        A("v_mov_b32 v17, 0")
    A("L_wot:")
    stamp("wo_land")
    def wo_perm(ks):
        for e in (0, 4, 1, 5, 2, 6, 3, 7):
            for k in ks:
                A(f"v_perm_b32 {v(192+4*e+k)}, {v(96+4*(2*k+1)+(e>>1))}, {v(96+4*(2*k)+(e>>1))}, {sHI if e & 1 else sLO}")
    wo_perm(range(4 - NL // 2))
    A(f"s_mov_b32 {sCNT}, {o['spin']}")
    A(f"s_cmp_lg_u32 {sW}, 4")
    A("s_cbranch_scc1 L_mldone")
    A("s_mov_b64 exec, s[12:13]")
    if o.get("mlsleep0"): A(f"s_sleep {o['mlsleep0']}")
    if o.get("ml0") is not None: A("s_branch L_mlchk")
    A("L_mlpoll:")
    A(f"buffer_load_dwordx4 v[16:19], {v(vMLG)}, {srd(SWS)}, {sMLR} offen {HL}")
    A("L_mlchk:")
    A("s_waitcnt vmcnt(0)")
    A(f"v_cmp_ne_u32 vcc, {sT}, v18")
    A(f"v_cmp_ne_u32 s[58:59], {sT}, v19")
    A("s_or_b64 vcc, vcc, s[58:59]")
    A("s_and_b64 exec, exec, vcc")
    A("s_cbranch_scc0 L_mlall")
    A(f"s_sub_u32 {sCNT}, {sCNT}, 1")
    A("s_cbranch_scc1 L_mlall")
    if o.get("mlsleep", 2): A(f"s_sleep {o.get('mlsleep', 2)}")
    A("s_branch L_mlpoll")
    A("L_mlall:")
    setexec(*FULL)
    A("v_lshlrev_b32 v9, 3, v0")
    A(f"ds_write_b64 v9, v[16:17] offset:{L_W}")
    A("s_waitcnt lgkmcnt(0)")
    A("L_mldone:")
    A("s_barrier")
    stamp("ml_got")
    if o["odelay"]: A(f"s_sleep {o['odelay']}")
    def oload(tag):
        A(f"buffer_load_dwordx4 v[20:23], {v(vH1G)}, {srd(SWS)}, {sH1R} offen {HL}")
        A(f"s_cmp_eq_u32 {sB}, 1")
        A(f"s_cbranch_scc1 L_one{tag}")
        A(f"buffer_load_dwordx4 v[24:27], {v(vH1G)}, {srd(SWS)}, s4 offen {HL}")
        A(f"L_one{tag}:")
    A("s_mov_b64 exec, s[14:15]")
    oload("a")
    setexec(*FULL)
    if NL and o.get("lbar", 1): A("s_barrier")
    for k in range(8 - NL, 8): ldWO(k, pace=False)
    A(f"ds_read2_b64 v[16:19], {v(vWR)} offset0:{L_W//8} offset1:{L_W//8+16}") if L_W // 8 + 16 < 256 else (
        A(f"ds_read_b64 v[16:17], {v(vWR)} offset:{L_W}"), A(f"ds_read_b64 v[18:19], {v(vWR)} offset:{L_W+128}"))
    def flag2():
        A("s_cmp_lg_u32 s9, 0")
        A("s_cbranch_scc1 L_nof2")
        A(f"buffer_store_dword v8, {v(vFL)}, {srd(SWS)}, {sF2W} offen {HS}")
        A("L_nof2:")
    def allreduce16(op, x, t):
        A("s_nop 1")
        A(f"{op}_dpp {v(x)}, {v(x)}, {v(x)} row_ror:4 {DPP}")
        A("s_nop 1")
        A(f"{op}_dpp {v(x)}, {v(x)}, {v(x)} row_ror:8 {DPP}")
        butterfly(op, x, t)
    if o["f2pos"] == "ml": flag2()
    A("s_waitcnt lgkmcnt(0)")
    A("v_max_f32 v28, v16, v18")
    allreduce16("v_max_f32", 28, 29)
    A("v_sub_f32 v16, v16, v28")
    A("v_sub_f32 v18, v18, v28")
    A("v_exp_f32 v16, v16")
    A("v_exp_f32 v18, v18")
    A("v_mul_f32 v28, v16, v17")
    A("v_fmac_f32 v28, v18, v19")
    allreduce16("v_add_f32", 28, 29)
    A("v_rcp_f32 v28, v28")
    A("s_nop 0")
    A("v_mul_f32 v16, v16, v28")
    A("v_mul_f32 v18, v18, v28")
    if stamps: A(f"s_mov_b32 s62, {sCNT}")
    A(f"s_mov_b32 {sCNT}, {o['spin']}")
    A("s_mov_b64 exec, s[14:15]")
    A(f"s_waitcnt vmcnt({NL})")
    A("L_opoll:")
    tagcheck(20, 28, 29, "vcc")
    tagcheck(24, 30, 31, "s[58:59]")
    A("s_and_b64 s[58:59], s[58:59], s[16:17]")
    A("s_or_b64 vcc, vcc, s[58:59]")
    A("s_cbranch_scc0 L_odone")
    A(f"s_sub_u32 {sCNT}, {sCNT}, 1")
    A("s_cbranch_scc1 L_odone")
    if o["sleep"]: A(f"s_sleep {o['sleep']}")
    oload("b")
    A("s_waitcnt vmcnt(0)")
    A("s_branch L_opoll")
    A("L_odone:")
    setexec(*FULL)
    stamp("hop1")
    if stamps: A(f"s_mov_b32 s94, {sCNT}")
    if o["f2pos"] == "hop1": flag2()
    for k in range(4): A(f"v_mul_f32 {v(20+k)}, v16, {v(20+k)}")
    for k in range(4): A(f"v_fmac_f32 {v(20+k)}, v18, {v(24+k)}")
    A("v_permlane16_swap_b32 v20, v21")
    A("s_nop 0")
    A("v_permlane16_swap_b32 v22, v23")
    A("v_add_f32 v20, v20, v21")
    A("v_add_f32 v22, v22, v23")
    A("s_nop 1")
    A("v_permlane32_swap_b32 v20, v22")
    A("v_add_f32 v20, v20, v22")
    for m in ("row_ror:8", "row_ror:4"):
        A("s_nop 1")
        A(f"v_add_f32_dpp v20, v20, v20 {m} {DPP}")
    A("v_cvt_pk_bf16_f32 v20, v20, v20")
    setexec(0x000f000f, 0x000f000f)
    A(f"ds_write_b16 {v(vOAW)}, v20 offset:{L_OA}")
    setexec(*FULL)
    A("s_waitcnt lgkmcnt(0)")
    A("s_barrier")
    A(f"ds_read_b128 v[28:31], {v(vOAR)} offset:{L_OA}")
    if NL:
        A("s_waitcnt vmcnt(0)")
        wo_perm(range(4 - NL // 2, 4))
    if o["f2pos"] == "oabar": flag2()
    A("s_waitcnt lgkmcnt(0)")
    for e in (0, 4, 1, 5, 2, 6, 3, 7): A(f"{M32} {v(32+4*e,4)}, v[28:31], {v(192+4*e,4)}, 0")
    A("s_nop 1")
    for k in range(4):
        A(f"v_cndmask_b32 {v(24+k)}, {v(33+4*k)}, {v(49+4*k)}, s[10:11]")
        A(f"v_cndmask_b32 {v(16+k)}, {v(32+4*k)}, {v(48+4*k)}, s[10:11]")
    for k in range(4): A(f"v_add_f32_dpp {v(16+k)}, {v(24+k)}, {v(16+k)} row_ror:8 {DPP}")
    for k in range(4): A(f"v_perm_b32 {v(16+k)}, {v(16+k)}, v8, {sTI[k]}")
    setexec(0x00ff00ff, 0x00ff00ff)
    A(f"buffer_store_dwordx4 v[16:19], {v(vH2S)}, {srd(SWS)}, {sH2W} offen {HS}")
    setexec(*FULL)
    if o["f2pos"] == "pub2": flag2()
    stamp("pub2")
    A(f"s_cmp_ge_u32 {sW}, 4")
    A("s_cbranch_scc1 L_fin")
    A(f"s_mov_b32 {sCNT}, {o['spin']}")
    A("L_f2poll:")
    A(f"s_load_dword {sT1}, s[{SWS}:{SWS+1}], {sF2R} glc")
    A("s_waitcnt lgkmcnt(0)")
    A(f"s_cmp_eq_u32 {sT1}, {sT}")
    spin_tail("L_f2poll", "L_f2done", o.get("f2sleep"))
    stamp("f2_got")
    if stamps: A(f"s_mov_b32 s63, {sCNT}")
    A(f"s_mov_b32 {sCNT}, {o['spin']}")
    if o["fdelay"]: A(f"s_sleep {o['fdelay']}")
    A("L_fpoll:")
    A(f"buffer_load_dwordx4 v[20:23], v2, {srd(SWS)}, {sH2R} offen {HL}")
    A("s_waitcnt vmcnt(0)")
    tagcheck(20, 25, 26, "vcc")
    A("s_cmp_eq_u64 vcc, 0")
    spin_tail("L_fpoll", "L_fdone")
    stamp("hop2")
    if stamps: A(f"s_mov_b32 s96, {sCNT}")
    A("v_permlane16_swap_b32 v20, v21")
    A("v_permlane16_swap_b32 v22, v23")
    A("v_add_f32 v20, v20, v21")
    A("v_add_f32 v22, v22, v23")
    A("s_nop 1")
    A("v_permlane32_swap_b32 v20, v22")
    A("v_add_f32 v20, v20, v22")
    A("s_nop 1")
    A(f"v_add_f32_dpp v20, v20, v20 row_ror:8 {DPP}")
    A("s_nop 1")
    A(f"v_add_f32_dpp v20, v20, v20 row_ror:4 {DPP}")
    setexec(0x000f000f, 0x000f000f)
    A(f"ds_write_b32 {v(vFPW)}, v20 offset:{L_FP}")
    setexec(*FULL)
    A(f"s_lshl_b32 {sO}, s7, 12")
    A(f"s_lshl_b32 {sT1}, s8, 11")
    A(f"s_add_u32 {sO}, {sO}, {sT1}")
    A(f"s_lshl_b32 {sT1}, s6, 5")
    A(f"s_add_u32 {sO}, {sO}, {sT1}")
    A("v_lshlrev_b32 v9, 1, v0")
    A("s_waitcnt lgkmcnt(0)")
    A("s_barrier")
    A(f"s_cmp_lg_u32 {sW}, 0")
    A("s_cbranch_scc1 L_fin")
    setexec(0xffff, 0)
    A(f"ds_read_b128 v[16:19], v2 offset:{L_FP}")
    A("s_waitcnt lgkmcnt(0)")
    A("v_add_f32 v16, v16, v17")
    A("v_add_f32 v18, v18, v19")
    A("v_add_f32 v16, v16, v18")
    A("v_cvt_pk_bf16_f32 v16, v16, v16")
    A(f"buffer_store_short v16, v9, {srd(SOUT)}, {sO} offen {o.get('os', '')}")
    A("s_cmp_lg_u32 s2, 0")
    A("s_cbranch_scc1 L_fin")
    setexec(1, 0)
    A(f"buffer_store_dword v8, {v(vZ)}, {srd(SWS)}, 0 offen {o.get('os', '')}")
    A("L_fin:")
    if stamps and o.get("hold"):
        A("s_waitcnt lgkmcnt(0)")
        A("L_hold:")
        A("s_memrealtime s[62:63]")
        A("s_waitcnt lgkmcnt(0)")
        A("s_sub_u32 s62, s62, s60")
        A(f"s_cmp_lt_u32 s62, {o['hold']}")
        A("s_cbranch_scc1 L_hold")
        A("s_endpgm")
    if stamps:
        setexec(*FULL)
        stamp("end")
        A("s_waitcnt lgkmcnt(0)")
        A("s_getreg_b32 s98, hwreg(HW_REG_XCC_ID)")
        A("s_getreg_b32 s99, hwreg(HW_REG_HW_ID)")
        vals = ["s60"] + [f"s{62+2*k}" for k in range(1, 16)] + ["s63", "s62", "s94", "s96", "s98", "s99", "s61", "s98"]
        for k, s in enumerate(vals): A(f"v_mov_b32 {v(128+k)}, {s}")
        A(f"s_lshl_b32 {sT1}, s2, 3")
        A(f"s_add_u32 {sT1}, {sT1}, {sW}")
        A(f"s_lshl_b32 {sT1}, {sT1}, 7")
        A(f"s_add_u32 {sT1}, {sT1}, {WS_ST}")
        A("v_mov_b32 v9, 0")
        setexec(1, 0)
        if o.get("dbgout"):
            A("s_load_dwordx2 s[4:5], s[0:1], 88")
            A("s_mov_b32 s6, 256")
            A("s_mov_b32 s7, 0x20000")
            A("v_not_b32 v128, v128")
            A("s_waitcnt lgkmcnt(0)")
            A(f"s_cmp_lg_u32 {sW}, 0")
            A("s_cbranch_scc1 L_end")
            for k in range(16): A(f"buffer_atomic_umax {v(128+k)}, v9, s[4:7], 0 offen offset:{4*k}")
        else:
            for k in range(6): A(f"buffer_store_dwordx4 {v(128+4*k,4)}, v9, {srd(SWS)}, {sT1} offen offset:{16*k}")
    A("L_end:")
    A("s_endpgm")
    A('.section .rodata,"a"')
    A(".p2align 6")
    A(f".amdhsa_kernel {NAME}")
    A(".amdhsa_next_free_vgpr 256")
    A(".amdhsa_next_free_sgpr 102")
    A(".amdhsa_accum_offset 256")
    A(".amdhsa_group_segment_fixed_size 0")
    A(".amdhsa_kernarg_size 104")
    A(".amdhsa_user_sgpr_count 2")
    A(".amdhsa_user_sgpr_kernarg_segment_ptr 1")
    A(".amdhsa_system_sgpr_workgroup_id_x 1")
    A(".amdhsa_float_denorm_mode_32 3")
    A(".end_amdhsa_kernel")
    msgs = check_hazards(A.lines)
    for m in msgs: print(m, file=sys.stderr)
    return A.text()

if __name__ == "__main__":
    import json
    name = sys.argv[1]; opt = json.loads(sys.argv[2]) if len(sys.argv) > 2 else {}
    open(f"k_{name}.s", "w").write(gen(False, opt))
    open(f"k_{name}_st.s", "w").write(gen(True, opt))
```

```python
import sys, struct, math
from asmlib import Asm, check_hazards

NAME = "concat_heads__gqa_block_cached__sliding_block_cached__decode_kernel"
REF = "concat_heads__gqa_block_cached__sliding_block_cached__decode.s.ref"

WS_Q   = 0x10000
WS_ML  = 0x30000
WS_F2  = 0x40000
WS_H1  = 0x100000
WS_H2  = 0x300000
WS_ST  = 0x500000
WS_USED = 0x600000
L_QP = 0
L_QS = L_QP + 4096
L_ML = L_QS + 4096
L_F  = L_ML + 1024
L_W  = L_F + 256
L_OA = L_W + 512
L_FP = L_OA + 256
L_CNT = L_FP + 512
L_OP = 12288
assert L_CNT + 256 <= L_OP
L_END = L_OP + 65536

DEF_STN = ["start", "wq_land", "q_pub", "q_got", "q_lds", "S_done", "lastV", "bar_O", "pub1", "wo_land", "ml_got", "hop1", "pub2", "f2_got", "hop2", "end"]

def f32bits(x):
    return struct.unpack("<I", struct.pack("<f", x))[0]

def gen(stamps=False, opt=None):
    o = dict(spin=400000, ld="nt", hs="sc1", hl="sc1", sleep=1, d=3, d0=3, d2=4, n2=11, gq=12, wo_before=1,
             mlpos="bar", odelay=0, f2pos="oabar", fdelay=0, skew="gp", fb=4, sflag=1, swap=1, halves=1, slow_until=60, xbboost=1, lay="cu")
    if opt: o.update(opt)
    LD, HS, HL = o["ld"], o["hs"], o["hl"]
    A = Asm()
    hdr = [l.rstrip("\n") for l in open(REF) if l.startswith(";") and "@launch" not in l and "Override" not in l and "grid=ceil" not in l]
    for l in hdr: A(l)
    A(f"; @launch grid=(256,1,1) block=(512,1,1) lds={L_END}")
    STN = o.get("stn", DEF_STN)
    if stamps: A("; stamps: " + " ".join(STN))
    A('.amdgcn_target "amdgcn-amd-amdhsa--gfx950"')
    A(".text")
    A(f".globl {NAME}")
    A(".p2align 8")
    A(f".type {NAME},@function")
    A(f"{NAME}:")

    SX, SWQ, SKA, SVA, SKB, SVB, SWO, SWS, SOUT = 4, 8, 12, 16, 20, 24, 28, 32, 36
    sW, sB, sKVH, sSP, sO, sKA0, sT, sCNT = "s40", "s41", "s42", "s43", "s44", "s45", "s46", "s47"
    sLO, sHI, sXA, sXB, sC = "s48", "s49", "s50", "s51", "s52"
    sTI = ["s53", "s54", "s55", "s56"]
    sO2, sT1, sT2 = "s57", "s58", "s59"
    sR, sKB0, sG = "s3", "s100", "s101"
    sXBf, sSTEP, sWRAP = "s97", "s96", "s95"
    srd = lambda b: f"s[{b}:{b+3}]"
    def stamp(name):
        if stamps and name in STN:
            k = STN.index(name)
            A(f"s_memrealtime s[{62+2*k}:{63+2*k}]") if k > 0 else A("s_memrealtime s[60:61]")
        if stamps and o.get("cut") == name: A("s_waitcnt vmcnt(0)"); A("s_branch L_fin")
    def v(b, n=1):
        return f"v{b}" if n == 1 else f"v[{b}:{b+n-1}]"
    def setexec(lo, hi):
        if lo == hi == 0xffffffff: A("s_mov_b64 exec, -1")
        else: A(f"s_mov_b32 exec_lo, {lo:#x}"); A(f"s_mov_b32 exec_hi, {hi:#x}")
    FULL = (0xffffffff, 0xffffffff)
    DPP = "row_mask:0xf bank_mask:0xf"
    M32 = "v_mfma_f32_16x16x32_bf16"

    NL = o.get("wo_late", 0)
    assert NL % 2 == 0
    NTOT = (0 if o.get("c2") else 1) + 8 + 8 + 32 + 2 + 32 + 8 - NL
    vm = dict(n=0, done=0, tag={})
    lab = [0]
    sTHR, sTHR2 = "s99", "s98"
    def vwait(k):
        if k >= vm["done"]:
            A(f"s_waitcnt vmcnt({vm['n'] - 1 - k})")
            vm["done"] = k + 1
    def dwin(i):
        return o["d0"] if i < 9 else (o["d2"] if i >= NTOT - o["n2"] else o["d"])
    FB = o.get("fb", 0)
    def pacewait(i):
        d = dwin(i)
        if FB and 9 <= i < NTOT - o["n2"]:
            if i % FB == 0 and i >= o.get("fb0", 12):
                A("v_mov_b32 v9, 0")
                A("v_mov_b32 v10, 1")
                setexec(1, 0)
                A(f"ds_add_rtn_u32 v10, v9, v10 offset:{L_CNT+16+4*(i//FB)}")
                A("s_waitcnt lgkmcnt(0)")
                A(f"v_cmp_le_u32 vcc, {sTHR if i < o.get('slow_until', 0) else sTHR2 if o.get('odd') else o.get('thr', 4)}, v10")
                setexec(*FULL)
            dhi = o.get("dhi", d + 1)
            vwait(min(i - dhi, vm["n"] - 1))
            k = min(i - d, vm["n"] - 1)
            if k >= vm["done"]:
                lab[0] += 1
                A(f"s_cbranch_vccnz L_sk{lab[0]}")
                A(f"s_waitcnt vmcnt({vm['n'] - 1 - k})")
                A(f"L_sk{lab[0]}:")
        elif i - d >= 0:
            vwait(min(i - d, vm["n"] - 1))
    def load(txt, tag=None, pace=True):
        i = vm["n"]
        if pace: pacewait(i)
        A(txt)
        if tag: vm["tag"][tag] = i
        vm["n"] += 1
    def need(tag): vwait(vm["tag"][tag])
    def run(seq, code, boost):
        base = vm["n"]; issued = 0
        for i in range(len(seq)):
            extra = vm["n"] - base - issued
            if i < issued:
                pacewait(base + extra + i)
            else:
                seq[i](True); issued = i + 1
            while issued < min(len(seq), i + 1 + boost.get(i, 0)):
                seq[issued](False); issued += 1
            for f in code.get(i, []): f()

    def spin_tail(label, done, sl=None):
        sl = o["sleep"] if sl is None else sl
        A(f"s_cbranch_scc1 {done}")
        A(f"s_sub_u32 {sCNT}, {sCNT}, 1")
        A(f"s_cbranch_scc1 {done}")
        if sl: A(f"s_sleep {sl}")
        A(f"s_branch {label}")
        A(f"{done}:")
    def arrive(k):
        A("v_mov_b32 v9, 0")
        A("v_mov_b32 v10, 1")
        setexec(1, 0)
        A(f"ds_add_u32 v9, v10 offset:{L_CNT+4*k}")
        setexec(*FULL)
    def wait_cnt(k):
        lab[0] += 1
        l = f"L_cnt{lab[0]}"
        A("v_mov_b32 v9, 0")
        A(f"s_mov_b32 {sCNT}, {o['spin']}")
        A(f"{l}:")
        A(f"ds_read_b32 v10, v9 offset:{L_CNT+4*k}")
        A("s_waitcnt lgkmcnt(0)")
        A(f"v_readfirstlane_b32 {sT1}, v10")
        A(f"s_cmp_eq_u32 {sT1}, 8")
        spin_tail(l, l + "d", 1)
    def tagcheck(d, t0, t1, dst):
        A(f"v_perm_b32 {v(t0)}, {v(d+1)}, {v(d)}, {sXA}")
        A(f"v_perm_b32 {v(t1)}, {v(d+3)}, {v(d+2)}, {sXB}")
        A(f"v_or_b32 {v(t0)}, {v(t0)}, {v(t1)}")
        A(f"v_cmp_ne_u32 {dst}, {sT}, {v(t0)}")
    def transpose_mfma(src, acc, other, first, tmp, a_is_tile, nrows=8):
        nt = nrows // 2
        op = M32 if nrows == 8 else "v_mfma_f32_16x16x16_bf16"
        def perms(e):
            t = tmp + 4 * (e % 4)
            for k in range(nt):
                A(f"v_perm_b32 {v(t+k)}, {v(src+4*(2*k+1)+(e>>1))}, {v(src+4*(2*k)+(e>>1))}, {sHI if e & 1 else sLO}")
        def mfma(e):
            t = v(tmp + 4 * (e % 4), nt)
            c = "0" if first else v(acc+4*e, 4)
            a, b = (t, other) if a_is_tile else (other, t)
            A(f"{op} {v(acc+4*e,4)}, {a}, {b}, {c}")
        perms(0)
        for e in range(8):
            if e < 7: perms(e+1)
            else: A("s_nop 1")
            mfma(e)
    def butterfly(op, x, t):
        for sw in ("v_permlane16_swap_b32", "v_permlane32_swap_b32"):
            A(f"v_mov_b32 {v(t)}, {v(x)}")
            A("s_nop 1")
            A(f"{sw} {v(x)}, {v(t)}")
            A(f"{op} {v(x)}, {v(x)}, {v(t)}")
    def write_O(br, acc):
        setexec(0x00ff00ff, 0x00ff00ff)
        for e in range(8):
            if e == 0:
                A(f"ds_write_b128 v28, {v(acc,4)} offset:{L_OP+32768*br}")
            else:
                A(f"v_xor_b32 {v(29+(e&1))}, {16*e}, v28")
                A(f"ds_write_b128 {v(29+(e&1))}, {v(acc+4*e,4)} offset:{L_OP+32768*br}")
        setexec(*FULL)

    stamp("start")
    A("s_cmp_ge_u32 s2, 256")
    A("s_cbranch_scc1 L_end")
    A("s_load_dwordx16 s[64:79], s[0:1], 0")
    A("s_load_dwordx8 s[80:87], s[0:1], 64")
    A("s_load_dwordx2 s[88:89], s[0:1], 96")
    A("v_lshrrev_b32 v1, 6, v0")
    A("v_and_b32 v0, 63, v0")
    A(f"v_readfirstlane_b32 {sW}, v1")
    A(f"s_and_b32 {sB}, s2, 1")
    A(f"s_bfe_u32 {sKVH}, s2, 0x20001")
    A(f"s_lshr_b32 {sSP}, s2, 3")
    A("v_lshrrev_b32 v9, 3, v0")
    A("v_and_b32 v10, 7, v0")
    A("v_lshlrev_b32 v10, 4, v10")
    c2 = o.get("c2")
    A(f"v_lshl_or_b32 v3, v9, {13 if c2 else 16}, v10")
    A("v_lshrrev_b32 v12, 4, v0")
    A("v_bfe_u32 v9, v0, 2, 1")
    A("v_and_b32 v10, 1, v0")
    A("v_lshl_or_b32 v10, v12, 1, v10")
    A(f"v_lshlrev_b32 v10, {1 if c2 else 4}, v10")
    A("v_lshl_or_b32 v11, v9, 11, v10")
    A(f"s_and_b32 {sT1}, {sSP}, 1")
    A(f"s_lshl_b32 {sT1}, {sT1}, 3")
    A(f"s_add_u32 {sT1}, {sT1}, {sW}")
    A(f"s_lshl_b32 {sO}, {sT1}, 19")
    A(f"s_lshl_b32 {sO2}, {sT1}, 7")
    A(f"s_lshl_b32 {sT1}, {sKVH}, 11")
    A(f"s_lshr_b32 {sT2}, {sSP}, 1")
    A(f"s_lshl_b32 {sT2}, {sT2}, 7")
    A(f"s_add_u32 {sO}, {sO}, {sT1}")
    A(f"s_add_u32 {sO}, {sO}, {sT2}")
    A(f"s_mov_b32 s{SX+2}, 4096")
    A(f"s_mov_b32 s{SX+3}, 0x20000")
    A(f"s_mov_b32 s{SWQ+2}, 0x800000")
    A(f"s_mov_b32 s{SWQ+3}, 0x20000")
    A("v_mov_b32 v16, 0")
    A("v_lshlrev_b32 v17, 2, v0")
    A("s_mov_b64 vcc, 0")
    A(f"s_cmp_eq_u32 {sB}, 0")
    A("s_waitcnt lgkmcnt(0)")
    A(f"s_cselect_b64 s[{SX}:{SX+1}], s[64:65], s[74:75]")
    A(f"s_cselect_b64 s[{SWQ}:{SWQ+1}], s[70:71], s[80:81]")
    A(f"s_cselect_b64 s[{SWO}:{SWO+1}], s[72:73], s[82:83]")
    il = o.get("il", False)
    def ldWQ(i, pace=True):
        load(f"buffer_load_dwordx4 {v(64+4*i,4)}, v3, {srd(SWQ)}, {sO} offen {LD}", tag=f"WQ{i}", pace=pace)
        A(f"s_add_u32 {sO}, {sO}, {65536 if c2 else 8192}")
    nfirst = 2 if il else min(8, o["d0"])
    if c2:
        for i in range(8): A(f"buffer_load_ushort {v(20+i)}, v11, {srd(SX)}, {sO2} offen offset:{16*i}")
    for i in range(nfirst): ldWQ(i)
    if o.get("wsoff"):
        A(f"s_add_u32 s88, s88, {o['wsoff']:#x}")
        A("s_addc_u32 s89, s89, 0")
    A(f"s_load_dword {sT}, s[88:89], 0")
    A(f"ds_write_b32 v17, v16 offset:{L_CNT}")
    if o.get("odd"):
        A(f"s_getreg_b32 {sT1}, hwreg(HW_REG_XCC_ID, 0, 1)")
        A(f"s_mul_i32 {sT1}, {sT1}, {o['odd']}")
        A(f"s_sub_u32 {sTHR2}, {o.get('thr', 4)}, {sT1}")
    if o.get("slow_until"):
        A(f"s_lshr_b32 {sT1}, s{SWQ}, 7")
        A(f"s_lshr_b32 {sT2}, {sSP}, 1")
        A(f"s_add_u32 {sT1}, {sT1}, {sT2}")
        A(f"s_and_b32 {sT1}, {sT1}, 7")
        A(f"s_cmp_eq_u32 {sT1}, 3")
        A(f"s_cselect_b32 {sTHR}, 0, {sTHR2 if o.get('odd') else o.get('thr', 4)}")
    A(f"s_cmp_ge_u32 {sSP}, 28")
    A(f"s_cselect_b32 {sXBf}, 1, 0")
    A(f"s_cselect_b32 {sSTEP}, 32, 224")
    A(f"s_cselect_b64 s[{SKA}:{SKA+1}], s[76:77], s[66:67]")
    A(f"s_cselect_b64 s[{SVA}:{SVA+1}], s[78:79], s[68:69]")
    if o.get("xbboost"): A(f"s_cselect_b32 {sTHR}, {o['xbboost'] - 1}, {sTHR}")
    A(f"s_lshl_b32 {sSTEP}, {sSTEP}, 12")
    A(f"s_lshl_b32 {sWRAP}, {sSTEP}, 3")
    for b in (SKA, SVA):
        A(f"s_mov_b32 s{b+2}, 0x4000000")
        A(f"s_mov_b32 s{b+3}, 0x20000")
    for b, p, n in ((SKB, 66, 0x4000000), (SVB, 68, 0x4000000), (SWS, 88, WS_USED), (SOUT, 84, 8192)):
        A(f"s_mov_b64 s[{b}:{b+1}], s[{p}:{p+1}]")
        A(f"s_mov_b32 s{b+2}, {n:#x}")
        A(f"s_mov_b32 s{b+3}, 0x20000")
    A(f"s_mov_b32 s{SWO+2}, 0x800000")
    A(f"s_mov_b32 s{SWO+3}, 0x20000")
    A("v_lshlrev_b32 v2, 4, v0")
    A("v_bfe_u32 v9, v0, 1, 1")
    A("v_lshlrev_b32 v1, 4, v12")
    A("v_lshl_or_b32 v1, v9, 10, v1")
    A("v_bfe_u32 v9, v0, 2, 2")
    A("v_lshl_or_b32 v1, v9, 8, v1")
    A("v_and_b32 v9, 1, v0")
    A("v_lshl_or_b32 v1, v9, 6, v1")
    A(f"s_lshl_b32 {sG}, {sB}, 2")
    A(f"s_add_u32 {sG}, {sG}, {sKVH}")
    A(f"s_lshl_b32 {sT1}, {sG}, 23")
    A(f"s_lshl_b32 {sT2}, {sSP}, 3")
    A(f"s_add_u32 {sT2}, {sT2}, {sW}")
    A(f"s_lshl_b32 {sT2}, {sT2}, 12")
    A(f"s_add_u32 {sKA0}, {sT1}, {sT2}")
    A(f"s_add_u32 {sKB0}, {sKA0}, {28672*256}")
    if o.get("lay") == "blk":
        A(f"s_lshl_b32 {sT2}, {sT2}, 3")
        A(f"s_add_u32 {sKA0}, {sT1}, {sT2}")
        A(f"s_mov_b32 {sSTEP}, 4096")
        A(f"s_mov_b32 {sWRAP}, 32768")
        A(f"s_mul_i32 {sT1}, {sXBf}, {28672*256 - 224*32768}")
    elif o.get("lay") == "cu":
        A(f"s_lshl_b32 {sT2}, {sSP}, 18")
        A(f"s_add_u32 {sKA0}, {sT1}, {sT2}")
        A(f"s_lshl_b32 {sT2}, {sW}, 12")
        A(f"s_add_u32 {sKA0}, {sKA0}, {sT2}")
        A(f"s_mov_b32 {sSTEP}, 32768")
        A(f"s_mov_b32 {sWRAP}, 262144")
        A(f"s_mul_i32 {sT1}, {sXBf}, {28672*256 - 224*32768}")
    else:
        A(f"s_mul_i32 {sT1}, {sXBf}, {28672*256 - 224*4096}")
    A(f"s_add_u32 {sKA0}, {sKA0}, {sT1}")
    A(f"s_mov_b32 {sLO}, 0x05040100")
    A(f"s_mov_b32 {sHI}, 0x07060302")
    A(f"s_mov_b32 {sXA}, 0x0c0c0400")
    A(f"s_mov_b32 {sXB}, 0x04000c0c")
    A(f"s_mov_b32 {sC}, {f32bits(128**-0.5 * math.log2(math.e)):#x}")
    for k in range(4): A(f"s_mov_b32 {sTI[k]}, {0x07060500+k:#x}")
    A("s_waitcnt lgkmcnt(0)")
    A("s_barrier")
    KOFF = [0, 128, 2048, 2176]
    def ldB(i, pace=True):
        if i < 4: load(f"buffer_load_dwordx4 {v(96+4*i,4)}, v1, {srd(SKB)}, {sKB0} offen offset:{KOFF[i]} {LD}", tag=f"B{i}", pace=pace)
        else: load(f"buffer_load_dwordx4 {v(96+4*i,4)}, v2, {srd(SVB)}, {sKB0} offen offset:{1024*(i-4)} {LD}", tag=f"B{i}", pace=pace)
    nB = 0
    for i in range(nfirst, 8):
        if il and nB < 5: ldB(nB); nB += 1
        ldWQ(i)
    if not c2: load(f"buffer_load_dwordx4 v[4:7], v11, {srd(SX)}, {sO2} offen", tag="wq", pace=False)
    else: vm["tag"]["wq"] = vm["n"] - 1
    A(f"s_mul_i32 {sT}, {sT}, 0x9e3779b1")
    A(f"s_add_u32 {sT}, {sT}, 0x7f4a7c15")
    A(f"v_mov_b32 v8, {sT}")

    def blk_start():
        if o["skew"] == "w": A(f"s_mul_i32 {sR}, {sW}, {sSTEP}")
        elif o["skew"] == "p":
            A(f"s_and_b32 {sR}, {sSP}, 7"); A(f"s_mul_i32 {sR}, {sR}, {sSTEP}")
        elif o["skew"] == "gp":
            A(f"s_add_u32 {sR}, {sSP}, {sG}"); A(f"s_and_b32 {sR}, {sR}, 7"); A(f"s_mul_i32 {sR}, {sR}, {sSTEP}")
        elif o["skew"] == "gw":
            A(f"s_add_u32 {sR}, {sW}, {sG}"); A(f"s_and_b32 {sR}, {sR}, 7"); A(f"s_mul_i32 {sR}, {sR}, {sSTEP}")
        elif o["skew"]: A(f"s_mul_i32 {sR}, {sG}, {sSTEP}")
        else: A(f"s_mov_b32 {sR}, 0")
        A(f"s_add_u32 {sO}, {sKA0}, {sR}")
    def blk_step():
        A(f"s_add_u32 {sR}, {sR}, {sSTEP}")
        A(f"s_cmp_eq_u32 {sR}, {sWRAP}")
        A(f"s_cselect_b32 {sR}, 0, {sR}")
        A(f"s_add_u32 {sO}, {sKA0}, {sR}")
    def ldK(i, pace=True):
        if i == 0: blk_start()
        elif i % 4 == 0: blk_step()
        load(f"buffer_load_dwordx4 {v(128+4*i,4)}, v1, {srd(SKA)}, {sO} offen offset:{KOFF[i%4]} {LD}", tag=f"K{i}", pace=pace)
    def ldV(i, pace=True):
        if i == 0: blk_start()
        elif i % 4 == 0: blk_step()
        load(f"buffer_load_dwordx4 {v(128+4*i,4)}, v2, {srd(SVA)}, {sO} offen offset:{1024*(i%4)} {LD}", tag=f"V{i}", pace=pace)
    sWO = "s100"
    def ldWO(i, pace=True):
        load(f"buffer_load_dwordx4 {v(96+4*i,4)}, v3, {srd(SWO)}, {sWO} offen {LD}", tag=f"WO{i}", pace=pace)
        if i < 7: A(f"s_add_u32 {sWO}, {sWO}, 16384")

    for i in range(3):
        vwait(vm["tag"]["wq"] - 3 + i)
        ldB(nB, pace=False); nB += 1
    need("wq")
    stamp("wq_land")
    if c2:
        for k in range(4): A(f"v_perm_b32 {v(4+k)}, {v(21+2*k)}, {v(20+2*k)}, {sLO}")
    transpose_mfma(64, 32, "v[4:7]", True, 32 if False else 224, False)
    kpre = 0
    def more():
        nonlocal nB, kpre
        if nB < 8: ldB(nB); nB += 1
        else: ldK(kpre); kpre += 1
    more()
    A("v_and_b32 v9, 15, v0")
    A("v_lshlrev_b32 v9, 5, v9")
    A("v_lshl_or_b32 v9, v12, 8, v9")
    A(f"s_lshl_b32 {sT1}, {sW}, 9")
    A(f"v_add_u32 v13, {sT1}, v9")
    for e in range(8):
        if e == 7: A("s_nop 0")
        A(f"v_add_f32_dpp {v(64+e)}, {v(33+4*e)}, {v(32+4*e)} row_ror:8 {DPP}")
    setexec(0x00ff00ff, 0)
    A(f"ds_write_b128 v13, v[64:67] offset:{L_QP}")
    A(f"ds_write_b128 v13, v[68:71] offset:{L_QP+16}")
    setexec(*FULL)
    arrive(0)
    more()
    A(f"s_cmp_lg_u32 {sW}, 0")
    A("s_cbranch_scc1 L_noqpub")
    A("v_and_b32 v13, 15, v0")
    A("v_lshlrev_b32 v13, 4, v13")
    A("v_lshl_or_b32 v13, v12, 13, v13")
    A(f"s_lshl_b32 {sO2}, {sG}, 14")
    A(f"s_and_b32 {sT2}, {sSP}, 1")
    A(f"s_lshl_b32 {sT2}, {sT2}, 12")
    A(f"s_add_u32 {sO2}, {sO2}, {sT2}")
    A(f"s_lshr_b32 {sT2}, {sSP}, 1")
    A(f"s_lshl_b32 {sT2}, {sT2}, 8")
    A(f"s_add_u32 {sO2}, {sO2}, {sT2}")
    A(f"s_add_u32 {sO2}, {sO2}, {WS_Q}")
    wait_cnt(0)
    for w in range(8): A(f"ds_read_b128 {v(32+4*w,4)}, v2 offset:{L_QP+512*w}")
    for w in range(1, 8):
        A(f"s_waitcnt lgkmcnt({7-w})")
        for k in range(4): A(f"v_add_f32 {v(32+k)}, {v(32+k)}, {v(32+4*w+k)}")
    for k in range(4): A(f"v_perm_b32 {v(32+k)}, {v(32+k)}, v8, {sTI[k]}")
    setexec(0xffffffff, 0)
    A(f"buffer_store_dwordx4 v[32:35], v13, {srd(SWS)}, {sO2} offen {HS}")
    setexec(*FULL)
    stamp("q_pub")
    A("L_noqpub:")
    while nB < 8: more()

    gq = o["gq"]
    def q_issue():
        A(f"s_lshl_b32 {sT1}, {sKVH}, 1")
        A(f"s_add_u32 {sT1}, {sT1}, {sB}")
        A(f"s_lshl_b32 {sT1}, {sT1}, 13")
        A(f"s_lshr_b32 {sT2}, {sW}, 2")
        A(f"s_lshl_b32 {sT2}, {sT2}, 16")
        A(f"s_add_u32 {sT1}, {sT1}, {sT2}")
        A(f"s_and_b32 {sT2}, {sW}, 3")
        A(f"s_lshl_b32 {sT2}, {sT2}, 10")
        A(f"s_add_u32 {sT1}, {sT1}, {sT2}")
        A(f"s_add_u32 s4, {sT1}, {WS_Q}")
        A(f"s_add_u32 s5, s4, 4096")
        load(f"buffer_load_dwordx4 v[16:19], v2, {srd(SWS)}, s4 offen {HL}", pace=False)
        load(f"buffer_load_dwordx4 v[20:23], v2, {srd(SWS)}, s5 offen {HL}", tag="Q", pace=False)
    def q_check():
        need("Q")
        A(f"s_mov_b32 {sCNT}, {o['spin']}")
        A("L_qpoll:")
        tagcheck(16, 9, 10, "s[6:7]")
        tagcheck(20, 9, 10, "s[58:59]")
        A("s_or_b64 s[6:7], s[6:7], s[58:59]")
        A("s_cmp_eq_u64 s[6:7], 0")
        A("s_cbranch_scc1 L_qdone")
        A(f"s_sub_u32 {sCNT}, {sCNT}, 1")
        A("s_cbranch_scc1 L_qdone")
        A("s_sleep 8")
        A(f"buffer_load_dwordx4 v[16:19], v2, {srd(SWS)}, s4 offen {HL}")
        A(f"buffer_load_dwordx4 v[20:23], v2, {srd(SWS)}, s5 offen {HL}")
        A("s_waitcnt vmcnt(0)")
        A("s_branch L_qpoll")
        A("L_qdone:")
        if stamps: A(f"s_mov_b32 s61, {sCNT}")
        stamp("q_got")
        for k in range(4): A(f"v_add_f32 {v(16+k)}, {v(16+k)}, {v(20+k)}")
        A(f"s_lshl_b32 {sT1}, {sW}, 9")
        A("v_lshlrev_b32 v13, 3, v0")
        A(f"v_add_u32 v13, {sT1}, v13")
        A("v_cvt_pk_bf16_f32 v16, v16, v17")
        A("v_cvt_pk_bf16_f32 v17, v18, v19")
        A(f"ds_write_b64 v13, v[16:17] offset:{L_QS}")
        arrive(1)
    def q_read():
        A("v_and_b32 v13, 7, v0")
        A("v_lshlrev_b32 v28, 4, v13")
        A("v_lshl_or_b32 v28, v13, 9, v28")
        A("v_lshl_or_b32 v28, v12, 7, v28")
        A(f"s_lshl_b32 {sT1}, {sW}, 12")
        A(f"v_add_u32 v28, {sT1}, v28")
        A("v_lshlrev_b32 v13, 8, v13")
        A("v_lshl_or_b32 v13, v12, 4, v13")
        A("v_bfe_u32 v14, v0, 3, 1")
        A("v_lshl_or_b32 v13, v14, 6, v13")
        A(f"s_lshl_b32 {sT1}, {sXBf}, 11")
        A(f"v_add_u32 v14, {sT1}, v13")
        wait_cnt(1)
        stamp("q_lds")
        A(f"ds_read_b128 v[56:59], v13 offset:{L_QS}")
        A(f"ds_read_b128 v[60:63], v13 offset:{L_QS+128}")
        A(f"ds_read_b128 v[48:51], v14 offset:{L_QS}")
        A(f"ds_read_b128 v[52:55], v14 offset:{L_QS+128}")
    def qk_B():
        need("B7")
        A("s_waitcnt lgkmcnt(2)")
        for g in range(2): A(f"{M32} {v(32+4*g,4)}, {v(96+8*g,4)}, v[56:59], 0")
        for g in range(2): A(f"{M32} {v(32+4*g,4)}, {v(100+8*g,4)}, v[60:63], {v(32+4*g,4)}")
        A(f"s_lshl_b32 {sT1}, {sW}, 2")
        A("v_lshlrev_b32 v31, 5, v0")
        A(f"v_add_u32 v31, {sT1}, v31")
        A("s_nop 4")
        for g in range(2):
            for a in range(2):
                A(f"v_add_f32_dpp {v(16+2*g+a)}, {v(32+4*g+2*a+1)}, {v(32+4*g+2*a)} row_ror:8 {DPP}")
    def qk(t):
        kb = 128 + 32*t
        need(f"K{8*t+7}")
        if t == 0: A("s_waitcnt lgkmcnt(0)")
        for g in range(4): A(f"{M32} {v(32+4*g,4)}, {v(kb+8*g,4)}, v[48:51], 0")
        for g in range(4): A(f"{M32} {v(32+4*g,4)}, {v(kb+8*g+4,4)}, v[52:55], {v(32+4*g,4)}")
        A("s_nop 4")
        for g in range(4):
            for a in range(2):
                if g == 3 and a == 0: A("s_nop 0")
                A(f"v_add_f32_dpp {v(64+8*t+2*g+a)}, {v(32+4*g+2*a+1)}, {v(32+4*g+2*a)} row_ror:8 {DPP}")
    kcode = {gq: [q_issue], gq+4: [q_check], gq+8: [q_read], gq+9: [qk_B], gq+10: [lambda: qk(0)], gq+11: [lambda: qk(1)]}
    kcode.setdefault(max(gq+12, 28), []).append(lambda: qk(2))
    assert max(kcode) <= 31
    bk = o.get("bk", 0)
    kboost = {i: bk for i in range(gq+6, gq+14)}
    run([(lambda pace, i=i: ldK(i, pace)) for i in range(kpre, 32)], {i - kpre: f for i, f in kcode.items()}, {i - kpre: f for i, f in kboost.items()})

    def sm_max():
        A("v_max3_f32 v22, v64, v65, v66")
        A("v_max3_f32 v26, v67, v68, v69")
        left = list(range(70, 96)); k = 0
        while left:
            dst = 22 if k % 2 == 0 else 26
            a, b = left.pop(0), left.pop(0)
            A(f"v_max3_f32 {v(dst)}, {v(dst)}, {v(a)}, {v(b)}")
            k += 1
        A("v_max3_f32 v23, v16, v17, v18")
        A("v_max_f32 v22, v22, v26")
        A("v_max_f32 v23, v23, v19")
        A(f"s_cmp_eq_u32 {sXBf}, 1")
        A("s_cbranch_scc1 L_twomax")
        A("v_max_f32 v22, v22, v23")
        butterfly("v_max_f32", 22, 26)
        A("v_mov_b32 v23, v22")
        A("s_branch L_onemax")
        A("L_twomax:")
        butterfly("v_max_f32", 22, 26)
        butterfly("v_max_f32", 23, 26)
        A("L_onemax:")
        A(f"v_mul_f32 v22, {sC}, v22")
        A(f"v_mul_f32 v23, {sC}, v23")
        stamp("S_done")
    def sm_Y():
        for i in range(4): A(f"v_fma_f32 {v(16+i)}, {v(16+i)}, {sC}, -v23")
        for i in range(4): A(f"v_exp_f32 {v(16+i)}, {v(16+i)}")
        A("v_add_f32 v25, v16, v17")
        A("v_add_f32 v27, v18, v19")
        A("v_cvt_pk_bf16_f32 v20, v16, v17")
        A("v_cvt_pk_bf16_f32 v21, v18, v19")
        A("v_add_f32 v25, v25, v27")
    def sm_exp(t):
        b = 64 + 8*t
        for i in range(8): A(f"v_fma_f32 {v(b+i)}, {v(b+i)}, {sC}, -v22")
        for i in range(8): A(f"v_exp_f32 {v(b+i)}, {v(b+i)}")
        if t == 0:
            A(f"v_add_f32 v24, {v(b)}, {v(b+1)}")
            A(f"v_add_f32 v26, {v(b+2)}, {v(b+3)}")
            r = range(4, 8, 2)
        else:
            r = range(0, 8, 2)
        for i in r:
            A(f"v_add_f32 v24, v24, {v(b+i)}")
            A(f"v_add_f32 v26, v26, {v(b+i+1)}")
        for k in range(4): A(f"v_cvt_pk_bf16_f32 {v(64+4*t+k)}, {v(b+2*k)}, {v(b+2*k+1)}")
    def sm_sum():
        A("v_add_f32 v24, v24, v26")
        A(f"s_cmp_eq_u32 {sXBf}, 1")
        A("s_cbranch_scc1 L_twosum")
        A("v_add_f32 v24, v24, v25")
        A("s_branch L_onesum")
        A("L_twosum:")
        butterfly("v_add_f32", 25, 26)
        setexec(0xff, 0)
        A(f"ds_write_b32 v31, v23 offset:{L_ML+512}")
        A(f"ds_write_b32 v31, v25 offset:{L_ML+768}")
        setexec(*FULL)
        A("L_onesum:")
        butterfly("v_add_f32", 24, 26)
        setexec(0xff, 0)
        A(f"ds_write_b32 v31, v22 offset:{L_ML}")
        A(f"ds_write_b32 v31, v24 offset:{L_ML+256}")
        setexec(*FULL)
    def pv_Y():
        transpose_mfma(112, 32, "v[20:21]", True, 80, True, nrows=4)
    def wr_Y():
        A(f"s_cmp_eq_u32 {sXBf}, 0")
        A("s_cbranch_scc1 L_noYw")
        A("s_nop 3")
        write_O(1, 32)
        A("L_noYw:")
        arrive(2)
    sH1W, sMLW, sH1R, sMLR, sH2W, sH2R, sF2W, sF2R = "s20", "s21", "s22", "s23", "s24", "s25", "s26", "s27"
    def addr2():
        A(f"s_and_b32 {sT1}, {sW}, 3")
        A(f"s_lshl_b32 {sT1}, {sT1}, 6")
        A(f"v_add_u32 v9, {sT1}, v0")
        A("v_lshrrev_b32 v10, 5, v9")
        A("v_lshrrev_b32 v11, 3, v9")
        A("v_and_b32 v13, 7, v0")
        A("v_xor_b32 v14, v13, v10")
        A("v_lshlrev_b32 v14, 4, v14")
        A("v_lshl_or_b32 v14, v11, 7, v14")
        A("v_lshlrev_b32 v15, 5, v10")
        A("v_and_b32 v13, 15, v0")
        A("v_lshlrev_b32 v13, 4, v13")
        A("v_lshrrev_b32 v11, 4, v9")
        A("v_lshl_or_b32 v11, v11, 14, v13")
        A(f"s_cmp_lt_u32 {sW}, 4")
        A(f"s_cselect_b32 {sO2}, {sXBf}, 0")
        A(f"s_lshl_b32 {sT2}, {sO2}, 2")
        A(f"s_add_u32 {sT2}, {sT2}, {sKVH}")
        A(f"s_mul_i32 {sO2}, {sO2}, 28")
        A(f"s_lshl_b32 {sT1}, {sB}, 5")
        A(f"s_add_u32 {sT1}, {sT1}, {sSP}")
        A(f"s_sub_u32 {sT1}, {sT1}, {sO2}")
        A(f"s_lshl_b32 {sH1W}, {sT2}, 18")
        A(f"s_lshl_b32 {sO2}, {sT1}, 8")
        A(f"s_add_u32 {sH1W}, {sH1W}, {sO2}")
        A(f"s_add_u32 {sH1W}, {sH1W}, {WS_H1}")
        A(f"s_lshl_b32 {sMLW}, {sT2}, 13")
        A(f"s_lshl_b32 {sO2}, {sT1}, 7")
        A(f"s_add_u32 {sMLW}, {sMLW}, {sO2}")
        A(f"s_add_u32 {sMLW}, {sMLW}, {WS_ML}")
        A("v_and_b32 v3, 7, v0")
        A("v_lshlrev_b32 v3, 4, v3")
        A("v_lshrrev_b32 v13, 3, v0")
        A("v_lshl_or_b32 v3, v13, 11, v3")
        A(f"s_lshl_b32 {sT1}, {sKVH}, 4")
        A(f"s_lshr_b32 {sT2}, {sSP}, 1")
        A(f"s_add_u32 {sT1}, {sT1}, {sT2}")
        A(f"s_lshl_b32 {sWO}, {sT1}, 17")
        A(f"s_and_b32 {sT2}, {sSP}, 1")
        A(f"s_lshl_b32 {sT2}, {sT2}, 3")
        A(f"s_add_u32 {sT2}, {sT2}, {sW}")
        A(f"s_lshl_b32 {sT2}, {sT2}, 7")
        A(f"s_add_u32 {sWO}, {sWO}, {sT2}")
    def dutyB(R, P, done):
        A(f"s_cmp_lt_u32 {sW}, 4")
        A(f"s_cbranch_scc1 {done}")
        A(f"s_cmp_eq_u32 {sXBf}, 0")
        A(f"s_cbranch_scc1 L_dutydone")
        wait_cnt(2)
        A(f"ds_read_b128 {v(R,4)}, v15 offset:{L_ML+512}")
        A(f"ds_read_b128 {v(R+4,4)}, v15 offset:{L_ML+512+16}")
        A("v_add_u32 v13, 32768, v14")
        for w in range(8): A(f"ds_read_b128 {v(P+4*w,4)}, v13 offset:{L_OP+4096*w}")
        A(f"ds_read_b128 {v(R+8,4)}, v15 offset:{L_ML+768}")
        A(f"ds_read_b128 {v(R+12,4)}, v15 offset:{L_ML+768+16}")
        A("s_waitcnt lgkmcnt(10)")
        A(f"v_max3_f32 {v(R+16)}, {v(R)}, {v(R+1)}, {v(R+2)}")
        A(f"v_max3_f32 {v(R+17)}, {v(R+3)}, {v(R+4)}, {v(R+5)}")
        A(f"v_max3_f32 {v(R+16)}, {v(R+16)}, {v(R+6)}, {v(R+7)}")
        A(f"v_max_f32 {v(R+16)}, {v(R+16)}, {v(R+17)}")
        for w in range(8): A(f"v_sub_f32 {v(R+w)}, {v(R+w)}, {v(R+16)}")
        for w in range(8): A(f"v_exp_f32 {v(R+w)}, {v(R+w)}")
        A("s_waitcnt lgkmcnt(0)")
        for k in range(4): A(f"v_mul_f32 {v(R+20+k)}, {v(R)}, {v(P+k)}")
        for w in range(1, 8):
            for k in range(4): A(f"v_fmac_f32 {v(R+20+k)}, {v(R+w)}, {v(P+4*w+k)}")
        for k in range(4): A(f"v_perm_b32 {v(R+20+k)}, {v(R+20+k)}, v8, {sTI[k]}")
        A(f"v_mul_f32 {v(R+17)}, {v(R)}, {v(R+8)}")
        for w in range(1, 8): A(f"v_fmac_f32 {v(R+17)}, {v(R+w)}, {v(R+8+w)}")
        A(f"v_mov_b32 {v(R+18)}, v8")
        A(f"v_mov_b32 {v(R+19)}, v8")
    def pubB(R):
        if o.get("noB"): return
        A(f"buffer_store_dwordx4 {v(R+20,4)}, v11, {srd(SWS)}, {sH1W} offen {HS}")
        A("v_lshrrev_b32 v10, 1, v15")
        setexec(1, 1)
        A(f"buffer_store_dwordx4 {v(R+16,4)}, v10, {srd(SWS)}, {sMLW} offen {HS}")
        setexec(*FULL)
    def duties():
        if o.get("bpos", "mid") == "mid":
            dutyB(32, 96, "L_notB")
            if o.get("ypos") == "bar":
                for k in range(4): A(f"v_mov_b32 {v(4+k)}, {v(48+k)}")
                for k in range(4): A(f"v_mov_b32 {v(16+k)}, {v(52+k)}")
            else:
                pubB(32)
            A("s_branch L_dutydone")
        A("L_notB:")
        A(f"s_cmp_lg_u32 {sW}, 1")
        A("s_cbranch_scc1 L_dutydone")
        wait_cnt(2)
        A("v_lshlrev_b32 v10, 5, v0")
        setexec(0xff, 0)
        A(f"ds_read_b128 v[96:99], v10 offset:{L_ML}")
        A(f"ds_read_b128 v[100:103], v10 offset:{L_ML+16}")
        A(f"ds_read_b128 v[104:107], v10 offset:{L_ML+256}")
        A(f"ds_read_b128 v[108:111], v10 offset:{L_ML+256+16}")
        A("s_waitcnt lgkmcnt(2)")
        A("v_max3_f32 v4, v96, v97, v98")
        A("v_max3_f32 v5, v99, v100, v101")
        A("v_max3_f32 v4, v4, v102, v103")
        A("v_max_f32 v4, v4, v5")
        for w in range(8): A(f"v_sub_f32 {v(96+w)}, {v(96+w)}, v4")
        for w in range(8): A(f"v_exp_f32 {v(96+w)}, {v(96+w)}")
        A("v_mov_b32 v6, v8")
        A("v_mov_b32 v7, v8")
        A(f"ds_write_b128 v10, v[96:99] offset:{L_F}")
        A(f"ds_write_b128 v10, v[100:103] offset:{L_F+16}")
        A("s_waitcnt lgkmcnt(2)")
        A("v_mul_f32 v5, v96, v104")
        for w in range(1, 8): A(f"v_fmac_f32 v5, {v(96+w)}, {v(104+w)}")
        setexec(*FULL)
        A("L_dutydone:")
    def pv(t):
        need(f"V{8*t+7}")
        if t == 0:
            A(f"s_cmp_eq_u32 {sXBf}, 1")
            A("s_cbranch_scc1 L_pv0new")
            transpose_mfma(128, 32, v(64, 4), False, 80, True)
            A("s_branch L_pv0done")
            A("L_pv0new:")
            transpose_mfma(128, 32, v(64, 4), True, 80, True)
            A("L_pv0done:")
        else:
            transpose_mfma(128+32*t, 32, v(64+4*t, 4), False, 80, True)
    def pv_half(hf):
        need(f"V{24+4*hf+3}")
        transpose_mfma(224+16*hf, 32, v(76+2*hf, 2), False, 80, True, nrows=4)
    def addr3():
        A(f"s_lshl_b32 {sH1R}, {sG}, 4")
        A(f"s_lshr_b32 {sT2}, {sSP}, 1")
        A(f"s_add_u32 {sH1R}, {sH1R}, {sT2}")
        A(f"s_lshl_b32 {sH1R}, {sH1R}, 14")
        A(f"s_lshr_b32 {sT1}, {sW}, 2")
        A(f"s_lshl_b32 {sT1}, {sT1}, 13")
        A(f"s_add_u32 {sH1R}, {sH1R}, {sT1}")
        A(f"s_and_b32 {sO2}, {sW}, 3")
        A(f"s_lshl_b32 {sO2}, {sO2}, 6")
        A(f"s_add_u32 {sH1R}, {sH1R}, {sO2}")
        A(f"s_add_u32 {sH1R}, {sH1R}, {WS_H1}")
        A(f"s_add_u32 s4, {sH1R}, 4096")
        A(f"s_lshl_b32 {sMLR}, {sG}, 13")
        A(f"s_lshr_b32 {sO2}, {sSP}, 2")
        A(f"s_lshl_b32 {sO2}, {sO2}, 4")
        A(f"s_add_u32 {sMLR}, {sMLR}, {sO2}")
        A(f"s_add_u32 {sMLR}, {sMLR}, {WS_ML}")
        A(f"s_lshl_b32 {sT1}, {sKVH}, 4")
        A(f"s_add_u32 {sT1}, {sT1}, {sT2}")
        A(f"s_lshl_b32 {sT1}, {sT1}, 6")
        A(f"s_lshl_b32 {sH2W}, {sB}, 19")
        A(f"s_add_u32 {sH2W}, {sH2W}, {sT1}")
        A(f"s_and_b32 {sT2}, {sSP}, 1")
        A(f"s_lshl_b32 {sT2}, {sT2}, 3")
        A(f"s_add_u32 {sT2}, {sT2}, {sW}")
        A(f"s_lshl_b32 {sT2}, {sT2}, 14")
        A(f"s_add_u32 {sH2W}, {sH2W}, {sT2}")
        A(f"s_add_u32 {sH2W}, {sH2W}, {WS_H2}")
        A(f"s_xor_b32 {sT1}, {sB}, {1 if o.get('swap') else 0}")
        A(f"s_lshl_b32 {sT1}, {sT1}, 9")
        A(f"s_lshl_b32 {sF2W}, {sW}, 16")
        A(f"s_add_u32 {sF2W}, {sF2W}, {sT1}")
        A(f"s_lshl_b32 {sT2}, {sKVH}, 7")
        A(f"s_add_u32 {sF2W}, {sF2W}, {sT2}")
        A(f"s_add_u32 {sF2W}, {sF2W}, {WS_F2}")
        A(f"s_lshl_b32 {sF2R}, s2, 9")
        A(f"s_and_b32 {sT2}, {sW}, 3")
        A(f"s_lshl_b32 {sT2}, {sT2}, 7")
        A(f"s_add_u32 {sF2R}, {sF2R}, {sT2}")
        A(f"s_add_u32 {sF2R}, {sF2R}, {WS_F2}")
        A(f"s_cmp_eq_u32 {sB}, 0")
        A("s_cselect_b32 s12, -1, 0xf")
        A("s_cselect_b32 s13, -1, 0xf")
        A("s_cselect_b32 s14, -1, 0xffff")
        A("s_cselect_b32 s15, -1, 0")
        A("s_bfe_u32 s7, s2, 0x10001")
        A("s_lshr_b32 s6, s2, 2")
        A(f"s_xor_b32 s8, {sB}, {1 if o.get('swap') else 0}")
        A(f"s_lshl_b32 {sT1}, s8, 1")
        A(f"s_add_u32 {sT1}, {sT1}, s7")
        A(f"s_lshl_b32 {sT1}, {sT1}, 6")
        A(f"s_add_u32 {sT1}, {sT1}, s6")
        A(f"s_lshl_b32 {sH2R}, {sT1}, 12")
        A(f"s_and_b32 {sT1}, {sW}, 3")
        A(f"s_lshl_b32 {sT1}, {sT1}, 10")
        A(f"s_add_u32 {sH2R}, {sH2R}, {sT1}")
        A(f"s_add_u32 {sH2R}, {sH2R}, {WS_H2}")
        A("s_mov_b32 s10, 0")
        A("s_mov_b32 s11, -1")
        A(f"s_lshr_b32 {sT1}, {sW}, 1")
        A(f"s_or_b32 s9, {sSP}, {sT1}")
    vMLG, vH1G, vOAW, vOAR, vH2S, vFPW, vZ, vFL, vWR = 64, 65, 66, 67, 68, 69, 70, 71, 72
    def addr4():
        A("v_lshrrev_b32 v9, 2, v0")
        A("v_and_b32 v10, 3, v0")
        A("v_lshlrev_b32 v10, 4, v10")
        A(f"v_lshlrev_b32 {v(vMLG)}, 7, v0")
        A(f"v_lshl_or_b32 {v(vH1G)}, v9, 8, v10")
        A(f"s_lshr_b32 {sT1}, {sW}, 2")
        A(f"s_lshl_b32 {sT2}, {sT1}, 8")
        A(f"v_lshl_add_u32 {v(vWR)}, v9, 3, {sT2}")
        A(f"s_lshl_b32 {sT1}, {sT1}, 7")
        A(f"s_and_b32 {sT2}, {sW}, 1")
        A(f"s_lshl_b32 {sT2}, {sT2}, 6")
        A(f"s_add_u32 {sT1}, {sT1}, {sT2}")
        A(f"s_and_b32 {sT2}, {sW}, 2")
        A(f"s_lshl_b32 {sT2}, {sT2}, 2")
        A(f"s_add_u32 {sT1}, {sT1}, {sT2}")
        A(f"v_lshl_or_b32 {v(vOAW)}, v12, 1, v10")
        A(f"v_add_u32 {v(vOAW)}, {sT1}, {v(vOAW)}")
        A("v_and_b32 v10, 1, v0")
        A("v_lshlrev_b32 v10, 4, v10")
        A(f"v_bfe_u32 {v(vOAR)}, v0, 2, 1")
        A(f"v_lshlrev_b32 {v(vOAR)}, 7, {v(vOAR)}")
        A(f"v_lshl_or_b32 {v(vOAR)}, v12, 5, {v(vOAR)}")
        A(f"v_or_b32 {v(vOAR)}, {v(vOAR)}, v10")
        A("v_bfe_u32 v9, v0, 4, 1")
        A("v_lshlrev_b32 v9, 18, v9")
        A("v_bfe_u32 v13, v0, 1, 2")
        A("v_lshl_or_b32 v9, v13, 12, v9")
        A("v_lshl_or_b32 v9, v10, 1, v9")
        A("v_lshrrev_b32 v10, 5, v0")
        A(f"v_lshl_or_b32 {v(vH2S)}, v10, 4, v9")
        A("v_and_b32 v9, 3, v0")
        A("v_lshlrev_b32 v9, 6, v9")
        A("v_lshl_or_b32 v9, v12, 4, v9")
        A(f"s_and_b32 {sT1}, {sW}, 3")
        A(f"s_lshl_b32 {sT1}, {sT1}, 2")
        A(f"v_add_u32 {v(vFPW)}, {sT1}, v9")
        A(f"v_mov_b32 {v(vZ)}, 0")
        A(f"v_lshlrev_b32 {v(vFL)}, 10, v0")
        if o.get("ypos") != "bar":
            A("v_mov_b32 v16, 0xff800000")
            A("v_mov_b32 v17, 0")
        for k in range(8): A(f"v_mov_b32 {v(20+k)}, 0")
    vcode = {3: [lambda: qk(3)], 4: [sm_max], 5: [sm_Y, lambda: sm_exp(0)], 6: [lambda: sm_exp(1)], 7: [lambda: sm_exp(2)],
             8: [lambda: sm_exp(3)], 9: [sm_sum], 10: [pv_Y], 11: [wr_Y], 12: [addr2], 14: [duties], 16: [lambda: pv(0)], 18: [addr3],
             20: [lambda: pv(1)]}
    p2 = o.get("pv2", min(30, 23 + (o["d2"] if o["n2"] >= 16 else o["d"]) - o["wo_before"]))
    p2 = max(p2, 24)
    vcode[p2] = [lambda: pv(2)]
    vcode.setdefault(p2 + 1, []).append(addr4)
    nb = o["wo_before"]
    bv, bd = o.get("bv", 0), o.get("bd", 0)
    vboost = {i: bv for i in range(2, 19)}
    vboost[14] = bd; vboost[15] = max(bv, bd - 1)
    seq = [(lambda pace, i=i: ldV(i, pace)) for i in range(24)] + [(lambda pace, k=k: ldWO(k, pace)) for k in range(nb)] + [(lambda pace, i=i: ldV(i, pace)) for i in range(24, 32)]
    vcode = {(i if i < 24 else i + nb): f for i, f in vcode.items()}
    run(seq, vcode, vboost)
    def ml_pub():
        A(f"s_cmp_lg_u32 {sW}, 1")
        A("s_cbranch_scc1 L_noml")
        setexec(0xff, 0)
        A(f"buffer_store_dwordx4 v[4:7], v2, {srd(SWS)}, {sMLW} offen {HS}")
        setexec(*FULL)
        A("L_noml:")
    A(f"s_mov_b32 s16, s15")
    A(f"s_mov_b32 s17, s15")
    hv = o["halves"]
    did = False
    for k in range(nb, 8 - NL):
        i = vm["n"]
        ldWO(k, pace=(i - o["d2"] <= vm["tag"]["V31"]))
        if hv and not did and vm["done"] > vm["tag"]["V27"]:
            pv_half(0); did = True
    assert vm["n"] == NTOT
    if hv and not did: pv_half(0)
    need("V31")
    stamp("lastV")
    if o["mlpos"] == "lastV": ml_pub()
    if hv: pv_half(1)
    else: pv(3)
    if o["mlpos"] == "pv": ml_pub()
    A("s_nop 5")
    write_O(0, 32)
    if o["mlpos"] == "wr": ml_pub()
    A("s_waitcnt lgkmcnt(0)")
    A("s_barrier")
    stamp("bar_O")
    if o["mlpos"] == "bar": ml_pub()
    A(f"s_cmp_ge_u32 {sW}, 4")
    A("s_cbranch_scc1 L_nocomb")
    A(f"ds_read_b128 v[128:131], v15 offset:{L_F}")
    for w in range(4): A(f"ds_read_b128 {v(160+4*w,4)}, v14 offset:{L_OP+4096*w}")
    A(f"ds_read_b128 v[132:135], v15 offset:{L_F+16}")
    for w in range(4, 8): A(f"ds_read_b128 {v(160+4*w,4)}, v14 offset:{L_OP+4096*w}")
    A("s_waitcnt lgkmcnt(8)")
    for k in range(4): A(f"v_mul_f32 {v(148+k)}, v128, {v(160+k)}")
    for w in range(1, 8):
        A(f"s_waitcnt lgkmcnt({8-w if w < 4 else 7-w})")
        for k in range(4): A(f"v_fmac_f32 {v(148+k)}, {v(128+w)}, {v(160+4*w+k)}")
    for k in range(4): A(f"v_perm_b32 {v(148+k)}, {v(148+k)}, v8, {sTI[k]}")
    A(f"buffer_store_dwordx4 v[148:151], v11, {srd(SWS)}, {sH1W} offen {HS}")
    stamp("pub1")
    A("s_waitcnt vmcnt(1)")
    A("s_branch L_wot")
    A("L_nocomb:")
    stamp("pub1")
    if o.get("ypos") == "bar":
        A(f"s_cmp_eq_u32 {sXBf}, 0")
        A("s_cbranch_scc1 L_noYpub")
        A("v_lshrrev_b32 v10, 1, v15")
        setexec(1, 1)
        A(f"buffer_store_dwordx4 v[4:7], v10, {srd(SWS)}, {sMLW} offen {HS}")
        setexec(*FULL)
        A(f"buffer_store_dwordx4 v[16:19], v11, {srd(SWS)}, {sH1W} offen {HS}")
        A("s_waitcnt vmcnt(2)")
        A("s_branch L_wot2")
        A("L_noYpub:")
    if o.get("ml0") is not None:
        A(f"s_cmp_lg_u32 {sW}, 4")
        A("s_cbranch_scc1 L_noml0")
        if o["ml0"]: A(f"s_sleep {o['ml0']}")
        A("s_mov_b64 exec, s[12:13]")
        A(f"buffer_load_dwordx4 v[16:19], {v(vMLG)}, {srd(SWS)}, {sMLR} offen {HL}")
        setexec(*FULL)
        A("s_waitcnt vmcnt(1)")
        A("s_branch L_wot")
        A("L_noml0:")
    A("s_waitcnt vmcnt(0)")
    if o.get("ypos") == "bar":
        A("L_wot2:")
        A("v_mov_b32 v16, 0xff800000")
        A("v_mov_b32 v17, 0")
    A("L_wot:")
    stamp("wo_land")
    def wo_perm(ks):
        for e in (0, 4, 1, 5, 2, 6, 3, 7):
            for k in ks:
                A(f"v_perm_b32 {v(192+4*e+k)}, {v(96+4*(2*k+1)+(e>>1))}, {v(96+4*(2*k)+(e>>1))}, {sHI if e & 1 else sLO}")
    wo_perm(range(4 - NL // 2))
    A(f"s_mov_b32 {sCNT}, {o['spin']}")
    A(f"s_cmp_lg_u32 {sW}, 4")
    A("s_cbranch_scc1 L_mldone")
    A("s_mov_b64 exec, s[12:13]")
    if o.get("mlsleep0"): A(f"s_sleep {o['mlsleep0']}")
    if o.get("ml0") is not None: A("s_branch L_mlchk")
    A("L_mlpoll:")
    A(f"buffer_load_dwordx4 v[16:19], {v(vMLG)}, {srd(SWS)}, {sMLR} offen {HL}")
    A("L_mlchk:")
    A("s_waitcnt vmcnt(0)")
    A(f"v_cmp_ne_u32 vcc, {sT}, v18")
    A(f"v_cmp_ne_u32 s[58:59], {sT}, v19")
    A("s_or_b64 vcc, vcc, s[58:59]")
    A("s_and_b64 exec, exec, vcc")
    A("s_cbranch_scc0 L_mlall")
    A(f"s_sub_u32 {sCNT}, {sCNT}, 1")
    A("s_cbranch_scc1 L_mlall")
    if o.get("mlsleep", 2): A(f"s_sleep {o.get('mlsleep', 2)}")
    A("s_branch L_mlpoll")
    A("L_mlall:")
    setexec(*FULL)
    A("v_lshlrev_b32 v9, 3, v0")
    A(f"ds_write_b64 v9, v[16:17] offset:{L_W}")
    A("s_waitcnt lgkmcnt(0)")
    A("L_mldone:")
    A("s_barrier")
    stamp("ml_got")
    if o["odelay"]: A(f"s_sleep {o['odelay']}")
    def oload(tag):
        A(f"buffer_load_dwordx4 v[20:23], {v(vH1G)}, {srd(SWS)}, {sH1R} offen {HL}")
        A(f"s_cmp_eq_u32 {sB}, 1")
        A(f"s_cbranch_scc1 L_one{tag}")
        A(f"buffer_load_dwordx4 v[24:27], {v(vH1G)}, {srd(SWS)}, s4 offen {HL}")
        A(f"L_one{tag}:")
    A("s_mov_b64 exec, s[14:15]")
    oload("a")
    setexec(*FULL)
    if NL and o.get("lbar", 1): A("s_barrier")
    for k in range(8 - NL, 8): ldWO(k, pace=False)
    A(f"ds_read2_b64 v[16:19], {v(vWR)} offset0:{L_W//8} offset1:{L_W//8+16}") if L_W // 8 + 16 < 256 else (
        A(f"ds_read_b64 v[16:17], {v(vWR)} offset:{L_W}"), A(f"ds_read_b64 v[18:19], {v(vWR)} offset:{L_W+128}"))
    def flag2():
        A("s_cmp_lg_u32 s9, 0")
        A("s_cbranch_scc1 L_nof2")
        A(f"buffer_store_dword v8, {v(vFL)}, {srd(SWS)}, {sF2W} offen {HS}")
        A("L_nof2:")
    def allreduce16(op, x, t):
        A("s_nop 1")
        A(f"{op}_dpp {v(x)}, {v(x)}, {v(x)} row_ror:4 {DPP}")
        A("s_nop 1")
        A(f"{op}_dpp {v(x)}, {v(x)}, {v(x)} row_ror:8 {DPP}")
        butterfly(op, x, t)
    if o["f2pos"] == "ml": flag2()
    A("s_waitcnt lgkmcnt(0)")
    A("v_max_f32 v28, v16, v18")
    allreduce16("v_max_f32", 28, 29)
    A("v_sub_f32 v16, v16, v28")
    A("v_sub_f32 v18, v18, v28")
    A("v_exp_f32 v16, v16")
    A("v_exp_f32 v18, v18")
    A("v_mul_f32 v28, v16, v17")
    A("v_fmac_f32 v28, v18, v19")
    allreduce16("v_add_f32", 28, 29)
    A("v_rcp_f32 v28, v28")
    A("s_nop 0")
    A("v_mul_f32 v16, v16, v28")
    A("v_mul_f32 v18, v18, v28")
    if stamps: A(f"s_mov_b32 s62, {sCNT}")
    A(f"s_mov_b32 {sCNT}, {o['spin']}")
    A("s_mov_b64 exec, s[14:15]")
    A(f"s_waitcnt vmcnt({NL})")
    A("L_opoll:")
    tagcheck(20, 28, 29, "vcc")
    tagcheck(24, 30, 31, "s[58:59]")
    A("s_and_b64 s[58:59], s[58:59], s[16:17]")
    A("s_or_b64 vcc, vcc, s[58:59]")
    A("s_cbranch_scc0 L_odone")
    A(f"s_sub_u32 {sCNT}, {sCNT}, 1")
    A("s_cbranch_scc1 L_odone")
    if o["sleep"]: A(f"s_sleep {o['sleep']}")
    oload("b")
    A("s_waitcnt vmcnt(0)")
    A("s_branch L_opoll")
    A("L_odone:")
    setexec(*FULL)
    stamp("hop1")
    if stamps: A(f"s_mov_b32 s94, {sCNT}")
    if o["f2pos"] == "hop1": flag2()
    for k in range(4): A(f"v_mul_f32 {v(20+k)}, v16, {v(20+k)}")
    for k in range(4): A(f"v_fmac_f32 {v(20+k)}, v18, {v(24+k)}")
    A("v_permlane16_swap_b32 v20, v21")
    A("s_nop 0")
    A("v_permlane16_swap_b32 v22, v23")
    A("v_add_f32 v20, v20, v21")
    A("v_add_f32 v22, v22, v23")
    A("s_nop 1")
    A("v_permlane32_swap_b32 v20, v22")
    A("v_add_f32 v20, v20, v22")
    for m in ("row_ror:8", "row_ror:4"):
        A("s_nop 1")
        A(f"v_add_f32_dpp v20, v20, v20 {m} {DPP}")
    A("v_cvt_pk_bf16_f32 v20, v20, v20")
    setexec(0x000f000f, 0x000f000f)
    A(f"ds_write_b16 {v(vOAW)}, v20 offset:{L_OA}")
    setexec(*FULL)
    A("s_waitcnt lgkmcnt(0)")
    A("s_barrier")
    A(f"ds_read_b128 v[28:31], {v(vOAR)} offset:{L_OA}")
    if NL:
        A("s_waitcnt vmcnt(0)")
        wo_perm(range(4 - NL // 2, 4))
    if o["f2pos"] == "oabar": flag2()
    A("s_waitcnt lgkmcnt(0)")
    for e in (0, 4, 1, 5, 2, 6, 3, 7): A(f"{M32} {v(32+4*e,4)}, v[28:31], {v(192+4*e,4)}, 0")
    A("s_nop 1")
    for k in range(4):
        A(f"v_cndmask_b32 {v(24+k)}, {v(33+4*k)}, {v(49+4*k)}, s[10:11]")
        A(f"v_cndmask_b32 {v(16+k)}, {v(32+4*k)}, {v(48+4*k)}, s[10:11]")
    for k in range(4): A(f"v_add_f32_dpp {v(16+k)}, {v(24+k)}, {v(16+k)} row_ror:8 {DPP}")
    for k in range(4): A(f"v_perm_b32 {v(16+k)}, {v(16+k)}, v8, {sTI[k]}")
    setexec(0x00ff00ff, 0x00ff00ff)
    A(f"buffer_store_dwordx4 v[16:19], {v(vH2S)}, {srd(SWS)}, {sH2W} offen {HS}")
    setexec(*FULL)
    if o["f2pos"] == "pub2": flag2()
    stamp("pub2")
    A(f"s_cmp_ge_u32 {sW}, 4")
    A("s_cbranch_scc1 L_fin")
    A(f"s_mov_b32 {sCNT}, {o['spin']}")
    A("L_f2poll:")
    A(f"s_load_dword {sT1}, s[{SWS}:{SWS+1}], {sF2R} glc")
    A("s_waitcnt lgkmcnt(0)")
    A(f"s_cmp_eq_u32 {sT1}, {sT}")
    spin_tail("L_f2poll", "L_f2done", o.get("f2sleep"))
    stamp("f2_got")
    if stamps: A(f"s_mov_b32 s63, {sCNT}")
    A(f"s_mov_b32 {sCNT}, {o['spin']}")
    if o["fdelay"]: A(f"s_sleep {o['fdelay']}")
    A("L_fpoll:")
    A(f"buffer_load_dwordx4 v[20:23], v2, {srd(SWS)}, {sH2R} offen {HL}")
    A("s_waitcnt vmcnt(0)")
    tagcheck(20, 25, 26, "vcc")
    A("s_cmp_eq_u64 vcc, 0")
    spin_tail("L_fpoll", "L_fdone")
    stamp("hop2")
    if stamps: A(f"s_mov_b32 s96, {sCNT}")
    A("v_permlane16_swap_b32 v20, v21")
    A("v_permlane16_swap_b32 v22, v23")
    A("v_add_f32 v20, v20, v21")
    A("v_add_f32 v22, v22, v23")
    A("s_nop 1")
    A("v_permlane32_swap_b32 v20, v22")
    A("v_add_f32 v20, v20, v22")
    A("s_nop 1")
    A(f"v_add_f32_dpp v20, v20, v20 row_ror:8 {DPP}")
    A("s_nop 1")
    A(f"v_add_f32_dpp v20, v20, v20 row_ror:4 {DPP}")
    setexec(0x000f000f, 0x000f000f)
    A(f"ds_write_b32 {v(vFPW)}, v20 offset:{L_FP}")
    setexec(*FULL)
    A(f"s_lshl_b32 {sO}, s7, 12")
    A(f"s_lshl_b32 {sT1}, s8, 11")
    A(f"s_add_u32 {sO}, {sO}, {sT1}")
    A(f"s_lshl_b32 {sT1}, s6, 5")
    A(f"s_add_u32 {sO}, {sO}, {sT1}")
    A("v_lshlrev_b32 v9, 1, v0")
    A("s_waitcnt lgkmcnt(0)")
    A("s_barrier")
    A(f"s_cmp_lg_u32 {sW}, 0")
    A("s_cbranch_scc1 L_fin")
    setexec(0xffff, 0)
    A(f"ds_read_b128 v[16:19], v2 offset:{L_FP}")
    A("s_waitcnt lgkmcnt(0)")
    A("v_add_f32 v16, v16, v17")
    A("v_add_f32 v18, v18, v19")
    A("v_add_f32 v16, v16, v18")
    A("v_cvt_pk_bf16_f32 v16, v16, v16")
    A(f"buffer_store_short v16, v9, {srd(SOUT)}, {sO} offen {o.get('os', '')}")
    A("s_cmp_lg_u32 s2, 0")
    A("s_cbranch_scc1 L_fin")
    setexec(1, 0)
    A(f"buffer_store_dword v8, {v(vZ)}, {srd(SWS)}, 0 offen {o.get('os', '')}")
    A("L_fin:")
    if stamps and o.get("hold"):
        A("s_waitcnt lgkmcnt(0)")
        if o.get("holdx"):
            A("s_getreg_b32 s62, hwreg(HW_REG_XCC_ID, 0, 4)")
            A(f"s_lshl_b32 s62, 1, s62")
            A(f"s_and_b32 s62, s62, {o['holdx']}")
            A("s_cbranch_scc0 L_end")
        A("L_hold:")
        A("s_memrealtime s[62:63]")
        A("s_waitcnt lgkmcnt(0)")
        A("s_sub_u32 s62, s62, s60")
        A(f"s_cmp_lt_u32 s62, {o['hold']}")
        A("s_cbranch_scc1 L_hold")
        A("s_endpgm")
    if stamps:
        setexec(*FULL)
        stamp("end")
        A("s_waitcnt lgkmcnt(0)")
        A("s_getreg_b32 s98, hwreg(HW_REG_XCC_ID)")
        A("s_getreg_b32 s99, hwreg(HW_REG_HW_ID)")
        vals = ["s60"] + [f"s{62+2*k}" for k in range(1, 16)] + ["s63", "s62", "s94", "s96", "s98", "s99", "s61", "s98"]
        for k, s in enumerate(vals): A(f"v_mov_b32 {v(128+k)}, {s}")
        A(f"s_lshl_b32 {sT1}, s2, 3")
        A(f"s_add_u32 {sT1}, {sT1}, {sW}")
        A(f"s_lshl_b32 {sT1}, {sT1}, 7")
        A(f"s_add_u32 {sT1}, {sT1}, {WS_ST}")
        A("v_mov_b32 v9, 0")
        setexec(1, 0)
        if o.get("dbgout"):
            A("s_load_dwordx2 s[4:5], s[0:1], 88")
            A("s_mov_b32 s6, 256")
            A("s_mov_b32 s7, 0x20000")
            A("v_not_b32 v128, v128")
            A("s_waitcnt lgkmcnt(0)")
            A(f"s_cmp_lg_u32 {sW}, 0")
            A("s_cbranch_scc1 L_end")
            for k in range(16): A(f"buffer_atomic_umax {v(128+k)}, v9, s[4:7], 0 offen offset:{4*k}")
        else:
            for k in range(6): A(f"buffer_store_dwordx4 {v(128+4*k,4)}, v9, {srd(SWS)}, {sT1} offen offset:{16*k}")
    A("L_end:")
    A("s_endpgm")
    A('.section .rodata,"a"')
    A(".p2align 6")
    A(f".amdhsa_kernel {NAME}")
    A(".amdhsa_next_free_vgpr 256")
    A(".amdhsa_next_free_sgpr 102")
    A(".amdhsa_accum_offset 256")
    A(".amdhsa_group_segment_fixed_size 0")
    A(".amdhsa_kernarg_size 104")
    A(".amdhsa_user_sgpr_count 2")
    A(".amdhsa_user_sgpr_kernarg_segment_ptr 1")
    A(".amdhsa_system_sgpr_workgroup_id_x 1")
    A(".amdhsa_float_denorm_mode_32 3")
    A(".end_amdhsa_kernel")
    msgs = check_hazards(A.lines)
    for m in msgs: print(m, file=sys.stderr)
    return A.text()

if __name__ == "__main__":
    import json
    name = sys.argv[1]; opt = json.loads(sys.argv[2]) if len(sys.argv) > 2 else {}
    open(f"k_{name}.s", "w").write(gen(False, opt))
    open(f"k_{name}_st.s", "w").write(gen(True, opt))
```

```python
import sys, struct, math
from asmlib import Asm, check_hazards

NAME = "concat_heads__gqa_block_cached__sliding_block_cached__decode_kernel"
REF = "concat_heads__gqa_block_cached__sliding_block_cached__decode.s.ref"

WS_Q   = 0x10000
WS_ML  = 0x30000
WS_F2  = 0x40000
WS_H1  = 0x100000
WS_H2  = 0x300000
WS_ST  = 0x500000
WS_USED = 0x600000
L_QP = 0
L_QS = L_QP + 4096
L_ML = L_QS + 4096
L_F  = L_ML + 1024
L_W  = L_F + 256
L_OA = L_W + 512
L_FP = L_OA + 256
L_CNT = L_FP + 512
L_OP = 12288
assert L_CNT + 256 <= L_OP
L_END = L_OP + 65536

DEF_STN = ["start", "wq_land", "q_pub", "q_got", "q_lds", "S_done", "lastV", "bar_O", "pub1", "wo_land", "ml_got", "hop1", "pub2", "f2_got", "hop2", "end"]

DOC = """
One persistent launch, 256 workgroups x 8 waves (one workgroup per CU).  Workgroup c: b/br = c&1, kvh = (c>>1)&3, p = c>>3.
 1. q projection: 64 columns x 512 rows of wq[br] per workgroup (MFMA after an in-register 8x8 transpose); the two
    half-k partials are handed over through d_ws and added / rounded to bf16 by the readers.
 2. attention partials: every wave owns 128 keys (slot X) + 16 keys (slot Y) of (batch b, kv head kvh).  Slot Y is branch A;
    slot X is branch A for p < 28 and branch B (last 4096 keys) for p >= 28.  K, V go straight to registers in MFMA layout,
    scores -> true per-wave max -> exp2 -> P.V; waves are merged in LDS with exp2(m_wave - m_workgroup) factors.
 3. split combine + output projection: workgroup (br, kvh, jj = p>>1, ch = p&1) gathers 64 o-values of both batches from all
    splits, weighs them with exp2(m_split - m_all) / l_all, rounds to bf16 and multiplies by wo[64 rows x 512 columns].
 4. the 64 partial rows per output are added and written as bf16.
Hand-offs: write-through stores, every 16-byte granule carries this launch's 32-bit tag (low byte of each dword, or whole
dwords); the tag is derived from one word of d_ws that the previous launch left there, so stale granules never match.
Readers look at data only after a small flag line says it is due, and re-read until every tag matches (bounded spins).
The loads are issued in a window of 3-4 KiB per wave; the wave's rank at an LDS checkpoint picks the window.
"""

def f32bits(x):
    return struct.unpack("<I", struct.pack("<f", x))[0]

def gen(stamps=False, opt=None):
    o = dict(spin=400000, ld="nt", hs="sc1", hl="sc1", sleep=1, d=3, d0=3, d2=4, n2=10, gq=12, wo_before=2,
             mlpos="wr", odelay=0, f2pos="oabar", fdelay=0, skew="gp", fb=4, sflag=1, swap=1, halves=1, slow_until=60, xbboost=3, lay="cu", pack=1)
    if opt: o.update(opt)
    LD, HS, HL = o["ld"], o["hs"], o["hl"]
    A = Asm()
    hdr = [l.rstrip("\n") for l in open(REF) if l.startswith(";") and "@launch" not in l and "Override" not in l and "grid=ceil" not in l]
    for l in hdr: A(l)
    A(f"; @launch grid=(256,1,1) block=(512,1,1) lds={L_END}")
    for l in DOC.strip("\n").split("\n"): A(("; " + l).rstrip())
    STN = o.get("stn", DEF_STN)
    if stamps: A("; stamps: " + " ".join(STN))
    A('.amdgcn_target "amdgcn-amd-amdhsa--gfx950"')
    A(".text")
    A(f".globl {NAME}")
    A(".p2align 8")
    A(f".type {NAME},@function")
    A(f"{NAME}:")

    SX, SWQ, SKA, SVA, SKB, SVB, SWO, SWS, SOUT = 4, 8, 12, 16, 20, 24, 28, 32, 36
    sW, sB, sKVH, sSP, sO, sKA0, sT, sCNT = "s40", "s41", "s42", "s43", "s44", "s45", "s46", "s47"
    sLO, sHI, sXA, sXB, sC = "s48", "s49", "s50", "s51", "s52"
    sTI = ["s53", "s54", "s55", "s56"]
    sO2, sT1, sT2 = "s57", "s58", "s59"
    sR, sKB0, sG = "s3", "s100", "s101"
    sXBf, sSTEP, sWRAP = "s97", "s96", "s95"
    srd = lambda b: f"s[{b}:{b+3}]"
    def stamp(name):
        if stamps and name in STN:
            k = STN.index(name)
            A(f"s_memrealtime s[{62+2*k}:{63+2*k}]") if k > 0 else A("s_memrealtime s[60:61]")
        if stamps and o.get("cut") == name: A("s_waitcnt vmcnt(0)"); A("s_branch L_fin")
    def v(b, n=1):
        return f"v{b}" if n == 1 else f"v[{b}:{b+n-1}]"
    def setexec(lo, hi):
        if lo == hi == 0xffffffff: A("s_mov_b64 exec, -1")
        else: A(f"s_mov_b32 exec_lo, {lo:#x}"); A(f"s_mov_b32 exec_hi, {hi:#x}")
    FULL = (0xffffffff, 0xffffffff)
    DPP = "row_mask:0xf bank_mask:0xf"
    M32 = "v_mfma_f32_16x16x32_bf16"

    NL = o.get("wo_late", 0)
    assert NL % 2 == 0
    NTOT = (0 if o.get("c2") else 1) + 8 + 8 + 32 + 2 + 32 + 8 - NL
    vm = dict(n=0, done=0, tag={})
    lab = [0]
    sTHR, sTHR2 = "s99", "s98"
    def vwait(k):
        if k >= vm["done"]:
            A(f"s_waitcnt vmcnt({vm['n'] - 1 - k})")
            vm["done"] = k + 1
    def dwin(i):
        return o["d0"] if i < 9 else (o["d2"] if i >= NTOT - o["n2"] else o["d"])
    FB = o.get("fb", 0)
    def pacewait(i):
        d = dwin(i)
        if FB and 9 <= i < NTOT - o["n2"]:
            if i % FB == 0 and i >= o.get("fb0", 12):
                A("v_mov_b32 v9, 0")
                A("v_mov_b32 v10, 1")
                setexec(1, 0)
                A(f"ds_add_rtn_u32 v10, v9, v10 offset:{L_CNT+16+4*(i//FB)}")
                A("s_waitcnt lgkmcnt(0)")
                A(f"v_cmp_le_u32 vcc, {sTHR if i < o.get('slow_until', 0) else sTHR2 if o.get('odd') else o.get('thr', 4)}, v10")
                setexec(*FULL)
            dhi = o.get("dhi", d + 1)
            vwait(min(i - dhi, vm["n"] - 1))
            k = min(i - d, vm["n"] - 1)
            if k >= vm["done"]:
                lab[0] += 1
                A(f"s_cbranch_vccnz L_sk{lab[0]}")
                A(f"s_waitcnt vmcnt({vm['n'] - 1 - k})")
                A(f"L_sk{lab[0]}:")
        elif i - d >= 0:
            vwait(min(i - d, vm["n"] - 1))
    def load(txt, tag=None, pace=True):
        i = vm["n"]
        if pace: pacewait(i)
        A(txt)
        if tag: vm["tag"][tag] = i
        vm["n"] += 1
    def need(tag): vwait(vm["tag"][tag])
    def run(seq, code, boost):
        base = vm["n"]; issued = 0
        for i in range(len(seq)):
            extra = vm["n"] - base - issued
            if i < issued:
                pacewait(base + extra + i)
            else:
                seq[i](True); issued = i + 1
            while issued < min(len(seq), i + 1 + boost.get(i, 0)):
                seq[issued](False); issued += 1
            for f in code.get(i, []): f()

    def spin_tail(label, done, sl=None):
        sl = o["sleep"] if sl is None else sl
        A(f"s_cbranch_scc1 {done}")
        A(f"s_sub_u32 {sCNT}, {sCNT}, 1")
        A(f"s_cbranch_scc1 {done}")
        if sl: A(f"s_sleep {sl}")
        A(f"s_branch {label}")
        A(f"{done}:")
    def arrive(k):
        A("v_mov_b32 v9, 0")
        A("v_mov_b32 v10, 1")
        setexec(1, 0)
        A(f"ds_add_u32 v9, v10 offset:{L_CNT+4*k}")
        setexec(*FULL)
    def wait_cnt(k):
        lab[0] += 1
        l = f"L_cnt{lab[0]}"
        A("v_mov_b32 v9, 0")
        A(f"s_mov_b32 {sCNT}, {o['spin']}")
        A(f"{l}:")
        A(f"ds_read_b32 v10, v9 offset:{L_CNT+4*k}")
        A("s_waitcnt lgkmcnt(0)")
        A(f"v_readfirstlane_b32 {sT1}, v10")
        A(f"s_cmp_eq_u32 {sT1}, 8")
        spin_tail(l, l + "d", 1)
    def tagcheck(d, t0, t1, dst):
        A(f"v_perm_b32 {v(t0)}, {v(d+1)}, {v(d)}, {sXA}")
        A(f"v_perm_b32 {v(t1)}, {v(d+3)}, {v(d+2)}, {sXB}")
        A(f"v_or_b32 {v(t0)}, {v(t0)}, {v(t1)}")
        A(f"v_cmp_ne_u32 {dst}, {sT}, {v(t0)}")
    def transpose_mfma(src, acc, other, first, tmp, a_is_tile, nrows=8, order=None):
        order = order or list(range(8))
        nt = nrows // 2
        op = M32 if nrows == 8 else "v_mfma_f32_16x16x16_bf16"
        def perms(e):
            t = tmp + 4 * (order.index(e) % 4)
            for k in range(nt):
                A(f"v_perm_b32 {v(t+k)}, {v(src+4*(2*k+1)+(e>>1))}, {v(src+4*(2*k)+(e>>1))}, {sHI if e & 1 else sLO}")
        def mfma(e):
            t = v(tmp + 4 * (order.index(e) % 4), nt)
            c = "0" if first else v(acc+4*e, 4)
            a, b = (t, other) if a_is_tile else (other, t)
            A(f"{op} {v(acc+4*e,4)}, {a}, {b}, {c}")
        perms(order[0])
        for z in range(8):
            if z < 7: perms(order[z+1])
            else: A("s_nop 1")
            mfma(order[z])
    def butterfly(op, x, t):
        for sw in ("v_permlane16_swap_b32", "v_permlane32_swap_b32"):
            A(f"v_mov_b32 {v(t)}, {v(x)}")
            A("s_nop 1")
            A(f"{sw} {v(x)}, {v(t)}")
            A(f"{op} {v(x)}, {v(x)}, {v(t)}")
    def write_O(br, acc, pack=False):
        if pack:
            for e in range(4):
                for r in range(4):
                    A(f"v_mov_b32_dpp {v(acc+4*e+r)}, {v(acc+16+4*e+r)} row_ror:8 row_mask:0xf bank_mask:0xc")
                if e == 0:
                    A(f"ds_write_b128 v13, {v(acc,4)} offset:{L_OP+32768*br}")
                else:
                    A(f"v_xor_b32 {v(29+(e&1))}, {16*e}, v13")
                    A(f"ds_write_b128 {v(29+(e&1))}, {v(acc+4*e,4)} offset:{L_OP+32768*br}")
            return
        setexec(0x00ff00ff, 0x00ff00ff)
        for e in range(8):
            if e == 0:
                A(f"ds_write_b128 v28, {v(acc,4)} offset:{L_OP+32768*br}")
            else:
                A(f"v_xor_b32 {v(29+(e&1))}, {16*e}, v28")
                A(f"ds_write_b128 {v(29+(e&1))}, {v(acc+4*e,4)} offset:{L_OP+32768*br}")
        setexec(*FULL)

    stamp("start")
    A("s_cmp_ge_u32 s2, 256")
    A("s_cbranch_scc1 L_end")
    A("s_load_dwordx16 s[64:79], s[0:1], 0")
    A("s_load_dwordx8 s[80:87], s[0:1], 64")
    A("s_load_dwordx2 s[88:89], s[0:1], 96")
    A("v_lshrrev_b32 v1, 6, v0")
    A("v_and_b32 v0, 63, v0")
    A(f"v_readfirstlane_b32 {sW}, v1")
    A(f"s_and_b32 {sB}, s2, 1")
    A(f"s_bfe_u32 {sKVH}, s2, 0x20001")
    A(f"s_lshr_b32 {sSP}, s2, 3")
    A("v_lshrrev_b32 v9, 3, v0")
    A("v_and_b32 v10, 7, v0")
    A("v_lshlrev_b32 v10, 4, v10")
    c2 = o.get("c2")
    A(f"v_lshl_or_b32 v3, v9, {13 if c2 else 16}, v10")
    A("v_lshrrev_b32 v12, 4, v0")
    A("v_bfe_u32 v9, v0, 2, 1")
    A("v_and_b32 v10, 1, v0")
    A("v_lshl_or_b32 v10, v12, 1, v10")
    A(f"v_lshlrev_b32 v10, {1 if c2 else 4}, v10")
    A("v_lshl_or_b32 v11, v9, 11, v10")
    A(f"s_and_b32 {sT1}, {sSP}, 1")
    A(f"s_lshl_b32 {sT1}, {sT1}, 3")
    A(f"s_add_u32 {sT1}, {sT1}, {sW}")
    A(f"s_lshl_b32 {sO}, {sT1}, 19")
    A(f"s_lshl_b32 {sO2}, {sT1}, 7")
    A(f"s_lshl_b32 {sT1}, {sKVH}, 11")
    A(f"s_lshr_b32 {sT2}, {sSP}, 1")
    A(f"s_lshl_b32 {sT2}, {sT2}, 7")
    A(f"s_add_u32 {sO}, {sO}, {sT1}")
    A(f"s_add_u32 {sO}, {sO}, {sT2}")
    A(f"s_mov_b32 s{SX+2}, 4096")
    A(f"s_mov_b32 s{SX+3}, 0x20000")
    A(f"s_mov_b32 s{SWQ+2}, 0x800000")
    A(f"s_mov_b32 s{SWQ+3}, 0x20000")
    A("v_mov_b32 v16, 0")
    A("v_lshlrev_b32 v17, 2, v0")
    A("s_mov_b64 vcc, 0")
    A(f"s_cmp_eq_u32 {sB}, 0")
    A("s_waitcnt lgkmcnt(0)")
    A(f"s_cselect_b64 s[{SX}:{SX+1}], s[64:65], s[74:75]")
    A(f"s_cselect_b64 s[{SWQ}:{SWQ+1}], s[70:71], s[80:81]")
    A(f"s_cselect_b64 s[{SWO}:{SWO+1}], s[72:73], s[82:83]")
    il = o.get("il", False)
    def ldWQ(i, pace=True):
        load(f"buffer_load_dwordx4 {v(64+4*i,4)}, v3, {srd(SWQ)}, {sO} offen {LD}", tag=f"WQ{i}", pace=pace)
        A(f"s_add_u32 {sO}, {sO}, {65536 if c2 else 8192}")
    nfirst = 2 if il else min(8, o["d0"])
    if c2:
        for i in range(8): A(f"buffer_load_ushort {v(20+i)}, v11, {srd(SX)}, {sO2} offen offset:{16*i}")
    for i in range(nfirst): ldWQ(i)
    if o.get("wsoff"):
        A(f"s_add_u32 s88, s88, {o['wsoff']:#x}")
        A("s_addc_u32 s89, s89, 0")
    A(f"s_load_dword {sT}, s[88:89], 0")
    A(f"ds_write_b32 v17, v16 offset:{L_CNT}")
    if o.get("odd"):
        A(f"s_getreg_b32 {sT1}, hwreg(HW_REG_XCC_ID, 0, 1)")
        A(f"s_mul_i32 {sT1}, {sT1}, {o['odd']}")
        A(f"s_sub_u32 {sTHR2}, {o.get('thr', 4)}, {sT1}")
    if o.get("slow_until"):
        A(f"s_lshr_b32 {sT1}, s{SWQ}, 7")
        A(f"s_lshr_b32 {sT2}, {sSP}, 1")
        A(f"s_add_u32 {sT1}, {sT1}, {sT2}")
        A(f"s_and_b32 {sT1}, {sT1}, 7")
        A(f"s_cmp_eq_u32 {sT1}, 3")
        A(f"s_cselect_b32 {sTHR}, 0, {sTHR2 if o.get('odd') else o.get('thr', 4)}")
    A(f"s_cmp_ge_u32 {sSP}, 28")
    A(f"s_cselect_b32 {sXBf}, 1, 0")
    A(f"s_cselect_b32 {sSTEP}, 32, 224")
    A(f"s_cselect_b64 s[{SKA}:{SKA+1}], s[76:77], s[66:67]")
    A(f"s_cselect_b64 s[{SVA}:{SVA+1}], s[78:79], s[68:69]")
    if o.get("xbboost"): A(f"s_cselect_b32 {sTHR}, {o['xbboost'] - 1}, {sTHR}")
    A(f"s_lshl_b32 {sSTEP}, {sSTEP}, 12")
    A(f"s_lshl_b32 {sWRAP}, {sSTEP}, 3")
    for b in (SKA, SVA):
        A(f"s_mov_b32 s{b+2}, 0x4000000")
        A(f"s_mov_b32 s{b+3}, 0x20000")
    for b, p, n in ((SKB, 66, 0x4000000), (SVB, 68, 0x4000000), (SWS, 88, WS_USED), (SOUT, 84, 8192)):
        A(f"s_mov_b64 s[{b}:{b+1}], s[{p}:{p+1}]")
        A(f"s_mov_b32 s{b+2}, {n:#x}")
        A(f"s_mov_b32 s{b+3}, 0x20000")
    A(f"s_mov_b32 s{SWO+2}, 0x800000")
    A(f"s_mov_b32 s{SWO+3}, 0x20000")
    A("v_lshlrev_b32 v2, 4, v0")
    A("v_bfe_u32 v9, v0, 1, 1")
    A("v_lshlrev_b32 v1, 4, v12")
    A("v_lshl_or_b32 v1, v9, 10, v1")
    A("v_bfe_u32 v9, v0, 2, 2")
    A("v_lshl_or_b32 v1, v9, 8, v1")
    A("v_and_b32 v9, 1, v0")
    A("v_lshl_or_b32 v1, v9, 6, v1")
    A(f"s_lshl_b32 {sG}, {sB}, 2")
    A(f"s_add_u32 {sG}, {sG}, {sKVH}")
    A(f"s_lshl_b32 {sT1}, {sG}, 23")
    A(f"s_lshl_b32 {sT2}, {sSP}, 3")
    A(f"s_add_u32 {sT2}, {sT2}, {sW}")
    A(f"s_lshl_b32 {sT2}, {sT2}, 12")
    A(f"s_add_u32 {sKA0}, {sT1}, {sT2}")
    A(f"s_add_u32 {sKB0}, {sKA0}, {28672*256}")
    if o.get("lay") == "blk":
        A(f"s_lshl_b32 {sT2}, {sT2}, 3")
        A(f"s_add_u32 {sKA0}, {sT1}, {sT2}")
        A(f"s_mov_b32 {sSTEP}, 4096")
        A(f"s_mov_b32 {sWRAP}, 32768")
        A(f"s_mul_i32 {sT1}, {sXBf}, {28672*256 - 224*32768}")
    elif o.get("lay") == "cu":
        A(f"s_lshl_b32 {sT2}, {sSP}, 18")
        A(f"s_add_u32 {sKA0}, {sT1}, {sT2}")
        if not o.get("wrot"):
            A(f"s_lshl_b32 {sT2}, {sW}, 12")
            A(f"s_add_u32 {sKA0}, {sKA0}, {sT2}")
        A(f"s_mov_b32 {sSTEP}, 32768")
        A(f"s_mov_b32 {sWRAP}, 262144")
        A(f"s_mul_i32 {sT1}, {sXBf}, {28672*256 - 224*32768}")
    else:
        A(f"s_mul_i32 {sT1}, {sXBf}, {28672*256 - 224*4096}")
    A(f"s_add_u32 {sKA0}, {sKA0}, {sT1}")
    A(f"s_mov_b32 {sLO}, 0x05040100")
    A(f"s_mov_b32 {sHI}, 0x07060302")
    A(f"s_mov_b32 {sXA}, 0x0c0c0400")
    A(f"s_mov_b32 {sXB}, 0x04000c0c")
    A(f"s_mov_b32 {sC}, {f32bits(128**-0.5 * math.log2(math.e)):#x}")
    for k in range(4): A(f"s_mov_b32 {sTI[k]}, {0x07060500+k:#x}")
    A("s_waitcnt lgkmcnt(0)")
    A("s_barrier")
    KOFF = [0, 128, 2048, 2176]
    def ldB(i, pace=True):
        if i < 4: load(f"buffer_load_dwordx4 {v(96+4*i,4)}, v1, {srd(SKB)}, {sKB0} offen offset:{KOFF[i]} {LD}", tag=f"B{i}", pace=pace)
        else: load(f"buffer_load_dwordx4 {v(96+4*i,4)}, v2, {srd(SVB)}, {sKB0} offen offset:{1024*(i-4)} {LD}", tag=f"B{i}", pace=pace)
    nB = 0
    for i in range(nfirst, 8):
        if il and nB < 5: ldB(nB); nB += 1
        ldWQ(i)
    if not c2: load(f"buffer_load_dwordx4 v[4:7], v11, {srd(SX)}, {sO2} offen", tag="wq", pace=False)
    else: vm["tag"]["wq"] = vm["n"] - 1
    A(f"s_mul_i32 {sT}, {sT}, 0x9e3779b1")
    A(f"s_add_u32 {sT}, {sT}, 0x7f4a7c15")
    A(f"v_mov_b32 v8, {sT}")

    def blk_start():
        if o["skew"] == "w": A(f"s_mul_i32 {sR}, {sW}, {sSTEP}")
        elif o["skew"] == "p":
            A(f"s_and_b32 {sR}, {sSP}, 7"); A(f"s_mul_i32 {sR}, {sR}, {sSTEP}")
        elif o["skew"] == "gp":
            A(f"s_add_u32 {sR}, {sSP}, {sG}"); A(f"s_and_b32 {sR}, {sR}, 7"); A(f"s_mul_i32 {sR}, {sR}, {sSTEP}")
        elif o["skew"] == "gw":
            A(f"s_add_u32 {sR}, {sW}, {sG}"); A(f"s_and_b32 {sR}, {sR}, 7"); A(f"s_mul_i32 {sR}, {sR}, {sSTEP}")
        elif o["skew"]: A(f"s_mul_i32 {sR}, {sG}, {sSTEP}")
        else: A(f"s_mov_b32 {sR}, 0")
        A(f"s_add_u32 {sO}, {sKA0}, {sR}")
        if o.get("wrot"):
            A(f"s_lshl_b32 s94, {sW}, 12")
            A(f"s_add_u32 {sO}, {sO}, s94")
    def blk_step():
        A(f"s_add_u32 {sR}, {sR}, {sSTEP}")
        A(f"s_cmp_eq_u32 {sR}, {sWRAP}")
        A(f"s_cselect_b32 {sR}, 0, {sR}")
        A(f"s_add_u32 {sO}, {sKA0}, {sR}")
        if o.get("wrot"):
            A(f"s_add_u32 s94, s94, {4096*o['wrot']}")
            A("s_and_b32 s94, s94, 0x7fff")
            A(f"s_add_u32 {sO}, {sO}, s94")
    def ldK(i, pace=True):
        if i == 0: blk_start()
        elif i % 4 == 0: blk_step()
        load(f"buffer_load_dwordx4 {v(128+4*i,4)}, v1, {srd(SKA)}, {sO} offen offset:{KOFF[i%4]} {LD}", tag=f"K{i}", pace=pace)
    def ldV(i, pace=True):
        if i == 0: blk_start()
        elif i % 4 == 0: blk_step()
        load(f"buffer_load_dwordx4 {v(128+4*i,4)}, v2, {srd(SVA)}, {sO} offen offset:{1024*(i%4)} {LD}", tag=f"V{i}", pace=pace)
    sWO = "s100"
    def ldWO(i, pace=True):
        load(f"buffer_load_dwordx4 {v(96+4*i,4)}, v3, {srd(SWO)}, {sWO} offen {LD}", tag=f"WO{i}", pace=pace)
        if i < 7: A(f"s_add_u32 {sWO}, {sWO}, 16384")

    A("; ---- q projection ----")
    for i in range(3):
        vwait(vm["tag"]["wq"] - 3 + i)
        ldB(nB, pace=False); nB += 1
    need("wq")
    stamp("wq_land")
    if c2:
        for k in range(4): A(f"v_perm_b32 {v(4+k)}, {v(21+2*k)}, {v(20+2*k)}, {sLO}")
    transpose_mfma(64, 32, "v[4:7]", True, 32 if False else 224, False)
    kpre = 0
    def more():
        nonlocal nB, kpre
        if nB < 8: ldB(nB); nB += 1
        else: ldK(kpre); kpre += 1
    more()
    A("v_and_b32 v9, 15, v0")
    A("v_lshlrev_b32 v9, 5, v9")
    A("v_lshl_or_b32 v9, v12, 8, v9")
    A(f"s_lshl_b32 {sT1}, {sW}, 9")
    A(f"v_add_u32 v13, {sT1}, v9")
    for e in range(8):
        if e == 7: A("s_nop 0")
        A(f"v_add_f32_dpp {v(64+e)}, {v(33+4*e)}, {v(32+4*e)} row_ror:8 {DPP}")
    setexec(0x00ff00ff, 0)
    A(f"ds_write_b128 v13, v[64:67] offset:{L_QP}")
    A(f"ds_write_b128 v13, v[68:71] offset:{L_QP+16}")
    setexec(*FULL)
    arrive(0)
    more()
    A(f"s_cmp_lg_u32 {sW}, 0")
    A("s_cbranch_scc1 L_noqpub")
    A("v_and_b32 v13, 15, v0")
    A("v_lshlrev_b32 v13, 4, v13")
    A("v_lshl_or_b32 v13, v12, 13, v13")
    A(f"s_lshl_b32 {sO2}, {sG}, 14")
    A(f"s_and_b32 {sT2}, {sSP}, 1")
    A(f"s_lshl_b32 {sT2}, {sT2}, 12")
    A(f"s_add_u32 {sO2}, {sO2}, {sT2}")
    A(f"s_lshr_b32 {sT2}, {sSP}, 1")
    A(f"s_lshl_b32 {sT2}, {sT2}, 8")
    A(f"s_add_u32 {sO2}, {sO2}, {sT2}")
    A(f"s_add_u32 {sO2}, {sO2}, {WS_Q}")
    wait_cnt(0)
    for w in range(8): A(f"ds_read_b128 {v(32+4*w,4)}, v2 offset:{L_QP+512*w}")
    for w in range(1, 8):
        A(f"s_waitcnt lgkmcnt({7-w})")
        for k in range(4): A(f"v_add_f32 {v(32+k)}, {v(32+k)}, {v(32+4*w+k)}")
    for k in range(4): A(f"v_perm_b32 {v(32+k)}, {v(32+k)}, v8, {sTI[k]}")
    setexec(0xffffffff, 0)
    A(f"buffer_store_dwordx4 v[32:35], v13, {srd(SWS)}, {sO2} offen {HS}")
    setexec(*FULL)
    stamp("q_pub")
    if o.get("qpre"):
        save = (dict(vm, tag=dict(vm["tag"])), nB)
        while nB < 8: ldB(nB, pace=False); nB += 1
        A("s_branch L_qpubdone")
        vm.update(save[0]); nB = save[1]
    A("L_noqpub:")
    d0 = vm["done"]
    while nB < 8: more()
    if o.get("qpre"):
        A("L_qpubdone:")
        vm["done"] = d0

    gq = o["gq"]
    def q_issue():
        A(f"s_lshl_b32 {sT1}, {sKVH}, 1")
        A(f"s_add_u32 {sT1}, {sT1}, {sB}")
        A(f"s_lshl_b32 {sT1}, {sT1}, 13")
        A(f"s_lshr_b32 {sT2}, {sW}, 2")
        A(f"s_lshl_b32 {sT2}, {sT2}, 16")
        A(f"s_add_u32 {sT1}, {sT1}, {sT2}")
        A(f"s_and_b32 {sT2}, {sW}, 3")
        A(f"s_lshl_b32 {sT2}, {sT2}, 10")
        A(f"s_add_u32 {sT1}, {sT1}, {sT2}")
        A(f"s_add_u32 s4, {sT1}, {WS_Q}")
        A(f"s_add_u32 s5, s4, 4096")
        load(f"buffer_load_dwordx4 v[16:19], v2, {srd(SWS)}, s4 offen {HL}", pace=False)
        load(f"buffer_load_dwordx4 v[20:23], v2, {srd(SWS)}, s5 offen {HL}", tag="Q", pace=False)
    def q_check():
        need("Q")
        A(f"s_mov_b32 {sCNT}, {o['spin']}")
        A("L_qpoll:")
        tagcheck(16, 9, 10, "s[6:7]")
        tagcheck(20, 9, 10, "s[58:59]")
        A("s_or_b64 s[6:7], s[6:7], s[58:59]")
        A("s_cmp_eq_u64 s[6:7], 0")
        A("s_cbranch_scc1 L_qdone")
        A(f"s_sub_u32 {sCNT}, {sCNT}, 1")
        A("s_cbranch_scc1 L_qdone")
        A("s_sleep 8")
        A(f"buffer_load_dwordx4 v[16:19], v2, {srd(SWS)}, s4 offen {HL}")
        A(f"buffer_load_dwordx4 v[20:23], v2, {srd(SWS)}, s5 offen {HL}")
        A("s_waitcnt vmcnt(0)")
        A("s_branch L_qpoll")
        A("L_qdone:")
        if stamps: A(f"s_mov_b32 s61, {sCNT}")
        stamp("q_got")
        for k in range(4): A(f"v_add_f32 {v(16+k)}, {v(16+k)}, {v(20+k)}")
        A(f"s_lshl_b32 {sT1}, {sW}, 9")
        A("v_lshlrev_b32 v13, 3, v0")
        A(f"v_add_u32 v13, {sT1}, v13")
        A("v_cvt_pk_bf16_f32 v16, v16, v17")
        A("v_cvt_pk_bf16_f32 v17, v18, v19")
        A(f"ds_write_b64 v13, v[16:17] offset:{L_QS}")
        arrive(1)
    def q_read():
        A("v_and_b32 v13, 7, v0")
        A("v_lshlrev_b32 v28, 4, v13")
        A("v_lshl_or_b32 v28, v13, 9, v28")
        A("v_lshl_or_b32 v28, v12, 7, v28")
        A(f"s_lshl_b32 {sT1}, {sW}, 12")
        A(f"v_add_u32 v28, {sT1}, v28")
        A("v_lshlrev_b32 v13, 8, v13")
        A("v_lshl_or_b32 v13, v12, 4, v13")
        A("v_bfe_u32 v14, v0, 3, 1")
        A("v_lshl_or_b32 v13, v14, 6, v13")
        A(f"s_lshl_b32 {sT1}, {sXBf}, 11")
        A(f"v_add_u32 v14, {sT1}, v13")
        wait_cnt(1)
        stamp("q_lds")
        A(f"ds_read_b128 v[56:59], v13 offset:{L_QS}")
        A(f"ds_read_b128 v[60:63], v13 offset:{L_QS+128}")
        A(f"ds_read_b128 v[48:51], v14 offset:{L_QS}")
        A(f"ds_read_b128 v[52:55], v14 offset:{L_QS+128}")
    def qk_B():
        need("B7")
        A("s_waitcnt lgkmcnt(2)")
        for g in range(2): A(f"{M32} {v(32+4*g,4)}, {v(96+8*g,4)}, v[56:59], 0")
        for g in range(2): A(f"{M32} {v(32+4*g,4)}, {v(100+8*g,4)}, v[60:63], {v(32+4*g,4)}")
        A(f"s_lshl_b32 {sT1}, {sW}, 2")
        A("v_lshlrev_b32 v31, 5, v0")
        A(f"v_add_u32 v31, {sT1}, v31")
        A("s_nop 4")
        for g in range(2):
            for a in range(2):
                A(f"v_add_f32_dpp {v(16+2*g+a)}, {v(32+4*g+2*a+1)}, {v(32+4*g+2*a)} row_ror:8 {DPP}")
    def qk(t):
        kb = 128 + 32*t
        need(f"K{8*t+7}")
        if t == 0: A("s_waitcnt lgkmcnt(0)")
        for g in range(4): A(f"{M32} {v(32+4*g,4)}, {v(kb+8*g,4)}, v[48:51], 0")
        for g in range(4): A(f"{M32} {v(32+4*g,4)}, {v(kb+8*g+4,4)}, v[52:55], {v(32+4*g,4)}")
        A("s_nop 4")
        for g in range(4):
            for a in range(2):
                if g == 3 and a == 0: A("s_nop 0")
                A(f"v_add_f32_dpp {v(64+8*t+2*g+a)}, {v(32+4*g+2*a+1)}, {v(32+4*g+2*a)} row_ror:8 {DPP}")
    kcode = {gq: [q_issue], gq+4: [q_check], gq+8: [q_read], gq+9: [qk_B], gq+10: [lambda: qk(0)], gq+11: [lambda: qk(1)]}
    kcode.setdefault(max(gq+12, 28), []).append(lambda: qk(2))
    assert max(kcode) <= 31
    bk = o.get("bk", 0)
    kboost = {i: bk for i in range(gq+6, gq+14)}
    run([(lambda pace, i=i: ldK(i, pace)) for i in range(kpre, 32)], {i - kpre: f for i, f in kcode.items()}, {i - kpre: f for i, f in kboost.items()})

    def sm_max():
        A("v_max3_f32 v22, v64, v65, v66")
        A("v_max3_f32 v26, v67, v68, v69")
        left = list(range(70, 96)); k = 0
        while left:
            dst = 22 if k % 2 == 0 else 26
            a, b = left.pop(0), left.pop(0)
            A(f"v_max3_f32 {v(dst)}, {v(dst)}, {v(a)}, {v(b)}")
            k += 1
        A("v_max3_f32 v23, v16, v17, v18")
        A("v_max_f32 v22, v22, v26")
        A("v_max_f32 v23, v23, v19")
        A(f"s_cmp_eq_u32 {sXBf}, 1")
        A("s_cbranch_scc1 L_twomax")
        A("v_max_f32 v22, v22, v23")
        butterfly("v_max_f32", 22, 26)
        A("v_mov_b32 v23, v22")
        A("s_branch L_onemax")
        A("L_twomax:")
        butterfly("v_max_f32", 22, 26)
        butterfly("v_max_f32", 23, 26)
        A("L_onemax:")
        A(f"v_mul_f32 v22, {sC}, v22")
        A(f"v_mul_f32 v23, {sC}, v23")
        stamp("S_done")
    def sm_Y():
        for i in range(4): A(f"v_fma_f32 {v(16+i)}, {v(16+i)}, {sC}, -v23")
        for i in range(4): A(f"v_exp_f32 {v(16+i)}, {v(16+i)}")
        A("v_add_f32 v25, v16, v17")
        A("v_add_f32 v27, v18, v19")
        A("v_cvt_pk_bf16_f32 v20, v16, v17")
        A("v_cvt_pk_bf16_f32 v21, v18, v19")
        A("v_add_f32 v25, v25, v27")
    def sm_exp(t):
        b = 64 + 8*t
        for i in range(8): A(f"v_fma_f32 {v(b+i)}, {v(b+i)}, {sC}, -v22")
        for i in range(8): A(f"v_exp_f32 {v(b+i)}, {v(b+i)}")
        if t == 0:
            A(f"v_add_f32 v24, {v(b)}, {v(b+1)}")
            A(f"v_add_f32 v26, {v(b+2)}, {v(b+3)}")
            r = range(4, 8, 2)
        else:
            r = range(0, 8, 2)
        for i in r:
            A(f"v_add_f32 v24, v24, {v(b+i)}")
            A(f"v_add_f32 v26, v26, {v(b+i+1)}")
        for k in range(4): A(f"v_cvt_pk_bf16_f32 {v(64+4*t+k)}, {v(b+2*k)}, {v(b+2*k+1)}")
    def sm_sum():
        A("v_add_f32 v24, v24, v26")
        A(f"s_cmp_eq_u32 {sXBf}, 1")
        A("s_cbranch_scc1 L_twosum")
        A("v_add_f32 v24, v24, v25")
        A("s_branch L_onesum")
        A("L_twosum:")
        butterfly("v_add_f32", 25, 26)
        setexec(0xff, 0)
        A(f"ds_write_b32 v31, v23 offset:{L_ML+512}")
        A(f"ds_write_b32 v31, v25 offset:{L_ML+768}")
        setexec(*FULL)
        A("L_onesum:")
        butterfly("v_add_f32", 24, 26)
        setexec(0xff, 0)
        A(f"ds_write_b32 v31, v22 offset:{L_ML}")
        A(f"ds_write_b32 v31, v24 offset:{L_ML+256}")
        setexec(*FULL)
    def pv_Y():
        transpose_mfma(112, 32, "v[20:21]", True, 80, True, nrows=4)
    def wr_Y():
        A(f"s_cmp_eq_u32 {sXBf}, 0")
        A("s_cbranch_scc1 L_noYw")
        A("s_nop 3")
        write_O(1, 32)
        A("L_noYw:")
        arrive(2)
    sH1W, sMLW, sH1R, sMLR, sH2W, sH2R, sF2W, sF2R = "s20", "s21", "s22", "s23", "s24", "s25", "s26", "s27"
    def addr2():
        A(f"s_and_b32 {sT1}, {sW}, 3")
        A(f"s_lshl_b32 {sT1}, {sT1}, 6")
        A(f"v_add_u32 v9, {sT1}, v0")
        A("v_lshrrev_b32 v10, 5, v9")
        A("v_lshrrev_b32 v11, 3, v9")
        A("v_and_b32 v13, 7, v0")
        A("v_xor_b32 v14, v13, v10")
        A("v_lshlrev_b32 v14, 4, v14")
        A("v_lshl_or_b32 v14, v11, 7, v14")
        A("v_lshlrev_b32 v15, 5, v10")
        A("v_and_b32 v13, 15, v0")
        A("v_lshlrev_b32 v13, 4, v13")
        A("v_lshrrev_b32 v11, 4, v9")
        A("v_lshl_or_b32 v11, v11, 14, v13")
        A(f"s_cmp_lt_u32 {sW}, 4")
        A(f"s_cselect_b32 {sO2}, {sXBf}, 0")
        A(f"s_lshl_b32 {sT2}, {sO2}, 2")
        A(f"s_add_u32 {sT2}, {sT2}, {sKVH}")
        A(f"s_mul_i32 {sO2}, {sO2}, 28")
        A(f"s_lshl_b32 {sT1}, {sB}, 5")
        A(f"s_add_u32 {sT1}, {sT1}, {sSP}")
        A(f"s_sub_u32 {sT1}, {sT1}, {sO2}")
        A(f"s_lshl_b32 {sH1W}, {sT2}, 18")
        A(f"s_lshl_b32 {sO2}, {sT1}, 8")
        A(f"s_add_u32 {sH1W}, {sH1W}, {sO2}")
        A(f"s_add_u32 {sH1W}, {sH1W}, {WS_H1}")
        A(f"s_lshl_b32 {sMLW}, {sT2}, 13")
        A(f"s_lshl_b32 {sO2}, {sT1}, 7")
        A(f"s_add_u32 {sMLW}, {sMLW}, {sO2}")
        A(f"s_add_u32 {sMLW}, {sMLW}, {WS_ML}")
        A("v_and_b32 v3, 7, v0")
        A("v_lshlrev_b32 v3, 4, v3")
        A("v_lshrrev_b32 v13, 3, v0")
        A("v_lshl_or_b32 v3, v13, 11, v3")
        A(f"s_lshl_b32 {sT1}, {sKVH}, 4")
        A(f"s_lshr_b32 {sT2}, {sSP}, 1")
        A(f"s_add_u32 {sT1}, {sT1}, {sT2}")
        A(f"s_lshl_b32 {sWO}, {sT1}, 17")
        A(f"s_and_b32 {sT2}, {sSP}, 1")
        A(f"s_lshl_b32 {sT2}, {sT2}, 3")
        A(f"s_add_u32 {sT2}, {sT2}, {sW}")
        A(f"s_lshl_b32 {sT2}, {sT2}, 7")
        A(f"s_add_u32 {sWO}, {sWO}, {sT2}")
    def dutyB(R, P, done):
        A(f"s_cmp_lt_u32 {sW}, 4")
        A(f"s_cbranch_scc1 {done}")
        A(f"s_cmp_eq_u32 {sXBf}, 0")
        A(f"s_cbranch_scc1 L_dutydone")
        wait_cnt(2)
        A(f"ds_read_b128 {v(R,4)}, v15 offset:{L_ML+512}")
        A(f"ds_read_b128 {v(R+4,4)}, v15 offset:{L_ML+512+16}")
        A("v_add_u32 v13, 32768, v14")
        for w in range(8): A(f"ds_read_b128 {v(P+4*w,4)}, v13 offset:{L_OP+4096*w}")
        A(f"ds_read_b128 {v(R+8,4)}, v15 offset:{L_ML+768}")
        A(f"ds_read_b128 {v(R+12,4)}, v15 offset:{L_ML+768+16}")
        A("s_waitcnt lgkmcnt(10)")
        A(f"v_max3_f32 {v(R+16)}, {v(R)}, {v(R+1)}, {v(R+2)}")
        A(f"v_max3_f32 {v(R+17)}, {v(R+3)}, {v(R+4)}, {v(R+5)}")
        A(f"v_max3_f32 {v(R+16)}, {v(R+16)}, {v(R+6)}, {v(R+7)}")
        A(f"v_max_f32 {v(R+16)}, {v(R+16)}, {v(R+17)}")
        for w in range(8): A(f"v_sub_f32 {v(R+w)}, {v(R+w)}, {v(R+16)}")
        for w in range(8): A(f"v_exp_f32 {v(R+w)}, {v(R+w)}")
        A("s_waitcnt lgkmcnt(0)")
        for k in range(4): A(f"v_mul_f32 {v(R+20+k)}, {v(R)}, {v(P+k)}")
        for w in range(1, 8):
            for k in range(4): A(f"v_fmac_f32 {v(R+20+k)}, {v(R+w)}, {v(P+4*w+k)}")
        for k in range(4): A(f"v_perm_b32 {v(R+20+k)}, {v(R+20+k)}, v8, {sTI[k]}")
        A(f"v_mul_f32 {v(R+17)}, {v(R)}, {v(R+8)}")
        for w in range(1, 8): A(f"v_fmac_f32 {v(R+17)}, {v(R+w)}, {v(R+8+w)}")
        A(f"v_mov_b32 {v(R+18)}, v8")
        A(f"v_mov_b32 {v(R+19)}, v8")
    def pubB(R):
        if o.get("noB"): return
        A(f"buffer_store_dwordx4 {v(R+20,4)}, v11, {srd(SWS)}, {sH1W} offen {HS}")
        A("v_lshrrev_b32 v10, 1, v15")
        setexec(1, 1)
        A(f"buffer_store_dwordx4 {v(R+16,4)}, v10, {srd(SWS)}, {sMLW} offen {HS}")
        setexec(*FULL)
    def duties():
        if o.get("bpos", "mid") == "mid":
            dutyB(32, 96, "L_notB")
            if o.get("ypos") == "bar":
                for k in range(4): A(f"v_mov_b32 {v(4+k)}, {v(48+k)}")
                for k in range(4): A(f"v_mov_b32 {v(16+k)}, {v(52+k)}")
            else:
                pubB(32)
            A("s_branch L_dutydone")
        A("L_notB:")
        A(f"s_cmp_lg_u32 {sW}, 1")
        A("s_cbranch_scc1 L_dutydone")
        wait_cnt(2)
        A("v_lshlrev_b32 v10, 5, v0")
        setexec(0xff, 0)
        A(f"ds_read_b128 v[96:99], v10 offset:{L_ML}")
        A(f"ds_read_b128 v[100:103], v10 offset:{L_ML+16}")
        A(f"ds_read_b128 v[104:107], v10 offset:{L_ML+256}")
        A(f"ds_read_b128 v[108:111], v10 offset:{L_ML+256+16}")
        A("s_waitcnt lgkmcnt(2)")
        A("v_max3_f32 v4, v96, v97, v98")
        A("v_max3_f32 v5, v99, v100, v101")
        A("v_max3_f32 v4, v4, v102, v103")
        A("v_max_f32 v4, v4, v5")
        for w in range(8): A(f"v_sub_f32 {v(96+w)}, {v(96+w)}, v4")
        for w in range(8): A(f"v_exp_f32 {v(96+w)}, {v(96+w)}")
        A("v_mov_b32 v6, v8")
        A("v_mov_b32 v7, v8")
        A(f"ds_write_b128 v10, v[96:99] offset:{L_F}")
        A(f"ds_write_b128 v10, v[100:103] offset:{L_F+16}")
        A("s_waitcnt lgkmcnt(2)")
        A("v_mul_f32 v5, v96, v104")
        for w in range(1, 8): A(f"v_fmac_f32 v5, {v(96+w)}, {v(104+w)}")
        setexec(*FULL)
        A("L_dutydone:")
    def pv(t):
        need(f"V{8*t+7}")
        if t == 0:
            A(f"s_cmp_eq_u32 {sXBf}, 1")
            A("s_cbranch_scc1 L_pv0new")
            transpose_mfma(128, 32, v(64, 4), False, 80, True)
            A("s_branch L_pv0done")
            A("L_pv0new:")
            transpose_mfma(128, 32, v(64, 4), True, 80, True)
            A("L_pv0done:")
        else:
            transpose_mfma(128+32*t, 32, v(64+4*t, 4), False, 80, True)
    def pv_half(hf):
        need(f"V{24+4*hf+3}")
        transpose_mfma(224+16*hf, 32, v(76+2*hf, 2), False, 80, True, nrows=4, order=[0, 4, 1, 5, 2, 6, 3, 7] if o.get("pack") else None)
    def addr3():
        A(f"s_lshl_b32 {sH1R}, {sG}, 4")
        A(f"s_lshr_b32 {sT2}, {sSP}, 1")
        A(f"s_add_u32 {sH1R}, {sH1R}, {sT2}")
        A(f"s_lshl_b32 {sH1R}, {sH1R}, 14")
        A(f"s_lshr_b32 {sT1}, {sW}, 2")
        A(f"s_lshl_b32 {sT1}, {sT1}, 13")
        A(f"s_add_u32 {sH1R}, {sH1R}, {sT1}")
        A(f"s_and_b32 {sO2}, {sW}, 3")
        A(f"s_lshl_b32 {sO2}, {sO2}, 6")
        A(f"s_add_u32 {sH1R}, {sH1R}, {sO2}")
        A(f"s_add_u32 {sH1R}, {sH1R}, {WS_H1}")
        A(f"s_add_u32 s4, {sH1R}, 4096")
        A(f"s_lshl_b32 {sMLR}, {sG}, 13")
        A(f"s_lshr_b32 {sO2}, {sSP}, 2")
        A(f"s_lshl_b32 {sO2}, {sO2}, 4")
        A(f"s_add_u32 {sMLR}, {sMLR}, {sO2}")
        A(f"s_add_u32 {sMLR}, {sMLR}, {WS_ML}")
        A(f"s_lshl_b32 {sT1}, {sKVH}, 4")
        A(f"s_add_u32 {sT1}, {sT1}, {sT2}")
        A(f"s_lshl_b32 {sT1}, {sT1}, 6")
        A(f"s_lshl_b32 {sH2W}, {sB}, 19")
        A(f"s_add_u32 {sH2W}, {sH2W}, {sT1}")
        A(f"s_and_b32 {sT2}, {sSP}, 1")
        A(f"s_lshl_b32 {sT2}, {sT2}, 3")
        A(f"s_add_u32 {sT2}, {sT2}, {sW}")
        A(f"s_lshl_b32 {sT2}, {sT2}, 14")
        A(f"s_add_u32 {sH2W}, {sH2W}, {sT2}")
        A(f"s_add_u32 {sH2W}, {sH2W}, {WS_H2}")
        A(f"s_xor_b32 {sT1}, {sB}, {1 if o.get('swap') else 0}")
        A(f"s_lshl_b32 {sT1}, {sT1}, 9")
        A(f"s_lshl_b32 {sF2W}, {sW}, 16")
        A(f"s_add_u32 {sF2W}, {sF2W}, {sT1}")
        A(f"s_lshl_b32 {sT2}, {sKVH}, 7")
        A(f"s_add_u32 {sF2W}, {sF2W}, {sT2}")
        A(f"s_add_u32 {sF2W}, {sF2W}, {WS_F2}")
        A(f"s_lshl_b32 {sF2R}, s2, 9")
        A(f"s_and_b32 {sT2}, {sW}, 3")
        A(f"s_lshl_b32 {sT2}, {sT2}, 7")
        A(f"s_add_u32 {sF2R}, {sF2R}, {sT2}")
        A(f"s_add_u32 {sF2R}, {sF2R}, {WS_F2}")
        A(f"s_cmp_eq_u32 {sB}, 0")
        A("s_cselect_b32 s12, -1, 0xf")
        A("s_cselect_b32 s13, -1, 0xf")
        A("s_cselect_b32 s14, -1, 0xffff")
        A("s_cselect_b32 s15, -1, 0")
        A("s_bfe_u32 s7, s2, 0x10001")
        A("s_lshr_b32 s6, s2, 2")
        A(f"s_xor_b32 s8, {sB}, {1 if o.get('swap') else 0}")
        A(f"s_lshl_b32 {sT1}, s8, 1")
        A(f"s_add_u32 {sT1}, {sT1}, s7")
        A(f"s_lshl_b32 {sT1}, {sT1}, 6")
        A(f"s_add_u32 {sT1}, {sT1}, s6")
        A(f"s_lshl_b32 {sH2R}, {sT1}, 12")
        A(f"s_and_b32 {sT1}, {sW}, 3")
        A(f"s_lshl_b32 {sT1}, {sT1}, 10")
        A(f"s_add_u32 {sH2R}, {sH2R}, {sT1}")
        A(f"s_add_u32 {sH2R}, {sH2R}, {WS_H2}")
        A("s_mov_b32 s10, 0")
        A("s_mov_b32 s11, -1")
        A(f"s_lshr_b32 {sT1}, {sW}, 1")
        A(f"s_or_b32 s9, {sSP}, {sT1}")
    vMLG, vH1G, vOAW, vOAR, vH2S, vFPW, vZ, vFL, vWR = 64, 65, 66, 67, 68, 69, 70, 71, 72
    def addr4():
        A("v_lshrrev_b32 v9, 2, v0")
        A("v_and_b32 v10, 3, v0")
        A("v_lshlrev_b32 v10, 4, v10")
        A(f"v_lshlrev_b32 {v(vMLG)}, 7, v0")
        A(f"v_lshl_or_b32 {v(vH1G)}, v9, 8, v10")
        A(f"s_lshr_b32 {sT1}, {sW}, 2")
        A(f"s_lshl_b32 {sT2}, {sT1}, 8")
        A(f"v_lshl_add_u32 {v(vWR)}, v9, 3, {sT2}")
        A(f"s_lshl_b32 {sT1}, {sT1}, 7")
        A(f"s_and_b32 {sT2}, {sW}, 1")
        A(f"s_lshl_b32 {sT2}, {sT2}, 6")
        A(f"s_add_u32 {sT1}, {sT1}, {sT2}")
        A(f"s_and_b32 {sT2}, {sW}, 2")
        A(f"s_lshl_b32 {sT2}, {sT2}, 2")
        A(f"s_add_u32 {sT1}, {sT1}, {sT2}")
        A(f"v_lshl_or_b32 {v(vOAW)}, v12, 1, v10")
        A(f"v_add_u32 {v(vOAW)}, {sT1}, {v(vOAW)}")
        A("v_and_b32 v10, 1, v0")
        A("v_lshlrev_b32 v10, 4, v10")
        A(f"v_bfe_u32 {v(vOAR)}, v0, 2, 1")
        A(f"v_lshlrev_b32 {v(vOAR)}, 7, {v(vOAR)}")
        A(f"v_lshl_or_b32 {v(vOAR)}, v12, 5, {v(vOAR)}")
        A(f"v_or_b32 {v(vOAR)}, {v(vOAR)}, v10")
        A("v_bfe_u32 v9, v0, 4, 1")
        A("v_lshlrev_b32 v9, 18, v9")
        A("v_bfe_u32 v13, v0, 1, 2")
        A("v_lshl_or_b32 v9, v13, 12, v9")
        A("v_lshl_or_b32 v9, v10, 1, v9")
        A("v_lshrrev_b32 v10, 5, v0")
        A(f"v_lshl_or_b32 {v(vH2S)}, v10, 4, v9")
        A("v_and_b32 v9, 3, v0")
        A("v_lshlrev_b32 v9, 6, v9")
        A("v_lshl_or_b32 v9, v12, 4, v9")
        A(f"s_and_b32 {sT1}, {sW}, 3")
        A(f"s_lshl_b32 {sT1}, {sT1}, 2")
        A(f"v_add_u32 {v(vFPW)}, {sT1}, v9")
        A(f"v_mov_b32 {v(vZ)}, 0")
        if o.get("pack"):
            A("v_and_b32 v13, 8, v0")
            A("v_lshlrev_b32 v13, 3, v13")
            A("v_xor_b32 v13, v13, v28")
        A(f"v_lshlrev_b32 {v(vFL)}, 10, v0")
        if o.get("ypos") != "bar":
            A("v_mov_b32 v16, 0xff800000")
            A("v_mov_b32 v17, 0")
        for k in range(8): A(f"v_mov_b32 {v(20+k)}, 0")
    vcode = {3: [lambda: qk(3)], 4: [sm_max], 5: [sm_Y, lambda: sm_exp(0)], 6: [lambda: sm_exp(1)], 7: [lambda: sm_exp(2)],
             8: [lambda: sm_exp(3)], 9: [sm_sum], 10: [pv_Y], 11: [wr_Y], 12: [addr2], 14: [duties], 16: [lambda: pv(0)], 18: [addr3],
             20: [lambda: pv(1)]}
    p2 = o.get("pv2", min(30, 23 + (o["d2"] if o["n2"] >= 16 else o["d"]) - o["wo_before"]))
    p2 = max(p2, 24)
    vcode[p2] = [lambda: pv(2)]
    vcode.setdefault(p2 + 1, []).append(addr4)
    nb = o["wo_before"]
    bv, bd = o.get("bv", 0), o.get("bd", 0)
    vboost = {i: bv for i in range(2, 19)}
    vboost[14] = bd; vboost[15] = max(bv, bd - 1)
    seq = [(lambda pace, i=i: ldV(i, pace)) for i in range(24)] + [(lambda pace, k=k: ldWO(k, pace)) for k in range(nb)] + [(lambda pace, i=i: ldV(i, pace)) for i in range(24, 32)]
    vcode = {(i if i < 24 else i + nb): f for i, f in vcode.items()}
    run(seq, vcode, vboost)
    def ml_pub():
        A(f"s_cmp_lg_u32 {sW}, 1")
        A("s_cbranch_scc1 L_noml")
        setexec(0xff, 0)
        A(f"buffer_store_dwordx4 v[4:7], v2, {srd(SWS)}, {sMLW} offen {HS}")
        setexec(*FULL)
        A("L_noml:")
    A(f"s_mov_b32 s16, s15")
    A(f"s_mov_b32 s17, s15")
    hv = o["halves"]
    did = False
    for k in range(nb, 8 - NL):
        i = vm["n"]
        ldWO(k, pace=(i - o["d2"] <= vm["tag"]["V31"]))
        if hv and not did and vm["done"] > vm["tag"]["V27"]:
            pv_half(0); did = True
    assert vm["n"] == NTOT
    if hv and not did: pv_half(0)
    need("V31")
    stamp("lastV")
    if o["mlpos"] == "lastV": ml_pub()
    if hv: pv_half(1)
    else: pv(3)
    if o["mlpos"] == "pv": ml_pub()
    if o.get("pack"):
        A("s_nop 3")
        write_O(0, 32, True)
    else:
        A("s_nop 5")
        write_O(0, 32)
    if o["mlpos"] == "wr": ml_pub()
    A("s_waitcnt lgkmcnt(0)")
    A("s_barrier")
    stamp("bar_O")
    if o["mlpos"] == "bar": ml_pub()
    A(f"s_cmp_ge_u32 {sW}, 4")
    A("s_cbranch_scc1 L_nocomb")
    A(f"ds_read_b128 v[128:131], v15 offset:{L_F}")
    for w in range(4): A(f"ds_read_b128 {v(160+4*w,4)}, v14 offset:{L_OP+4096*w}")
    A(f"ds_read_b128 v[132:135], v15 offset:{L_F+16}")
    for w in range(4, 8): A(f"ds_read_b128 {v(160+4*w,4)}, v14 offset:{L_OP+4096*w}")
    A("s_waitcnt lgkmcnt(8)")
    for k in range(4): A(f"v_mul_f32 {v(148+k)}, v128, {v(160+k)}")
    for w in range(1, 8):
        A(f"s_waitcnt lgkmcnt({8-w if w < 4 else 7-w})")
        for k in range(4): A(f"v_fmac_f32 {v(148+k)}, {v(128+w)}, {v(160+4*w+k)}")
    for k in range(4): A(f"v_perm_b32 {v(148+k)}, {v(148+k)}, v8, {sTI[k]}")
    A(f"buffer_store_dwordx4 v[148:151], v11, {srd(SWS)}, {sH1W} offen {HS}")
    stamp("pub1")
    A("s_waitcnt vmcnt(1)")
    A("s_branch L_wot")
    A("L_nocomb:")
    stamp("pub1")
    if o.get("ypos") == "bar":
        A(f"s_cmp_eq_u32 {sXBf}, 0")
        A("s_cbranch_scc1 L_noYpub")
        A("v_lshrrev_b32 v10, 1, v15")
        setexec(1, 1)
        A(f"buffer_store_dwordx4 v[4:7], v10, {srd(SWS)}, {sMLW} offen {HS}")
        setexec(*FULL)
        A(f"buffer_store_dwordx4 v[16:19], v11, {srd(SWS)}, {sH1W} offen {HS}")
        A("s_waitcnt vmcnt(2)")
        A("s_branch L_wot2")
        A("L_noYpub:")
    if o.get("ml0") is not None:
        A(f"s_cmp_lg_u32 {sW}, 4")
        A("s_cbranch_scc1 L_noml0")
        if o["ml0"]: A(f"s_sleep {o['ml0']}")
        A("s_mov_b64 exec, s[12:13]")
        A(f"buffer_load_dwordx4 v[16:19], {v(vMLG)}, {srd(SWS)}, {sMLR} offen {HL}")
        setexec(*FULL)
        A("s_waitcnt vmcnt(1)")
        A("s_branch L_wot")
        A("L_noml0:")
    A("s_waitcnt vmcnt(0)")
    if o.get("ypos") == "bar":
        A("L_wot2:")
        A("v_mov_b32 v16, 0xff800000")
        A("v_mov_b32 v17, 0")
    A("L_wot:")
    stamp("wo_land")
    def wo_perm(ks):
        for e in (0, 4, 1, 5, 2, 6, 3, 7):
            for k in ks:
                A(f"v_perm_b32 {v(192+4*e+k)}, {v(96+4*(2*k+1)+(e>>1))}, {v(96+4*(2*k)+(e>>1))}, {sHI if e & 1 else sLO}")
    wo_perm(range(4 - NL // 2))
    A(f"s_mov_b32 {sCNT}, {o['spin']}")
    A(f"s_cmp_lg_u32 {sW}, 4")
    A("s_cbranch_scc1 L_mldone")
    A("s_mov_b64 exec, s[12:13]")
    if o.get("mlsleep0"): A(f"s_sleep {o['mlsleep0']}")
    if o.get("ml0") is not None: A("s_branch L_mlchk")
    A("L_mlpoll:")
    A(f"buffer_load_dwordx4 v[16:19], {v(vMLG)}, {srd(SWS)}, {sMLR} offen {HL}")
    A("L_mlchk:")
    A("s_waitcnt vmcnt(0)")
    A(f"v_cmp_ne_u32 vcc, {sT}, v18")
    A(f"v_cmp_ne_u32 s[58:59], {sT}, v19")
    A("s_or_b64 vcc, vcc, s[58:59]")
    A("s_and_b64 exec, exec, vcc")
    A("s_cbranch_scc0 L_mlall")
    A(f"s_sub_u32 {sCNT}, {sCNT}, 1")
    A("s_cbranch_scc1 L_mlall")
    if o.get("mlsleep", 2): A(f"s_sleep {o.get('mlsleep', 2)}")
    A("s_branch L_mlpoll")
    A("L_mlall:")
    setexec(*FULL)
    A("v_lshlrev_b32 v9, 3, v0")
    A(f"ds_write_b64 v9, v[16:17] offset:{L_W}")
    A("s_waitcnt lgkmcnt(0)")
    A("L_mldone:")
    A("s_barrier")
    stamp("ml_got")
    if o["odelay"]: A(f"s_sleep {o['odelay']}")
    def oload(tag):
        A(f"buffer_load_dwordx4 v[20:23], {v(vH1G)}, {srd(SWS)}, {sH1R} offen {HL}")
        A(f"s_cmp_eq_u32 {sB}, 1")
        A(f"s_cbranch_scc1 L_one{tag}")
        A(f"buffer_load_dwordx4 v[24:27], {v(vH1G)}, {srd(SWS)}, s4 offen {HL}")
        A(f"L_one{tag}:")
    A("s_mov_b64 exec, s[14:15]")
    oload("a")
    setexec(*FULL)
    if NL and o.get("lbar", 1): A("s_barrier")
    for k in range(8 - NL, 8): ldWO(k, pace=False)
    A(f"ds_read2_b64 v[16:19], {v(vWR)} offset0:{L_W//8} offset1:{L_W//8+16}") if L_W // 8 + 16 < 256 else (
        A(f"ds_read_b64 v[16:17], {v(vWR)} offset:{L_W}"), A(f"ds_read_b64 v[18:19], {v(vWR)} offset:{L_W+128}"))
    def flag2():
        A("s_cmp_lg_u32 s9, 0")
        A("s_cbranch_scc1 L_nof2")
        A(f"buffer_store_dword v8, {v(vFL)}, {srd(SWS)}, {sF2W} offen {HS}")
        A("L_nof2:")
    def allreduce16(op, x, t):
        A("s_nop 1")
        A(f"{op}_dpp {v(x)}, {v(x)}, {v(x)} row_ror:4 {DPP}")
        A("s_nop 1")
        A(f"{op}_dpp {v(x)}, {v(x)}, {v(x)} row_ror:8 {DPP}")
        butterfly(op, x, t)
    if o["f2pos"] == "ml": flag2()
    A("s_waitcnt lgkmcnt(0)")
    A("v_max_f32 v28, v16, v18")
    allreduce16("v_max_f32", 28, 29)
    A("v_sub_f32 v16, v16, v28")
    A("v_sub_f32 v18, v18, v28")
    A("v_exp_f32 v16, v16")
    A("v_exp_f32 v18, v18")
    A("v_mul_f32 v28, v16, v17")
    A("v_fmac_f32 v28, v18, v19")
    allreduce16("v_add_f32", 28, 29)
    A("v_rcp_f32 v28, v28")
    A("s_nop 0")
    A("v_mul_f32 v16, v16, v28")
    A("v_mul_f32 v18, v18, v28")
    if stamps: A(f"s_mov_b32 s62, {sCNT}")
    A(f"s_mov_b32 {sCNT}, {o['spin']}")
    A("s_mov_b64 exec, s[14:15]")
    A(f"s_waitcnt vmcnt({NL})")
    A("L_opoll:")
    tagcheck(20, 28, 29, "vcc")
    tagcheck(24, 30, 31, "s[58:59]")
    A("s_and_b64 s[58:59], s[58:59], s[16:17]")
    A("s_or_b64 vcc, vcc, s[58:59]")
    A("s_cbranch_scc0 L_odone")
    A(f"s_sub_u32 {sCNT}, {sCNT}, 1")
    A("s_cbranch_scc1 L_odone")
    if o["sleep"]: A(f"s_sleep {o['sleep']}")
    oload("b")
    A("s_waitcnt vmcnt(0)")
    A("s_branch L_opoll")
    A("L_odone:")
    setexec(*FULL)
    stamp("hop1")
    if stamps: A(f"s_mov_b32 s94, {sCNT}")
    if o["f2pos"] == "hop1": flag2()
    for k in range(4): A(f"v_mul_f32 {v(20+k)}, v16, {v(20+k)}")
    for k in range(4): A(f"v_fmac_f32 {v(20+k)}, v18, {v(24+k)}")
    A("v_permlane16_swap_b32 v20, v21")
    A("s_nop 0")
    A("v_permlane16_swap_b32 v22, v23")
    A("v_add_f32 v20, v20, v21")
    A("v_add_f32 v22, v22, v23")
    A("s_nop 1")
    A("v_permlane32_swap_b32 v20, v22")
    A("v_add_f32 v20, v20, v22")
    for m in ("row_ror:8", "row_ror:4"):
        A("s_nop 1")
        A(f"v_add_f32_dpp v20, v20, v20 {m} {DPP}")
    A("v_cvt_pk_bf16_f32 v20, v20, v20")
    setexec(0x000f000f, 0x000f000f)
    A(f"ds_write_b16 {v(vOAW)}, v20 offset:{L_OA}")
    setexec(*FULL)
    A("s_waitcnt lgkmcnt(0)")
    A("s_barrier")
    A(f"ds_read_b128 v[28:31], {v(vOAR)} offset:{L_OA}")
    if NL:
        A("s_waitcnt vmcnt(0)")
        wo_perm(range(4 - NL // 2, 4))
    if o["f2pos"] == "oabar": flag2()
    A("s_waitcnt lgkmcnt(0)")
    for e in (0, 4, 1, 5, 2, 6, 3, 7): A(f"{M32} {v(32+4*e,4)}, v[28:31], {v(192+4*e,4)}, 0")
    A("s_nop 1")
    for k in range(4):
        A(f"v_cndmask_b32 {v(24+k)}, {v(33+4*k)}, {v(49+4*k)}, s[10:11]")
        A(f"v_cndmask_b32 {v(16+k)}, {v(32+4*k)}, {v(48+4*k)}, s[10:11]")
    for k in range(4): A(f"v_add_f32_dpp {v(16+k)}, {v(24+k)}, {v(16+k)} row_ror:8 {DPP}")
    for k in range(4): A(f"v_perm_b32 {v(16+k)}, {v(16+k)}, v8, {sTI[k]}")
    setexec(0x00ff00ff, 0x00ff00ff)
    A(f"buffer_store_dwordx4 v[16:19], {v(vH2S)}, {srd(SWS)}, {sH2W} offen {HS}")
    setexec(*FULL)
    if o["f2pos"] == "pub2": flag2()
    stamp("pub2")
    if o.get("fin1"):
        A(f"s_cmp_lg_u32 {sW}, 0")
        A("s_cbranch_scc1 L_fin")
        A(f"s_mov_b32 {sCNT}, {o['spin']}")
        A(f"s_lshl_b32 {sO}, s7, 12")
        A(f"s_lshl_b32 {sT1}, s8, 11")
        A(f"s_add_u32 {sO}, {sO}, {sT1}")
        A(f"s_lshl_b32 {sT1}, s6, 5")
        A(f"s_add_u32 {sO}, {sO}, {sT1}")
        A("v_and_b32 v9, 3, v0")
        A("v_lshl_or_b32 v9, v9, 2, v12")
        A("v_lshlrev_b32 v9, 1, v9")
        A(f"s_add_u32 s20, s{SWS}, {sF2R}")
        A(f"s_addc_u32 s21, s{SWS+1}, 0")
        A("L_f2poll:")
        for k in range(4): A(f"s_load_dword s{12+k}, s[20:21], {128*k} glc")
        A("s_waitcnt lgkmcnt(0)")
        for k in range(4): A(f"s_xor_b32 s{12+k}, s{12+k}, {sT}")
        A("s_or_b32 s12, s12, s13")
        A("s_or_b32 s14, s14, s15")
        A("s_or_b32 s12, s12, s14")
        A("s_cmp_eq_u32 s12, 0")
        spin_tail("L_f2poll", "L_f2done", o.get("f2sleep"))
        stamp("f2_got")
        if stamps: A(f"s_mov_b32 s63, {sCNT}")
        A(f"s_mov_b32 {sCNT}, {o['spin']}")
        if o["fdelay"]: A(f"s_sleep {o['fdelay']}")
        A("L_fpoll:")
        for k in range(4): A(f"buffer_load_dwordx4 {v(32+4*k,4)}, v2, {srd(SWS)}, {sH2R} offen offset:{1024*k} {HL}")
        for k in range(4):
            A(f"s_waitcnt vmcnt({3-k})")
            tagcheck(32+4*k, 25, 26, "vcc" if k == 0 else "s[58:59]")
            if k: A("s_or_b64 vcc, vcc, s[58:59]")
            if k == 1:
                for z in range(4): A(f"v_add_f32 {v(20+z)}, {v(32+z)}, {v(36+z)}")
            if k >= 2:
                for z in range(4): A(f"v_add_f32 {v(20+z)}, {v(20+z)}, {v(32+4*k+z)}")
        A("s_cmp_eq_u64 vcc, 0")
        spin_tail("L_fpoll", "L_fdone")
        stamp("hop2")
        if stamps: A(f"s_mov_b32 s96, {sCNT}")
        A("v_permlane16_swap_b32 v20, v21")
        A("v_permlane16_swap_b32 v22, v23")
        A("v_add_f32 v20, v20, v21")
        A("v_add_f32 v22, v22, v23")
        A("s_nop 1")
        A("v_permlane32_swap_b32 v20, v22")
        A("v_add_f32 v20, v20, v22")
        A("s_nop 1")
        A(f"v_add_f32_dpp v20, v20, v20 row_ror:8 {DPP}")
        A("s_nop 1")
        A(f"v_add_f32_dpp v20, v20, v20 row_ror:4 {DPP}")
        A("v_cvt_pk_bf16_f32 v16, v20, v20")
        setexec(0x000f000f, 0x000f000f)
        A(f"buffer_store_short v16, v9, {srd(SOUT)}, {sO} offen {o.get('os', '')}")
    else:
        A(f"s_cmp_ge_u32 {sW}, 4")
        A("s_cbranch_scc1 L_fin")
        A(f"s_mov_b32 {sCNT}, {o['spin']}")
        A("L_f2poll:")
        A(f"s_load_dword {sT1}, s[{SWS}:{SWS+1}], {sF2R} glc")
        A("s_waitcnt lgkmcnt(0)")
        A(f"s_cmp_eq_u32 {sT1}, {sT}")
        spin_tail("L_f2poll", "L_f2done", o.get("f2sleep"))
        stamp("f2_got")
        if stamps: A(f"s_mov_b32 s63, {sCNT}")
        A(f"s_mov_b32 {sCNT}, {o['spin']}")
        if o["fdelay"]: A(f"s_sleep {o['fdelay']}")
        A("L_fpoll:")
        A(f"buffer_load_dwordx4 v[20:23], v2, {srd(SWS)}, {sH2R} offen {HL}")
        A("s_waitcnt vmcnt(0)")
        tagcheck(20, 25, 26, "vcc")
        A("s_cmp_eq_u64 vcc, 0")
        spin_tail("L_fpoll", "L_fdone")
        stamp("hop2")
        if stamps: A(f"s_mov_b32 s96, {sCNT}")
        A("v_permlane16_swap_b32 v20, v21")
        A("v_permlane16_swap_b32 v22, v23")
        A("v_add_f32 v20, v20, v21")
        A("v_add_f32 v22, v22, v23")
        A("s_nop 1")
        A("v_permlane32_swap_b32 v20, v22")
        A("v_add_f32 v20, v20, v22")
        A("s_nop 1")
        A(f"v_add_f32_dpp v20, v20, v20 row_ror:8 {DPP}")
        A("s_nop 1")
        A(f"v_add_f32_dpp v20, v20, v20 row_ror:4 {DPP}")
        setexec(0x000f000f, 0x000f000f)
        A(f"ds_write_b32 {v(vFPW)}, v20 offset:{L_FP}")
        setexec(*FULL)
        A(f"s_lshl_b32 {sO}, s7, 12")
        A(f"s_lshl_b32 {sT1}, s8, 11")
        A(f"s_add_u32 {sO}, {sO}, {sT1}")
        A(f"s_lshl_b32 {sT1}, s6, 5")
        A(f"s_add_u32 {sO}, {sO}, {sT1}")
        A("v_lshlrev_b32 v9, 1, v0")
        A("s_waitcnt lgkmcnt(0)")
        A("s_barrier")
        A(f"s_cmp_lg_u32 {sW}, 0")
        A("s_cbranch_scc1 L_fin")
        setexec(0xffff, 0)
        A(f"ds_read_b128 v[16:19], v2 offset:{L_FP}")
        A("s_waitcnt lgkmcnt(0)")
        A("v_add_f32 v16, v16, v17")
        A("v_add_f32 v18, v18, v19")
        A("v_add_f32 v16, v16, v18")
        A("v_cvt_pk_bf16_f32 v16, v16, v16")
        A(f"buffer_store_short v16, v9, {srd(SOUT)}, {sO} offen {o.get('os', '')}")
    A("s_cmp_lg_u32 s2, 0")
    A("s_cbranch_scc1 L_fin")
    setexec(1, 0)
    A(f"buffer_store_dword v8, {v(vZ)}, {srd(SWS)}, 0 offen {o.get('os', '')}")
    A("L_fin:")
    if stamps and o.get("hold"):
        A("s_waitcnt lgkmcnt(0)")
        if o.get("holdx"):
            A("s_getreg_b32 s62, hwreg(HW_REG_XCC_ID, 0, 4)")
            A(f"s_lshl_b32 s62, 1, s62")
            A(f"s_and_b32 s62, s62, {o['holdx']}")
            A("s_cbranch_scc0 L_end")
        A("L_hold:")
        A("s_memrealtime s[62:63]")
        A("s_waitcnt lgkmcnt(0)")
        A("s_sub_u32 s62, s62, s60")
        A(f"s_cmp_lt_u32 s62, {o['hold']}")
        A("s_cbranch_scc1 L_hold")
        A("s_endpgm")
    if stamps:
        setexec(*FULL)
        stamp("end")
        A("s_waitcnt lgkmcnt(0)")
        A("s_getreg_b32 s98, hwreg(HW_REG_XCC_ID)")
        A("s_getreg_b32 s99, hwreg(HW_REG_HW_ID)")
        vals = ["s60"] + [f"s{62+2*k}" for k in range(1, 16)] + ["s63", "s62", "s94", "s96", "s98", "s99", "s61", "s98"]
        for k, s in enumerate(vals): A(f"v_mov_b32 {v(128+k)}, {s}")
        A(f"s_lshl_b32 {sT1}, s2, 3")
        A(f"s_add_u32 {sT1}, {sT1}, {sW}")
        A(f"s_lshl_b32 {sT1}, {sT1}, 7")
        A(f"s_add_u32 {sT1}, {sT1}, {WS_ST}")
        A("v_mov_b32 v9, 0")
        setexec(1, 0)
        if o.get("dbgout"):
            A("s_load_dwordx2 s[4:5], s[0:1], 88")
            A("s_mov_b32 s6, 256")
            A("s_mov_b32 s7, 0x20000")
            A("v_not_b32 v128, v128")
            A("s_waitcnt lgkmcnt(0)")
            A(f"s_cmp_lg_u32 {sW}, 0")
            A("s_cbranch_scc1 L_end")
            for k in range(16): A(f"buffer_atomic_umax {v(128+k)}, v9, s[4:7], 0 offen offset:{4*k}")
        else:
            for k in range(6): A(f"buffer_store_dwordx4 {v(128+4*k,4)}, v9, {srd(SWS)}, {sT1} offen offset:{16*k}")
    A("L_end:")
    A("s_endpgm")
    A('.section .rodata,"a"')
    A(".p2align 6")
    A(f".amdhsa_kernel {NAME}")
    A(".amdhsa_next_free_vgpr 256")
    A(".amdhsa_next_free_sgpr 102")
    A(".amdhsa_accum_offset 256")
    A(".amdhsa_group_segment_fixed_size 0")
    A(".amdhsa_kernarg_size 104")
    A(".amdhsa_user_sgpr_count 2")
    A(".amdhsa_user_sgpr_kernarg_segment_ptr 1")
    A(".amdhsa_system_sgpr_workgroup_id_x 1")
    A(".amdhsa_float_denorm_mode_32 3")
    A(".end_amdhsa_kernel")
    msgs = check_hazards(A.lines)
    for m in msgs: print(m, file=sys.stderr)
    return A.text()

if __name__ == "__main__":
    import json
    name = sys.argv[1]; opt = json.loads(sys.argv[2]) if len(sys.argv) > 2 else {}
    open(f"k_{name}.s", "w").write(gen(False, opt))
    open(f"k_{name}_st.s", "w").write(gen(True, opt))
```
